```python
import torch

def _softmax(x, axis=-1):
    return torch.softmax(x, dim=axis)
def _gelu(x):
    return torch.nn.functional.gelu(x, approximate="tanh")
def _silu(x):
    return torch.nn.functional.silu(x)
def _sigmoid(x):
    return torch.sigmoid(x)
def _layernorm(x, axis=-1, eps=1e-5):
    m = x.mean(dim=axis, keepdim=True)
    v = x.var(dim=axis, keepdim=True, unbiased=False)
    return (x - m) / torch.sqrt(v + eps)
def _scatter_add(tgt, idx, src, axis=0):
    return tgt.clone().index_add_(axis, idx, src)
def _segment_sum(src, seg, n):
    out = torch.zeros((n,) + src.shape[1:], dtype=src.dtype)
    return out.index_add_(0, seg, src)
def _pad(x, pw):
    flat = tuple(v for pair in reversed(pw) for v in pair)
    return torch.nn.functional.pad(x, flat)

kernel_name = 'concat_heads__linear_attn_block__sliding_block__prompt'

def setup_inputs():

    _w = (lambda a: (lambda t: t.to(torch.bfloat16) if t.is_floating_point() else t)(torch.as_tensor(a)))
    def _A_setup():
        B, S, D = 1, 2048, 1024
        return {
            "x": _w((lambda *s: torch.randn(*s, dtype=torch.bfloat16) * 0.05)(B, S, D)),
            "wqkv": _w((lambda *s: torch.randn(*s, dtype=torch.bfloat16) * 1.6)(D, 3 * D)),
            "wo": _w((lambda *s: torch.randn(*s, dtype=torch.bfloat16) * 0.8)(D, D)),
        }
    _A_in = _A_setup()

    def _B_setup():
        B, S, D = 1, 2048, 1024
        return {
            "x": _w((lambda *s: torch.randn(*s, dtype=torch.bfloat16) * 0.2)(B, S, D)),
            "wqkv": _w((lambda *s: torch.randn(*s, dtype=torch.bfloat16) * 0.2)(D, 3 * D)),
            "wo": _w((lambda *s: torch.randn(*s, dtype=torch.bfloat16) * 0.05)(D, D)),
        }
    _B_in = _B_setup()

    return {
        "A_x": _A_in["x"],
        "A_wqkv": _A_in["wqkv"],
        "A_wo": _A_in["wo"],
        "B_x": _B_in["x"],
        "B_wqkv": _B_in["wqkv"],
        "B_wo": _B_in["wo"],
    }

def reference(A_x, A_wqkv, A_wo, B_x, B_wqkv, B_wo):
    def _A_ref(x, wqkv, wo):
        B, S, D = x.shape
        H = 32; Dh = D // H
        qkv = (lambda x, *d: x.permute(*d))((x @ wqkv).reshape(B, S, 3, H, Dh), 2, 0, 3, 1, 4)
        q, k, v = qkv[0], qkv[1], qkv[2]
        phi = lambda t: torch.where(t > 0, t + 1, torch.exp(t)) + 1e-6
        pq, pk = phi(q), phi(k)
        kv = torch.einsum("bhsd,bhse->bhde", pk, v)
        z = torch.einsum("bhsd->bhd", pk)
        num = torch.einsum("bhqd,bhde->bhqe", pq, kv)
        den = torch.einsum("bhqd,bhd->bhq", pq, z)[..., None] + 1e-6
        o = num / den
        return (lambda x, *d: x.permute(*d))(o, 0, 2, 1, 3).reshape(B, S, D) @ wo

    def _B_ref(x, wqkv, wo):
        B, S, D = x.shape
        H = 32; Dh = D // H; W = 256
        qkv = (lambda x, *d: x.permute(*d))((x @ wqkv).reshape(B, S, 3, H, Dh), 2, 0, 3, 1, 4)
        q, k, v = qkv[0], qkv[1], qkv[2]
        scores = torch.einsum("bhqd,bhkd->bhqk", q, k) * (Dh ** -0.5)
        idx = torch.arange(S)
        mask = (idx[:, None] - idx[None, :] >= 0) & (idx[:, None] - idx[None, :] < W)
        scores = torch.where(mask[None, None], scores, -1e9)
        p = _softmax(scores, axis=-1)
        o = torch.einsum("bhqk,bhkd->bhqd", p, v)
        return (lambda x, *d: x.permute(*d))(o, 0, 2, 1, 3).reshape(B, S, D) @ wo

    a = _A_ref(A_x, A_wqkv, A_wo)
    b = _B_ref(B_x, B_wqkv, B_wo)
    return torch.concatenate([a, b], axis=-1)
```

```python
class Asm:
    def __init__(self):
        self.lines = []
    def __call__(self, s=""):
        for l in s.split("\n"):
            self.lines.append(l)
    def emit(self, *ls):
        for l in ls: self(l)
    def label(self, name):
        self.lines.append(name + ":")
    def text(self):
        return "\n".join(self.lines) + "\n"

def vr(base, n=1, p="v"):
    return f"{p}{base}" if n == 1 else f"{p}[{base}:{base+n-1}]"
def ar(base, n=1): return vr(base, n, "a")
def sr(base, n=1): return vr(base, n, "s")

def kdesc(name, vgpr=512, accum=256, sgpr=102, lds=0):
    return f""".p2align 6
.amdhsa_kernel {name}
  .amdhsa_next_free_vgpr {vgpr}
  .amdhsa_next_free_sgpr {sgpr}
  .amdhsa_accum_offset {accum}
  .amdhsa_group_segment_fixed_size 0
  .amdhsa_kernarg_size 72
  .amdhsa_user_sgpr_count 2
  .amdhsa_user_sgpr_kernarg_segment_ptr 1
  .amdhsa_system_sgpr_workgroup_id_x 1
  .amdhsa_float_denorm_mode_32 3
  .amdhsa_float_denorm_mode_16_64 3
.end_amdhsa_kernel
"""

class LgkmTracker:
    def __init__(self):
        self.issued = []
        self.done = 0
    def issue(self, tag):
        self.issued.append(tag)
    def need(self, tags):
        idx = -1
        for t in tags:
            for i in range(len(self.issued)-1, -1, -1):
                if self.issued[i] == t:
                    idx = max(idx, i); break
        if idx < self.done: return None
        n = len(self.issued) - 1 - idx
        if n > 15: n = 15
        self.done = len(self.issued) - n
        return n
    def all_done(self):
        self.done = len(self.issued)
```

```python
import re, sys
def regs(tok):
    tok = tok.strip().rstrip(',')
    neg = tok.lstrip('-')
    if neg.startswith('abs(') or neg.startswith('|'):
        neg = neg.replace('abs(', '').replace(')', '').replace('|', '')
    m = re.fullmatch(r'([vas])\[(\d+):(\d+)\]', neg)
    if m: return [(m.group(1), i) for i in range(int(m.group(2)), int(m.group(3))+1)]
    m = re.fullmatch(r'([vas])(\d+)', neg)
    if m: return [(m.group(1), int(m.group(2)))]
    if neg == 'vcc': return [('s', 106), ('s', 107)]
    if neg == 'm0': return [('m', 0)]
    if neg == 'exec': return [('e', 0)]
    return []
TRANS = ('v_exp_f32', 'v_log_f32', 'v_rcp_f32', 'v_rsq_f32', 'v_sqrt_f32', 'v_sin_f32', 'v_cos_f32')
class I:
    def __init__(s, line, no):
        s.line = line; s.no = no
        p = line.split(None, 1)
        s.op = p[0]; ops = p[1] if len(p) > 1 else ''
        s.toks = [t.strip() for t in ops.split(',')]
        if s.toks: s.toks[-1] = s.toks[-1].split(' ')[0] if not s.op.startswith(('buffer_', 'global_', 'ds_')) else s.toks[-1]
        s.mfma = s.op.startswith('v_mfma'); s.valu = s.op.startswith('v_') and not s.mfma
        s.trans = s.op.replace('_e32','').replace('_e64','') in TRANS
        s.vmem = s.op.startswith(('buffer_', 'global_')); s.ds = s.op.startswith('ds_'); s.salu = s.op.startswith('s_')
        s.ws = 1
        if s.op == 's_nop': s.ws = int(s.toks[0], 0) + 1
        s.dst = []; s.src = []
        T = s.toks
        if s.mfma:
            s.dst = regs(T[0]); s.srcAB = regs(T[1]) + regs(T[2]); s.srcC = regs(T[3]); s.src = s.srcAB + s.srcC
            s.passes = 8 if '32x32x16' in s.op else 4
        elif s.valu:
            if s.op.startswith('v_cmp'):
                s.dst = regs(T[0]); s.src = sum((regs(t) for t in T[1:]), [])
            elif s.op.startswith(('v_permlane16_swap', 'v_permlane32_swap')):
                s.dst = regs(T[0]) + regs(T[1]); s.src = s.dst[:]
            elif s.op.startswith(('v_add_co', 'v_addc_co', 'v_sub_co')):
                s.dst = regs(T[0]) + regs(T[1]); s.src = sum((regs(t) for t in T[2:]), [])
            else:
                s.dst = regs(T[0]); s.src = sum((regs(t) for t in T[1:]), [])
                if s.op.startswith(('v_fmac', 'v_pk_fmac')): s.src += s.dst
                if s.op.startswith('v_cndmask') and len(T) == 3: s.src += regs('vcc')
        elif s.ds:
            if 'read' in s.op or 'bpermute' in s.op or 'swizzle' in s.op:
                s.dst = regs(T[0]); s.src = sum((regs(t.split(' ')[0]) for t in T[1:]), [])
            else:
                s.src = sum((regs(t.split(' ')[0]) for t in T), [])
        elif s.vmem:
            first = T[0].split(' ')[0]
            rest = sum((regs(t.split(' ')[0]) for t in T[1:]), [])
            s.lds = ' lds' in line
            if 'store' in s.op or ('atomic' in s.op):
                s.src = regs(first) + rest; s.storedata = regs(first) if ('x4' in s.op or 'x3' in s.op) else []
                if 'atomic' in s.op and 'sc0' in line: s.dst = regs(first)
            elif s.lds:
                s.src = regs(first) + rest + [('m', 0)]
            elif s.op in ('buffer_inv', 'buffer_wbl2'):
                pass
            else:
                s.dst = regs(first); s.src = rest
        elif s.salu:
            if s.op in ('s_waitcnt', 's_nop', 's_barrier', 's_endpgm', 's_branch', 's_sleep', 's_setprio') or s.op.startswith('s_cbranch'):
                pass
            elif s.op.startswith('s_cmp') or s.op.startswith('s_bitcmp'):
                s.src = sum((regs(t) for t in T), [])
            elif s.op.startswith('s_load') or s.op.startswith('s_mem'):
                s.dst = regs(T[0]); s.src = sum((regs(t) for t in T[1:]), [])
            else:
                s.dst = regs(T[0]); s.src = sum((regs(t) for t in T[1:]), [])
                if 'saveexec' in s.op: s.dst += [('e', 0)]
def check(text, verbose=True):
    ins = []
    for no, l in enumerate(text.split('\n'), 1):
        l = l.split(';')[0].strip()
        if not l or l.startswith('.') or l.endswith(':'): continue
        ins.append(I(l, no))
    errs = []
    n = len(ins)
    for i, c in enumerate(ins):
        dist = 0
        j = i - 1
        while j >= 0 and dist < 24:
            p = ins[j]
            if p.op in ('s_endpgm', 's_branch', 's_setpc_b64'): break
            need = 0; why = ''
            ps_d = set(p.dst); cs_s = set(c.src); cs_d = set(c.dst)
            vd = {r for r in ps_d if r[0] in 'va'}
            if p.mfma:
                if (c.valu or c.vmem or c.ds) and (vd & (cs_s | cs_d)):
                    need = {4: 8, 8: 12}[p.passes]; why = 'mfma D -> valu/mem'
                if c.mfma:
                    if vd & set(c.srcAB): need = max(need, {4: 8, 8: 12}[p.passes]); why = 'mfma D -> mfma AB'
                    ov = vd & set(c.srcC)
                    if ov and (set(c.srcC) != vd or c.passes != p.passes): need = max(need, {4: 6, 8: 10}[p.passes]); why = 'mfma D -> mfma C partial'
                    ov2 = vd & set(c.dst)
                    if ov2 and not ov and False: pass
                if c.valu and (set(p.srcC) & {r for r in cs_d if r[0] in 'va'}):
                    need = max(need, {4: 3, 8: 7}[p.passes]); why = 'mfma C WAR'
            if p.valu:
                if c.mfma and (vd & cs_s): need = max(need, 2); why = 'valu -> mfma'
                if p.trans and c.valu and not c.trans and (vd & cs_s): need = max(need, 1); why = 'trans -> valu'
                if c.op.startswith(('v_permlane16', 'v_permlane32')) and (vd & cs_s): need = max(need, 2); why = 'valu -> permlane'
                if c.op.startswith(('v_readfirstlane', 'v_readlane')) and (vd & cs_s): need = max(need, 1); why = 'valu -> readlane'
                sd = {r for r in ps_d if r[0] == 's'}
                if sd and c.valu and (sd & cs_s): need = max(need, 2); why = 'valu sgpr -> valu'
                if sd and c.vmem and (sd & cs_s): need = max(need, 5); why = 'valu sgpr -> vmem'
                if sd and (c.op.startswith('v_readlane') or c.op.startswith('v_writelane')) and (sd & cs_s): need = max(need, 4); why='valu sgpr->lane sel'
            if p.salu and ('m', 0) in ps_d and c.vmem and getattr(c, 'lds', False): need = max(need, 1); why = 'm0 -> dma'
            if p.vmem and getattr(p, 'storedata', None) and c.valu and (set(p.storedata) & cs_d): need = max(need, 2); why = 'store data WAR'
            if need > dist:
                errs.append(f"line {c.no}: [{c.line}] needs {need} ws after line {p.no}: [{p.line}] ({why}), has {dist}")
            dist += p.ws
            j -= 1
    if verbose:
        for e in errs[:40]: print(e)
        print("hazard check:", len(errs), "issues")
    return errs
if __name__ == '__main__':
    check(open(sys.argv[1]).read())
```

```python
from asmgen import *
O_IMG = 0x2000000
HALO  = 0x1000000
PART  = 0x1800000
STAMP = 0x8000000
LOG2E = 0x3fb8aa3b
QSCALE = 0x3e8293ee
EPS = 0x358637bd
NEGBIG = 0xf149f2ca

XS = [0, 32768]
WSL = [65536, 65536+24576]
LDS1 = 163840
ACC = 64
def acc(a, c): return ACC + (a*6 + c)*4
FX = [0, 64]; FW = [32, 96]
V_XA, V_XB, V_WA, V_WB = 2, 3, 4, 5
V_RX = [6, 7]; V_RW = 8
S_X = 4; S_W = 8; S_O = 12
S_XC = 24; S_WC = 32
S_M0X = 40; S_M0W = 41; S_CNT = 42; S_BR = 43; S_MB = 44; S_HP = 45; S_WAVE = 46
S_T0 = 48
S_D = 60
S_MASK = 64
S_FB = 96

def gen_k1(A, OPT, name="k1_kernel"):
    stamps = OPT.get("stamps", 0)
    def dma_list(slot):
        g = []
        for m in range(8):
            pre = [f"s_add_u32 m0, s{S_M0X}, {XS[slot] + (m//4)*4096}"] if m % 4 == 0 else []
            so = "0" if m == 0 else f"s{S_XC + m - 1}"
            v = V_XA if m % 2 == 0 else V_XB
            off = (m % 4)*1024
            g.append((pre, f"buffer_load_dwordx4 v{v}, s[{S_X}:{S_X+3}], {so} offen " + (f"offset:{off} " if off else "") + "lds"))
        c = 0
        for j in range(3):
            for u in range(2):
                pre = [f"s_add_u32 m0, s{S_M0W}, {WSL[slot] + j*8192}"] if u == 0 else []
                so = "0" if c == 0 else f"s{S_WC + c - 1}"
                v = V_WA if u == 0 else V_WB
                g.append((pre, f"buffer_load_dwordx4 v{v}, s[{S_W}:{S_W+3}], {so} offen " + ("offset:1024 " if u else "") + "lds"))
                c += 1
        return g
    def advance():
        return [f"s_add_u32 s{S_X}, s{S_X}, 128", f"s_addc_u32 s{S_X+1}, s{S_X+1}, 0", f"s_sub_u32 s{S_X+2}, s{S_X+2}, 128",
                f"s_add_u32 s{S_W}, s{S_W}, {64*6144}", f"s_addc_u32 s{S_W+1}, s{S_W+1}, 0", f"s_sub_u32 s{S_W+2}, s{S_W+2}, {64*6144}"]
    def reads(slot, t, fs):
        r = []
        def X(a): return (("X", a, fs), f"ds_read_b128 {ar(FX[fs]+4*a,4)}, v{V_RX[t]} offset:{XS[slot] + a*2048}")
        def W(c, u):
            j, b = c//2, c % 2
            return (("W", c, u, fs), f"ds_read_b64_tr_b16 {ar(FW[fs]+4*c+2*u,2)}, v{V_RW + b} offset:{WSL[slot]-65536 + j*8192 + t*4096 + u*512}")
        r.append(X(0))
        for c in range(6): r += [W(c,0), W(c,1)]
        for a in range(1, 8): r.append(X(a))
        return r
    def mfma(a, c, fs, swap):
        x = ar(FX[fs]+4*a, 4); w = ar(FW[fs]+4*c, 4); d = vr(acc(a,c), 4)
        if swap[c//2]: x, w = w, x
        return f"v_mfma_f32_16x16x32_bf16 {d}, {x}, {w}, {d}"
    def stage(trk, slot, swap, dma_next, last):
        for t in range(2):
            fs = t
            fill = [[] for _ in range(48)]
            if t == 0:
                for g, x in enumerate(reads(slot, 1, 1)): fill[2*g].append(("lds",) + x)
            else:
                if not last:
                    for g, x in enumerate(reads(slot ^ 1, 0, 0)): fill[2*g+2].append(("lds",) + x)
                if dma_next:
                    for g, d in enumerate(dma_list(slot)): fill[2*g+3].append(("dma", d))
                    fill[45].append(("raw", advance()))
            n = 0
            for a in range(8):
                for c in range(6):
                    need = trk.need([("X", a, fs), ("W", c, 0, fs), ("W", c, 1, fs)])
                    if t == 1 and n == 0 and not last:
                        A("s_waitcnt lgkmcnt(0)"); trk.all_done()
                    elif need is not None:
                        A(f"s_waitcnt lgkmcnt({need})")
                    A(mfma(a, c, fs, swap))
                    if t == 1 and n == 0 and not last:
                        A("s_waitcnt vmcnt(0)")
                        A("s_barrier")
                    m0w = False; between = 0
                    for f in fill[n]:
                        if f[0] == "dma":
                            for p in f[1][0]:
                                A(p); m0w = True
                    for f in fill[n]:
                        if f[0] == "lds":
                            A(f[2]); between += 1
                            trk.issue(f[1])
                    for f in fill[n]:
                        if f[0] == "dma":
                            if m0w and between == 0: A("s_nop 0")
                            A(f[1][1])
                    for f in fill[n]:
                        if f[0] == "raw":
                            for p in f[1]: A(p)
                    n += 1
    def gen_main(tag, swap):
        trk = LgkmTracker()
        for tg, ins in reads(0, 0, 0):
            A(ins); trk.issue(tg)
        A(f"s_mov_b32 s{S_CNT}, 0")
        A(".p2align 6")
        A.label(f".L{tag}_loop")
        stage(trk, 0, swap, True, False)
        stage(trk, 1, swap, True, False)
        A(f"s_add_u32 s{S_CNT}, s{S_CNT}, 1")
        A(f"s_cmp_lt_u32 s{S_CNT}, 7")
        A(f"s_cbranch_scc1 .L{tag}_loop")
        stage(trk, 0, swap, False, False)
        stage(trk, 1, swap, False, True)
    def stamp(i):
        if stamps: A(f"s_memrealtime s[{S_T0+2*i}:{S_T0+2*i+1}]")

    A(f".globl {name}\n.p2align 8\n.type {name},@function\n{name}:")
    stamp(0)
    A(f"""s_cmp_ge_u32 s2, 256
s_cbranch_scc1 .L{name}_done
s_and_b32 s16, s2, 7
s_lshr_b32 s17, s2, 3
s_and_b32 s{S_BR}, s16, 1
s_lshr_b32 s18, s16, 1
s_and_b32 s19, s18, 1
s_lshr_b32 s18, s18, 1
s_lshl_b32 s19, s19, 2
s_and_b32 s20, s17, 3
s_add_u32 s{S_MB}, s19, s20
s_lshl_b32 s18, s18, 3
s_lshr_b32 s20, s17, 2
s_add_u32 s{S_HP}, s18, s20
s_mul_i32 s16, s{S_BR}, 24
s_load_dwordx4 s[20:23], s[0:1], s16
s_load_dwordx2 s[{S_O}:{S_O+1}], s[0:1], 64
s_load_dwordx2 s[{S_D}:{S_D+1}], s[0:1], 56
v_lshrrev_b32 v1, 6, v0
v_and_b32 v0, 63, v0
v_readfirstlane_b32 s{S_WAVE}, v1
s_mov_b32 s{S_O+2}, 0x10000000
s_mov_b32 s{S_O+3}, 0x20000
s_mov_b32 s{S_D+2}, 256
s_mov_b32 s{S_D+3}, 0x20000
""")
    for m in range(1, 8): A(f"s_mov_b32 s{S_XC+m-1}, {m*16384 - (m%4)*1024}")
    c = 0
    for j in range(3):
        for u in range(2):
            if c: A(f"s_mov_b32 s{S_WC+c-1}, {j*2048 + u*(8*6144-1024)}")
            c += 1
    A(f"""s_lshl_b32 s{S_M0X}, s{S_WAVE}, 13
s_lshl_b32 s{S_M0W}, s{S_WAVE}, 11
v_lshrrev_b32 v20, 3, v0            ; l>>3
v_lshrrev_b32 v21, 4, v0            ; l>>4 = g
v_and_b32 v22, 7, v0                ; l&7
v_xor_b32 v23, v22, v21
v_lshlrev_b32 v23, 4, v23
s_lshl_b32 s16, s{S_WAVE}, 6        ; 64w rows
v_add_u32 v24, s16, v20
v_lshlrev_b32 v24, 11, v24
v_add_u32 v{V_XA}, v24, v23
v_xor_b32 v{V_XB}, 64, v{V_XA}
; W: k = 16w + 8u + (l>>3)
v_and_b32 v23, 1, v21
v_lshlrev_b32 v23, 1, v23
v_xor_b32 v23, v22, v23
v_lshlrev_b32 v23, 4, v23
s_lshl_b32 s16, s{S_WAVE}, 4
v_add_u32 v24, s16, v20
v_mul_u32_u24 v24, 6144, v24
v_add_u32 v{V_WA}, v24, v23
v_xor_b32 v{V_WB}, 64, v{V_WA}
v_and_b32 v20, 15, v0
v_bfe_u32 v22, v0, 1, 3
v_xor_b32 v22, v22, v21
s_lshr_b32 s16, s{S_WAVE}, 1
s_lshl_b32 s16, s16, 7
v_add_u32 v23, s16, v20
v_lshlrev_b32 v23, 7, v23
""")
    for t in range(2):
        A(f"v_xor_b32 v24, {4*t}, v22\nv_lshlrev_b32 v24, 4, v24\nv_add_u32 v{V_RX[t]}, v23, v24")
    A(f"""v_bfe_u32 v20, v0, 2, 2
v_lshlrev_b32 v22, 3, v21
v_add_u32 v22, v22, v20
v_lshlrev_b32 v22, 7, v22
v_bfe_u32 v23, v0, 3, 1
v_and_b32 v24, 1, v21
v_lshlrev_b32 v24, 1, v24
v_or_b32 v23, v23, v24
s_and_b32 s16, s{S_WAVE}, 1
s_lshl_b32 s16, s16, 1
v_xor_b32 v23, s16, v23
v_lshlrev_b32 v23, 5, v23
v_add_u32 v22, v22, v23
v_and_b32 v23, 3, v0
v_lshlrev_b32 v23, 3, v23
v_add_u32 v22, v22, v23
v_add_u32 v{V_RW}, 0x10000, v22
v_xor_b32 v{V_RW+1}, 32, v{V_RW}
s_waitcnt lgkmcnt(0)
s_lshl_b32 s16, s{S_MB}, 19
s_add_u32 s{S_X}, s20, s16
s_addc_u32 s{S_X+1}, s21, 0
s_sub_u32 s{S_X+2}, 0x400000, s16
s_mov_b32 s{S_X+3}, 0x20000
s_lshl_b32 s16, s{S_HP}, 7
s_add_u32 s{S_W}, s22, s16
s_addc_u32 s{S_W+1}, s23, 0
s_sub_u32 s{S_W+2}, 0x600000, s16
s_mov_b32 s{S_W+3}, 0x20000
""")
    for pre, ins in dma_list(0):
        for p in pre: A(p)
        A("s_nop 0"); A(ins)
    for p in advance(): A(p)
    for pre, ins in dma_list(1):
        for p in pre: A(p)
        A("s_nop 0"); A(ins)
    for p in advance(): A(p)
    for r in range(ACC, 256): A(f"v_mov_b32 v{r}, 0")
    A("s_waitcnt vmcnt(14)\ns_barrier")
    stamp(1)
    A(f"s_cmp_eq_u32 s{S_BR}, 0\ns_cbranch_scc1 .Lmain_A")
    gen_main("B", [1, 1, 0])
    stamp(2)
    A("s_barrier\ns_nop 7")
    phase2_B(A, OPT, stamp)
    A(f"s_branch .L{name}_fin")
    A.label(".Lmain_A")
    gen_main("A", [1, 0, 0])
    stamp(2)
    A("s_barrier\ns_nop 7")
    phase2_A(A, OPT, stamp)
    A.label(f".L{name}_fin")
    if stamps:
        A("s_waitcnt vmcnt(0)")
        stamp(5)
        A(f"""s_waitcnt lgkmcnt(0)
s_cmp_lg_u32 s{S_WAVE}, 0
s_cbranch_scc1 .L{name}_done
""")
        for q in range(12): A(f"v_mov_b32 v{20+q}, s{S_T0+q}")
        A(f"""s_lshl_b32 s16, s2, 6
s_add_u32 s16, s16, {STAMP}
v_mov_b32 v40, s16
v_cmp_eq_u32 vcc, 0, v0
s_and_saveexec_b64 s[18:19], vcc
s_cbranch_execz .L{name}_done
buffer_store_dwordx4 v[20:23], v40, s[{S_O}:{S_O+3}], 0 offen
buffer_store_dwordx4 v[24:27], v40, s[{S_O}:{S_O+3}], 0 offen offset:16
buffer_store_dwordx4 v[28:31], v40, s[{S_O}:{S_O+3}], 0 offen offset:32
""")
    A.label(f".L{name}_done")
    A("s_endpgm")
    return kdesc(name, 512, 256, 102), LDS1

POLL_LIMIT = 200000
def poll(A, tag, dword_off_expr_sreg, test, tv=60):
    A(f"""s_cmp_lg_u32 s{S_WAVE}, 0
s_cbranch_scc1 .Lpoll_{tag}_end
s_mov_b32 s17, 0
.Lpoll_{tag}:
buffer_load_dword v{tv}, off, s[{S_D}:{S_D+3}], s{dword_off_expr_sreg} sc1
s_waitcnt vmcnt(0)
v_readfirstlane_b32 s16, v{tv}
{test}
s_cbranch_scc1 .Lpoll_{tag}_end
s_sleep 1
s_add_u32 s17, s17, 1
s_cmp_lt_u32 s17, {POLL_LIMIT}
s_cbranch_scc1 .Lpoll_{tag}
.Lpoll_{tag}_end:""")

def signal(A, tag, off_sreg, val_sreg, tv=60):
    A(f"""s_cmp_lg_u32 s{S_WAVE}, 0
s_cbranch_scc1 .Lsig_{tag}_end
v_mov_b32 v{tv}, s{val_sreg}
s_mov_b64 exec, 1
buffer_atomic_add v{tv}, off, s[{S_D}:{S_D+3}], s{off_sreg}
s_mov_b64 exec, -1
.Lsig_{tag}_end:""")

def phi_ops(regs, tmp):
    ops = []
    for k in range(0, len(regs), 2):
        r = regs[k]; t = tmp[(k//2) % len(tmp)]
        ops.append(f"v_pk_mul_f32 v[{t}:{t+1}], v[{r}:{r+1}], s[18:19]")
        ops.append(f"v_max_f32 v{r}, 0, v{r}")
        ops.append(f"v_exp_f32_e64 v{t}, v{t} clamp")
        ops.append(f"v_exp_f32_e64 v{t+1}, v{t+1} clamp")
        ops.append(f"v_max_f32 v{r+1}, 0, v{r+1}")
        ops.append(f"v_pk_add_f32 v[{r}:{r+1}], v[{r}:{r+1}], v[{t}:{t+1}]")
        ops.append(f"v_pk_add_f32 v[{r}:{r+1}], v[{r}:{r+1}], s[22:23]")
    return ops

def phase2_A(A, OPT, stamp):
    KV = 16
    Z = 32
    ONES = 40
    TMP = [44, 46, 48, 50]
    A(f"""s_mov_b32 s18, {LOG2E}
s_mov_b32 s19, {LOG2E}
s_mov_b32 s22, {EPS}
s_mov_b32 s23, {EPS}
""")
    for r in range(4): A(f"v_mov_b32 v{ONES+r}, 0x3f803f80")
    for s in range(4):
        for b in range(2):
            t0 = acc(2*s, 2+b); t1 = acc(2*s+1, 2+b)
            for op in phi_ops([t0, t0+1, t0+2, t0+3, t1, t1+1, t1+2, t1+3], TMP): A(op)
            A(f"v_cvt_pk_bf16_f32 v{t0}, v{t0}, v{t0+1}")
            A(f"v_cvt_pk_bf16_f32 v{t0+1}, v{t0+2}, v{t0+3}")
            A(f"v_cvt_pk_bf16_f32 v{t0+2}, v{t1}, v{t1+1}")
            A(f"v_cvt_pk_bf16_f32 v{t0+3}, v{t1+2}, v{t1+3}")
        for b in range(2):
            t0 = acc(2*s, 4+b); t1 = acc(2*s+1, 4+b)
            A(f"v_cvt_pk_bf16_f32 v{t0}, v{t0}, v{t0+1}")
            A(f"v_cvt_pk_bf16_f32 v{t0+1}, v{t0+2}, v{t0+3}")
            A(f"v_cvt_pk_bf16_f32 v{t0+2}, v{t1}, v{t1+1}")
            A(f"v_cvt_pk_bf16_f32 v{t0+3}, v{t1+2}, v{t1+3}")
        A("s_nop 1")
        for b in range(2):
            pk = vr(acc(2*s, 2+b), 4)
            for bp in range(2):
                d = vr(KV + (b*2+bp)*4, 4)
                A(f"v_mfma_f32_16x16x32_bf16 {d}, {pk}, {vr(acc(2*s, 4+bp), 4)}, {'0' if s == 0 else d}")
            d = vr(Z + 4*b, 4)
            A(f"v_mfma_f32_16x16x32_bf16 {d}, {pk}, {vr(ONES,4)}, {'0' if s == 0 else d}")
    A(f"""v_lshlrev_b32 v44, 4, v0
s_and_b32 s16, s{S_WAVE}, 1
s_mul_i32 s16, s16, 6144
v_add_u32 v44, s16, v44
s_nop 7
s_cmp_lt_u32 s{S_WAVE}, 2
s_cbranch_scc1 .LA_skipw
""")
    for i in range(6): A(f"ds_write_b128 v44, {vr(KV+4*i,4)} offset:{i*1024}")
    A.label(".LA_skipw")
    A("s_waitcnt lgkmcnt(0)\ns_barrier")
    A(f"s_cmp_ge_u32 s{S_WAVE}, 2\ns_cbranch_scc1 .LA_skipr")
    for i in range(6): A(f"ds_read_b128 {ar(4*i,4)}, v44 offset:{i*1024}")
    A("s_waitcnt lgkmcnt(0)")
    for i in range(24):
        A(f"v_accvgpr_read_b32 v{46 + (i%2)}, a{i}")
        A(f"v_add_f32 v{KV+i}, v{KV+i}, v{46 + (i%2)}")
    A(f"""s_lshl_b32 s16, s{S_HP}, 1
s_and_b32 s17, s{S_WAVE}, 1
s_add_u32 s16, s16, s17              ; head
s_lshl_b32 s17, s{S_MB}, 5
s_add_u32 s16, s16, s17
s_lshl_b32 s16, s16, 13
s_add_u32 s16, s16, {PART}
v_lshlrev_b32 v45, 4, v0
""")
    for i in range(4): A(f"buffer_store_dwordx4 {vr(KV+4*i,4)}, v45, s[{S_O}:{S_O+3}], s16 offen offset:{i*1024} sc1")
    A(f"""v_lshrrev_b32 v46, 4, v0
v_lshlrev_b32 v46, 4, v46
v_and_b32 v47, 15, v0
v_cmp_eq_u32 vcc, 0, v47
s_add_u32 s16, s16, 4096
s_and_saveexec_b64 s[20:21], vcc
buffer_store_dwordx4 {vr(Z,4)}, v46, s[{S_O}:{S_O+3}], s16 offen sc1
buffer_store_dwordx4 {vr(Z+4,4)}, v46, s[{S_O}:{S_O+3}], s16 offen offset:64 sc1
s_mov_b64 exec, s[20:21]
""")
    A.label(".LA_skipr")
    for a in range(8):
        t0 = acc(a, 0); t1 = acc(a, 1)
        for op in phi_ops([t0, t0+1, t0+2, t0+3, t1, t1+1, t1+2, t1+3], TMP): A(op)
        A(f"v_cvt_pk_bf16_f32 v{t0}, v{t0}, v{t0+1}")
        A(f"v_cvt_pk_bf16_f32 v{t0+1}, v{t0+2}, v{t0+3}")
        A(f"v_cvt_pk_bf16_f32 v{t0+2}, v{t1}, v{t1+1}")
        A(f"v_cvt_pk_bf16_f32 v{t0+3}, v{t1+2}, v{t1+3}")
    stamp(3)
    A("s_waitcnt vmcnt(0)\ns_barrier")
    A(f"s_lshl_b32 s20, s{S_HP}, 2\ns_add_u32 s20, s20, 128\ns_mov_b32 s21, 1")
    signal(A, "A", 20, 21)
    poll(A, "A", 20, "s_cmp_ge_u32 s16, 8")
    A("s_barrier")
    A(f"""s_lshl_b32 s16, s{S_HP}, 1
s_and_b32 s17, s{S_WAVE}, 1
s_add_u32 s16, s16, s17              ; head
s_lshr_b32 s17, s{S_WAVE}, 1
s_lshl_b32 s17, s17, 7               ; 4wm*32
s_add_u32 s16, s16, s17
s_lshl_b32 s16, s16, 13
s_add_u32 s16, s16, {PART}
v_lshlrev_b32 v45, 4, v0
v_lshrrev_b32 v46, 4, v0
v_lshlrev_b32 v46, 4, v46
v_add_u32 v46, 4096, v46
""")
    for i in range(4):
        for q in range(4): A(f"buffer_load_dwordx4 {ar(i*24 + 4*q, 4)}, v45, s[{S_O}:{S_O+3}], s16 offen offset:{q*1024} sc1")
        for b in range(2): A(f"buffer_load_dwordx4 {ar(i*24 + 16 + 4*b, 4)}, v46, s[{S_O}:{S_O+3}], s16 offen offset:{b*64} sc1")
        if i < 3: A(f"s_add_u32 s16, s16, {32*8192}")
    A("s_waitcnt vmcnt(0)")
    for r in range(24):
        A(f"v_accvgpr_read_b32 v{KV+r}, a{r}")
        A(f"v_accvgpr_read_b32 v46, a{24+r}")
        A(f"v_accvgpr_read_b32 v47, a{48+r}")
        A(f"v_accvgpr_read_b32 v48, a{72+r}")
        A(f"v_add_f32 v{KV+r}, v{KV+r}, v46")
        A(f"v_add_f32 v47, v47, v48")
        A(f"v_add_f32 v{KV+r}, v{KV+r}, v47")
    A(f"""v_lshlrev_b32 v44, 4, v0
s_mul_i32 s16, s{S_WAVE}, 6144
v_add_u32 v45, s16, v44
s_xor_b32 s17, s{S_WAVE}, 2
s_mul_i32 s16, s17, 6144
v_add_u32 v44, s16, v44
""")
    for i in range(6): A(f"ds_write_b128 v45, {vr(KV+4*i,4)} offset:{16384 + i*1024}")
    A("s_waitcnt lgkmcnt(0)\ns_barrier")
    for i in range(6): A(f"ds_read_b128 {ar(4*i,4)}, v44 offset:{16384 + i*1024}")
    A("s_waitcnt lgkmcnt(0)")
    for i in range(24):
        A(f"v_accvgpr_read_b32 v{46 + (i%2)}, a{i}")
        A(f"v_add_f32 v{KV+i}, v{KV+i}, v{46 + (i%2)}")
    for bp in range(2):
        for b in range(2):
            s = KV + (b*2+bp)*4; d = 48 + 4*bp + 2*b
            A(f"v_cvt_pk_bf16_f32 v{d}, v{s}, v{s+1}")
            A(f"v_cvt_pk_bf16_f32 v{d+1}, v{s+2}, v{s+3}")
    for b in range(2):
        s = Z + 4*b; d = 56 + 2*b
        A(f"v_cvt_pk_bf16_f32 v{d}, v{s}, v{s+1}")
        A(f"v_cvt_pk_bf16_f32 v{d+1}, v{s+2}, v{s+3}")
    A("s_nop 1")
    for a in range(8):
        pq = vr(acc(a, 0), 4)
        A(f"v_mfma_f32_16x16x32_bf16 {vr(acc(a,2),4)}, v[48:51], {pq}, 0")
        A(f"v_mfma_f32_16x16x32_bf16 {vr(acc(a,3),4)}, v[52:55], {pq}, 0")
        A(f"v_mfma_f32_16x16x32_bf16 {vr(acc(a,4),4)}, v[56:59], {pq}, 0")
    A(f"""s_lshl_b32 s16, s{S_MB}, 4
s_lshr_b32 s17, s{S_WAVE}, 1
s_lshl_b32 s17, s17, 3
s_add_u32 s16, s16, s17
s_lshl_b32 s16, s16, 5
s_lshl_b32 s17, s{S_HP}, 1
s_add_u32 s16, s16, s17
s_and_b32 s17, s{S_WAVE}, 1
s_add_u32 s16, s16, s17
s_lshl_b32 s16, s16, 10
s_add_u32 s16, s16, {O_IMG}
v_lshlrev_b32 v45, 4, v0
""")
    for a in range(8):
        n0 = acc(a, 2); n1 = acc(a, 3); de = acc(a, 4); o = acc(a, 5)
        A(f"v_add_f32 v{de+1}, {EPS}, v{de}")
        A(f"v_rcp_f32 v{de+1}, v{de+1}")
        A("s_nop 0")
        for r in range(4): A(f"v_mul_f32 v{n0+r}, v{n0+r}, v{de+1}")
        for r in range(4): A(f"v_mul_f32 v{n1+r}, v{n1+r}, v{de+1}")
        A(f"v_cvt_pk_bf16_f32 v{o}, v{n0}, v{n0+1}")
        A(f"v_cvt_pk_bf16_f32 v{o+1}, v{n0+2}, v{n0+3}")
        A(f"v_cvt_pk_bf16_f32 v{o+2}, v{n1}, v{n1+1}")
        A(f"v_cvt_pk_bf16_f32 v{o+3}, v{n1+2}, v{n1+3}")
        A(f"buffer_store_dwordx4 {vr(o,4)}, v45, s[{S_O}:{S_O+3}], s16 offen sc1")
        if a < 7: A(f"s_add_u32 s16, s16, 32768")
    stamp(4)

def phase2_B(A, OPT, stamp):
    from k1b_gen import gen_B
    gen_B(A, OPT, stamp)
```

```python
from asmgen import *
import k1_gen as K
from k1_gen import *

KBASE, VBASE, QBASE = 0, 65536, 131072
V_KW, V_VW, V_HL = 2, 3, 4
V_KR, V_VR = 5, 6
V_OS = 7
V_QW = 8
PM = 16
CMA, CMB = 32, 48
SA = [64, 80]; SB = 96
PB = [112, 120]
O_ = lambda i: 128 + 16*i
L_ = lambda i: 64 + 16*i
FT = 200
QF = lambda i, t: 128 + 8*i + 4*t
KF = [160, 168]; KF2 = 176
VF = [184, 192]; VF2 = 200
ONES = 208
HS = 0

def gen_B(A, OPT, stamp):
    PXr = 24
    PYr = 192
    A(f"""; ---- B phase2 setup
v_and_b32 v20, 15, v0               ; r / c16
v_lshrrev_b32 v21, 4, v0            ; g
s_and_b32 s16, s{S_WAVE}, 1         ; wn
s_lshr_b32 s17, s{S_WAVE}, 1
s_lshl_b32 s18, s16, 15
s_lshl_b32 s19, s17, 13
s_add_u32 s18, s18, s19
s_add_u32 s18, s18, 16384
v_lshrrev_b32 v22, 1, v21
v_lshlrev_b32 v22, 9, v22
v_lshlrev_b32 v23, 4, v20
v_add_u32 v22, v22, v23
v_and_b32 v24, 1, v21
v_lshlrev_b32 v24, 3, v24
v_add_u32 v22, v22, v24
v_add_u32 v{V_KW}, s18, v22
s_lshl_b32 s20, s16, 14
s_add_u32 s20, s20, s19
s_add_u32 s20, s20, {QBASE}
v_add_u32 v{V_QW}, s20, v22
v_and_b32 v22, 1, v21
v_lshlrev_b32 v22, 9, v22
v_add_u32 v22, v22, v23
v_lshrrev_b32 v24, 1, v21
v_lshlrev_b32 v24, 3, v24
v_add_u32 v22, v22, v24
s_add_u32 s18, s18, {VBASE}
v_add_u32 v{V_VW}, s18, v22
v_lshlrev_b32 v{V_HL}, 4, v0
s_lshl_b32 s18, s16, 15
s_lshl_b32 s19, s17, 11
s_add_u32 s18, s18, s19
v_add_u32 v{V_KR}, s18, v{V_HL}
v_add_u32 v{V_VR}, {VBASE}, v{V_KR}
s_lshl_b32 s20, s{S_MB}, 4
s_add_u32 s20, s20, s{S_HP}
s_lshl_b32 s20, s20, 2
s_add_u32 s20, s20, s{S_WAVE}
s_lshl_b32 s20, s20, 14
s_add_u32 s20, s20, {HALO}
s_mov_b32 s22, {QSCALE}
s_mov_b32 s23, {QSCALE}
""")
    for a in range(8):
        t0 = acc(a, 2); t1 = acc(a, 3)
        A(f"v_cvt_pk_bf16_f32 v{t0}, v{t0}, v{t0+1}\nv_cvt_pk_bf16_f32 v{t0+1}, v{t0+2}, v{t0+3}")
        A(f"v_cvt_pk_bf16_f32 v{t0+2}, v{t1}, v{t1+1}\nv_cvt_pk_bf16_f32 v{t0+3}, v{t1+2}, v{t1+3}")
        t0 = acc(a, 4); t1 = acc(a, 5)
        A(f"v_cvt_pk_bf16_f32 v{t0}, v{t0}, v{t0+1}\nv_cvt_pk_bf16_f32 v{t0+1}, v{t0+2}, v{t0+3}")
        A(f"v_cvt_pk_bf16_f32 v{t0+2}, v{t1}, v{t1+1}\nv_cvt_pk_bf16_f32 v{t0+3}, v{t1+2}, v{t1+3}")
    A(f"s_cmp_eq_u32 s{S_MB}, 7\ns_cbranch_scc1 .LB_nohalo")
    for k in range(16):
        t0 = acc(k % 8, 2 if k < 8 else 4)
        A(f"s_add_u32 s21, s20, {(k//4)*4096}")
        A(f"buffer_store_dwordx4 {vr(t0,4)}, v{V_HL}, s[{S_O}:{S_O+3}], s21 offen offset:{(k%4)*1024} sc1")
    A.label(".LB_nohalo")
    def kq_off(a, b): return (a >> 1)*2048 + b*1024 + (a & 1)*256
    def v_off(a, b): return (a >> 1)*2048 + (a & 1)*1024 + b*256
    for a in range(8):
        t0 = acc(a, 2)
        for b in range(2): A(f"ds_write_b64 v{V_KW}, {vr(t0+2*b,2)} offset:{kq_off(a,b)}")
        t0 = acc(a, 4)
        for b in range(2): A(f"ds_write_b64 v{V_VW}, {vr(t0+2*b,2)} offset:{v_off(a,b)}")
    for a in range(8):
        t0 = acc(a, 0); t1 = acc(a, 1)
        for t in (t0, t0+2, t1, t1+2): A(f"v_pk_mul_f32 v[{t}:{t+1}], v[{t}:{t+1}], s[22:23]")
        A(f"v_cvt_pk_bf16_f32 v{t0}, v{t0}, v{t0+1}\nv_cvt_pk_bf16_f32 v{t0+1}, v{t0+2}, v{t0+3}")
        A(f"v_cvt_pk_bf16_f32 v{t0+2}, v{t1}, v{t1+1}\nv_cvt_pk_bf16_f32 v{t0+3}, v{t1+2}, v{t1+3}")
        for b in range(2): A(f"ds_write_b64 v{V_QW}, {vr(t0+2*b,2)} offset:{kq_off(a,b)}")
    A(f"""s_cmp_lg_u32 s{S_MB}, 0
s_cbranch_scc1 .LB_nozero
s_and_b32 s16, s{S_WAVE}, 1
s_lshl_b32 s16, s16, 15
s_lshr_b32 s17, s{S_WAVE}, 1
s_lshl_b32 s17, s17, 16
s_add_u32 s16, s16, s17
v_add_u32 v20, s16, v{V_HL}
v_mov_b32 v24, 0
v_mov_b32 v25, 0
v_mov_b32 v26, 0
v_mov_b32 v27, 0
""")
    for k in range(16): A(f"ds_write_b128 v20, v[24:27] offset:{k*1024}")
    A.label(".LB_nozero")
    A(f"""v_and_b32 v10, 31, v0               ; q
v_lshrrev_b32 v11, 5, v0
v_lshlrev_b32 v11, 2, v11           ; 4h
""")
    for rho in range(16):
        key = 8*(rho//4) + rho % 4
        A(f"v_add_u32 v12, {key}, v11")
        A(f"v_cmp_le_u32 s[{S_MASK+2*rho}:{S_MASK+2*rho+1}], v12, v10")
    A("v_mov_b32 v12, 0xffff\nv_mov_b32 v13, 0xffff0000\nv_mov_b32 v14, 0")
    for k in range(8):
        A(f"v_cndmask_b32 v15, v14, v12, s[{S_MASK+4*k}:{S_MASK+4*k+1}]")
        A(f"v_cndmask_b32 v1, v14, v13, s[{S_MASK+4*k+2}:{S_MASK+4*k+3}]")
        A(f"v_or_b32 v{PM+k}, v15, v1")
    A(f"""s_cmp_eq_u32 s{S_MB}, 0
s_cselect_b32 s16, {NEGBIG}, 0
s_cmp_lt_u32 s{S_WAVE}, 2
s_cselect_b32 s17, s16, 0
""")
    for r in range(16):
        A(f"v_mov_b32 v{CMA+r}, s17")
        A(f"v_mov_b32 v{CMB+r}, s16")
    A("v_mov_b32 v12, 0x3f803f80")
    for r in range(4): A(f"v_accvgpr_write_b32 a{ONES+r}, v12")
    A(f"""v_bfe_u32 v12, v0, 4, 1
v_lshlrev_b32 v12, 15, v12
v_lshrrev_b32 v13, 5, v0
v_lshlrev_b32 v13, 8, v13
v_add_u32 v12, v12, v13
v_and_b32 v13, 15, v0
v_lshlrev_b32 v13, 4, v13
v_add_u32 v{V_OS}, v12, v13
s_lshl_b32 s16, s{S_MB}, 3
s_lshr_b32 s17, s{S_WAVE}, 1
s_add_u32 s16, s16, s17
s_lshl_b32 s16, s16, 16
s_lshl_b32 s17, s{S_HP}, 1
s_and_b32 s18, s{S_WAVE}, 1
s_add_u32 s17, s17, s18
s_lshl_b32 s17, s17, 10
s_add_u32 s16, s16, s17
s_add_u32 s97, s16, {O_IMG + 0x400000}
s_mov_b32 s{S_FB}, 0
s_mov_b32 s98, 0x33800000
s_mov_b32 s99, 0x53800000
s_waitcnt lgkmcnt(0)
s_barrier
""")
    A(f"""s_and_b32 s16, s{S_WAVE}, 1
s_lshl_b32 s16, s16, 14
s_lshr_b32 s17, s{S_WAVE}, 1
s_lshl_b32 s17, s17, 11
s_add_u32 s16, s16, s17
s_add_u32 s16, s16, {QBASE}
v_add_u32 v9, s16, v{V_HL}
""")
    for i in range(4):
        for t in range(2): A(f"ds_read_b128 {ar(QF(i,t),4)}, v9 offset:{i*4096 + t*1024}")
    A("s_waitcnt lgkmcnt(0)")
    stamp(3)

    def mkjobs(pas):
        jobs = []
        for i in range(4):
            if pas == 1:
                for d in range(1, 2*i+1): jobs.append(dict(slot=i, kind="full", bk=8+2*i-d, cm=None))
            else:
                for d in range(2*i+1, 8): jobs.append(dict(slot=i, kind="full", bk=8+2*i-d, cm=(CMA if d == 2*i+1 else CMB)))
                jobs.append(dict(slot=i, kind="merged", bk=8+2*i, bk2=2*i, cm=None))
        return jobs
    touched = set()
    def run_pipeline(jobs, hooks, final):
        trk = LgkmTracker()
        N = len(jobs)
        def loadK(n):
            j = jobs[n]; r = []
            for t in range(2): r.append((("K", n, t), f"ds_read_b128 {ar(KF[n%2]+4*t,4)}, v{V_KR} offset:{j['bk']*2048 + t*1024}"))
            if j["kind"] == "merged":
                for t in range(2): r.append((("K2", n, t), f"ds_read_b128 {ar(KF2+4*t,4)}, v{V_KR} offset:{j['bk2']*2048 + t*1024}"))
            return r
        def loadV(n):
            j = jobs[n]; r = []
            for t in range(2): r.append((("V", n, t), f"ds_read_b128 {ar(VF[n%2]+4*t,4)}, v{V_VR} offset:{j['bk']*2048 + t*1024}"))
            if j["kind"] == "merged":
                for t in range(2): r.append((("V2", n, t), f"ds_read_b128 {ar(VF2+4*t,4)}, v{V_VR} offset:{j['bk2']*2048 + t*1024}"))
            return r
        def partA(n):
            j = jobs[n]; i = j["slot"]; S = SA[n % 2]; m = []
            c0 = "0" if j["cm"] is None else vr(j["cm"], 16)
            m.append(([("K", n, 0)], f"v_mfma_f32_32x32x16_bf16 {vr(S,16)}, {ar(KF[n%2],4)}, {ar(QF(i,0),4)}, {c0}"))
            m.append(([("K", n, 1)], f"v_mfma_f32_32x32x16_bf16 {vr(S,16)}, {ar(KF[n%2]+4,4)}, {ar(QF(i,1),4)}, {vr(S,16)}"))
            if j["kind"] == "merged":
                m.append(([("K2", n, 0)], f"v_mfma_f32_32x32x16_bf16 {vr(SB,16)}, {ar(KF2,4)}, {ar(QF(i,0),4)}, {vr(CMB,16)}"))
                m.append(([("K2", n, 1)], f"v_mfma_f32_32x32x16_bf16 {vr(SB,16)}, {ar(KF2+4,4)}, {ar(QF(i,1),4)}, {vr(SB,16)}"))
            return m
        def partV(n):
            j = jobs[n]; S = SA[n % 2]; P = PB[n % 2]; v = []
            if j["kind"] == "merged":
                v.append((8, "s_nop 1"))
                for r in range(16): v.append((4, f"v_cndmask_b32 v{S+r}, v{SB+r}, v{S+r}, s[{S_MASK+2*r}:{S_MASK+2*r+1}]"))
            seq = []
            for r in range(16):
                v.append((8, f"v_exp_f32 v{S+r}, v{S+r}"))
                if r >= 2 and r % 2 == 0: v.append((4, f"v_cvt_pk_bf16_f32 v{P+(r-2)//2}, v{S+r-2}, v{S+r-1}"))
            v.append((4, f"s_nop 0"))
            v.append((4, f"v_cvt_pk_bf16_f32 v{P+7}, v{S+14}, v{S+15}"))
            if j["kind"] == "merged":
                for k in range(8):
                    v.append((4, f"v_and_b32 v{PXr+k}, v{PM+k}, v{P+k}"))
                    v.append((4, f"v_bfi_b32 v{PYr+k}, v{PM+k}, 0, v{P+k}"))
            return v
        def partB(n):
            j = jobs[n]; i = j["slot"]; P = PB[n % 2]; m = []
            first = i not in touched
            touched.add(i)
            O = vr(O_(i), 16); L = ar(L_(i), 16)
            if j["kind"] == "full":
                m.append(([("V", n, 0)], f"v_mfma_f32_32x32x16_bf16 {O}, {ar(VF[n%2],4)}, {vr(P,4)}, {'0' if first else O}"))
                m.append(([], f"v_mfma_f32_32x32x16_bf16 {L}, {ar(ONES,4)}, {vr(P,4)}, {'0' if first else L}"))
                m.append(([("V", n, 1)], f"v_mfma_f32_32x32x16_bf16 {O}, {ar(VF[n%2]+4,4)}, {vr(P+4,4)}, {O}"))
                m.append(([], f"v_mfma_f32_32x32x16_bf16 {L}, {ar(ONES,4)}, {vr(P+4,4)}, {L}"))
            else:
                m.append(([("V", n, 0)], f"v_mfma_f32_32x32x16_bf16 {O}, {ar(VF[n%2],4)}, {vr(PXr,4)}, {'0' if first else O}"))
                m.append(([], f"v_mfma_f32_32x32x16_bf16 {L}, {ar(ONES,4)}, {vr(P,4)}, {'0' if first else L}"))
                m.append(([("V", n, 1)], f"v_mfma_f32_32x32x16_bf16 {O}, {ar(VF[n%2]+4,4)}, {vr(PXr+4,4)}, {O}"))
                m.append(([], f"v_mfma_f32_32x32x16_bf16 {L}, {ar(ONES,4)}, {vr(P+4,4)}, {L}"))
                m.append(([("V2", n, 0)], f"v_mfma_f32_32x32x16_bf16 {O}, {ar(VF2,4)}, {vr(PYr,4)}, {O}"))
                m.append(([("V2", n, 1)], f"v_mfma_f32_32x32x16_bf16 {O}, {ar(VF2+4,4)}, {vr(PYr+4,4)}, {O}"))
            return m
        def emit_iter(mf, va, lds):
            total = sum(c for c, _ in va)
            m = len(mf)
            vi = 0; cum = 0
            ldsq = list(lds)
            if m == 0:
                for tag, ins in ldsq:
                    A(ins); trk.issue(tag)
                if va: A("s_nop 7\ns_nop 3")
                for c, ins in va: A(ins)
                return
            for k, (tags, ins) in enumerate(mf):
                need = trk.need(tags) if tags else None
                if need is not None: A(f"s_waitcnt lgkmcnt({need})")
                A(ins)
                nl = (len(ldsq) + (m - k) - 1)//(m - k) if ldsq else 0
                for _ in range(min(nl, len(ldsq))):
                    tag, li = ldsq.pop(0); A(li); trk.issue(tag)
                target = total*(k+1)/m
                while vi < len(va) and (cum < target - 2 or k == m-1):
                    A(va[vi][1]); cum += va[vi][0]; vi += 1
        pendfin = []
        for n in range(-2, N+2):
            mfA = partA(n+1) if 0 <= n+1 < N else []
            mfB = partB(n-1) if 0 <= n-1 < N else []
            mf = []
            ia = ib = 0
            while ia < len(mfA) or ib < len(mfB):
                if ia < len(mfA): mf.append(mfA[ia]); ia += 1
                if ib < len(mfB): mf.append(mfB[ib]); ib += 1
                if ib < len(mfB) and ia >= len(mfA):
                    pass
            va = partV(n) if 0 <= n < N else []
            if pendfin and pendfin[0][0] <= n:
                va = va + pendfin.pop(0)[1]
            lds = []
            if 0 <= n+2 < N: lds += loadK(n+2)
            if 0 <= n < N: lds += loadV(n)
            if n == 0 or (n == -1): pass
            if va and n == 0: A("s_nop 7\ns_nop 3")
            emit_iter(mf, va, lds)
            if 0 <= n-1 < N and final and jobs[n-1]["kind"] == "merged":
                pendfin.append((n+1, fin_ops(jobs[n-1]["slot"])))
            for h in hooks.get(n, []): h()
        while pendfin:
            A("s_nop 7\ns_nop 3")
            for c, ins in pendfin.pop(0)[1]: A(ins)
    def fin_ops(i):
        O = O_(i); L = FT; v = []
        v.append((4, f"v_accvgpr_read_b32 v{L}, a{L_(i)}"))
        v.append((4, f"v_mov_b32 v{L+3}, 0x7f7fffff"))
        v.append((4, f"v_cmp_nle_f32 vcc, s98, v{L}"))
        v.append((8, f"v_rcp_f32 v{L+1}, v{L}"))
        v.append((4, f"v_cmp_nge_f32 s[20:21], s99, v{L}"))
        v.append((4, f"s_or_b64 s[100:101], s[20:21], vcc"))
        for r in range(16): v.append((4, f"v_mul_f32 v{O+r}, v{O+r}, v{L+1}"))
        v.append((4, f"v_max3_f32 v{L+2}, abs(v{O}), abs(v{O+1}), abs(v{O+2})"))
        for r in range(3, 15, 2): v.append((4, f"v_max3_f32 v{L+2}, v{L+2}, abs(v{O+r}), abs(v{O+r+1})"))
        v.append((4, f"v_max_f32 v{L+2}, v{L+2}, abs(v{O+15})"))
        for p in range(2):
            for q, a in enumerate((p, p+2)):
                v.append((4, f"v_cvt_pk_bf16_f32 v{L+4+4*p+2*q}, v{O+4*a}, v{O+4*a+1}"))
                v.append((4, f"v_cvt_pk_bf16_f32 v{L+4+4*p+2*q+1}, v{O+4*a+2}, v{O+4*a+3}"))
        v.append((4, f"v_cmp_nle_f32 vcc, v{L+2}, v{L+3}"))
        v.append((4, f"s_add_u32 s21, s97, {i*131072}"))
        v.append((4, f"s_or_b64 s[100:101], s[100:101], vcc"))
        v.append((4, f"buffer_store_dwordx4 {vr(L+4,4)}, v{V_OS}, s[{S_O}:{S_O+3}], s21 offen sc1"))
        v.append((4, f"buffer_store_dwordx4 {vr(L+8,4)}, v{V_OS}, s[{S_O}:{S_O+3}], s21 offen offset:512 sc1"))
        v.append((4, f"s_cmp_lg_u64 s[100:101], 0"))
        v.append((4, f"s_cselect_b32 s{S_FB}, 1, s{S_FB}"))
        return v

    def hook_signal():
        A("s_waitcnt vmcnt(0)\ns_barrier")
        A(f"s_cmp_eq_u32 s{S_MB}, 7\ns_cbranch_scc1 .LB_nosig")
        A(f"s_lshl_b32 s20, s{S_HP}, 2\ns_lshl_b32 s21, 1, s{S_MB}")
        signal(A, "B", 20, 21, 10)
        A.label(".LB_nosig")
    run_pipeline(mkjobs(1), {3: [hook_signal]}, False)
    A(f"s_cmp_eq_u32 s{S_MB}, 0\ns_cbranch_scc1 .LB_nopoll")
    A(f"s_lshl_b32 s20, s{S_HP}, 2\ns_sub_u32 s22, s{S_MB}, 1")
    poll(A, "B", 20, "s_bitcmp1_b32 s16, s22", 10)
    A.label(".LB_nopoll")
    A("s_barrier")
    A(f"s_cmp_eq_u32 s{S_MB}, 0\ns_cbranch_scc1 .LB_noload")
    A(f"""s_sub_u32 s20, s{S_MB}, 1
s_lshl_b32 s20, s20, 4
s_add_u32 s20, s20, s{S_HP}
s_lshl_b32 s20, s20, 2
s_add_u32 s20, s20, s{S_WAVE}
s_lshl_b32 s20, s20, 14
s_add_u32 s20, s20, {HALO}
""")
    for k in range(16):
        A(f"s_add_u32 s21, s20, {(k//4)*4096}")
        A(f"buffer_load_dwordx4 {ar(HS+4*k,4)}, v{V_HL}, s[{S_O}:{S_O+3}], s21 offen offset:{(k%4)*1024} sc1")
    A(f"v_subrev_u32 v12, 16384, v{V_KW}\nv_subrev_u32 v13, 16384, v{V_VW}")
    for k in range(16):
        A(f"s_waitcnt vmcnt({15-k})")
        a = k % 8
        for b in range(2):
            if k < 8: A(f"ds_write_b64 v12, {ar(HS+4*k+2*b,2)} offset:{kq_off(a,b)}")
            else: A(f"ds_write_b64 v13, {ar(HS+4*k+2*b,2)} offset:{v_off(a,b)}")
    A.label(".LB_noload")
    A("s_waitcnt lgkmcnt(0)\ns_barrier")
    stamp(4)
    run_pipeline(mkjobs(2), {}, True)
    A(f"s_cmp_eq_u32 s{S_FB}, 0\ns_cbranch_scc1 .LB_end")
    gen_fallback(A)
    A.label(".LB_end")

def gen_fallback(A):
    S = 64; O = 128; L = 208; P = 112
    A(f"""s_waitcnt vmcnt(0)
s_mov_b32 s16, 0                     ; slot
v_and_b32 v20, 31, v0                ; q
v_lshrrev_b32 v21, 5, v0
v_lshlrev_b32 v21, 2, v21            ; 4h
.LFB_slot:
s_lshr_b32 s17, s{S_WAVE}, 1
s_lshl_b32 s18, s16, 1
s_add_u32 s17, s17, s18              ; qt
s_lshl_b32 s18, s16, 12
v_add_u32 v22, s18, v9
ds_read_b128 a[128:131], v22
ds_read_b128 a[132:135], v22 offset:1024
s_lshl_b32 s18, s17, 5
s_add_u32 s18, s18, 256
v_add_u32 v23, s18, v20              ; qp
v_mov_b32 v24, {NEGBIG}
s_mov_b32 s19, 0                     ; pass
.LFB_pass:
s_mov_b32 s18, 0                     ; delta 0..8
.LFB_blk:
s_add_u32 s20, s17, 8
s_sub_u32 s20, s20, s18
s_cmp_lg_u32 s{S_MB}, 0
s_cbranch_scc1 .LFB_ok
s_cmp_lt_u32 s20, 8
s_cbranch_scc1 .LFB_next
.LFB_ok:
s_lshr_b32 s21, s{S_WAVE}, 1
s_sub_u32 s21, s20, s21
s_lshl_b32 s21, s21, 11
v_add_u32 v25, s21, v{V_KR}
v_add_u32 v26, s21, v{V_VR}
ds_read_b128 a[160:163], v25
ds_read_b128 a[164:167], v25 offset:1024
ds_read_b128 a[184:187], v26
ds_read_b128 a[188:191], v26 offset:1024
s_waitcnt lgkmcnt(0)
v_mfma_f32_32x32x16_bf16 {vr(S,16)}, a[160:163], a[128:131], 0
v_mfma_f32_32x32x16_bf16 {vr(S,16)}, a[164:167], a[132:135], {vr(S,16)}
s_lshl_b32 s21, s20, 5
v_add_u32 v27, s21, v21
v_sub_u32 v27, v23, v27
s_nop 7
s_nop 3
""")
    for r in range(16):
        key = 8*(r//4) + r % 4
        A(f"v_subrev_u32 v28, {key}, v27")
        A(f"v_cmp_gt_u32 vcc, 0x100, v28")
        A(f"v_mov_b32 v29, {NEGBIG}")
        A("s_nop 0")
        A(f"v_cndmask_b32 v{S+r}, v29, v{S+r}, vcc")
    A("s_cmp_eq_u32 s19, 1\ns_cbranch_scc1 .LFB_p2")
    for r in range(16): A(f"v_max_f32 v24, v24, v{S+r}")
    A("s_branch .LFB_next")
    A.label(".LFB_p2")
    for r in range(16):
        A(f"v_sub_f32 v{S+r}, v{S+r}, v24")
    for r in range(16): A(f"v_exp_f32 v{S+r}, v{S+r}")
    A("s_nop 0")
    for k in range(8): A(f"v_cvt_pk_bf16_f32 v{P+k}, v{S+2*k}, v{S+2*k+1}")
    A("s_nop 1")
    A(f"v_mfma_f32_32x32x16_bf16 {vr(O,16)}, a[184:187], {vr(P,4)}, {vr(O,16)}")
    A(f"v_mfma_f32_32x32x16_bf16 {vr(L,16)}, {ar(ONES,4)}, {vr(P,4)}, {vr(L,16)}")
    A(f"v_mfma_f32_32x32x16_bf16 {vr(O,16)}, a[188:191], {vr(P+4,4)}, {vr(O,16)}")
    A(f"v_mfma_f32_32x32x16_bf16 {vr(L,16)}, {ar(ONES,4)}, {vr(P+4,4)}, {vr(L,16)}")
    A("s_nop 7\ns_nop 7")
    A.label(".LFB_next")
    A("s_add_u32 s18, s18, 1\ns_cmp_le_u32 s18, 8\ns_cbranch_scc1 .LFB_blk")
    A("s_cmp_eq_u32 s19, 1\ns_cbranch_scc1 .LFB_fin")
    A("v_mov_b32 v25, v24\ns_nop 1\nv_permlane32_swap_b32 v24, v25\ns_nop 1\nv_max_f32 v24, v24, v25")
    for r in range(16): A(f"v_mov_b32 v{O+r}, 0\nv_mov_b32 v{L+r}, 0")
    A("s_mov_b32 s19, 1\ns_branch .LFB_pass")
    A.label(".LFB_fin")
    A(f"v_rcp_f32 v{L+1}, v{L}\ns_nop 0")
    for r in range(16): A(f"v_mul_f32 v{O+r}, v{O+r}, v{L+1}")
    for p in range(2):
        for q, a in enumerate((p, p+2)):
            A(f"v_cvt_pk_bf16_f32 v{L+4+4*p+2*q}, v{O+4*a}, v{O+4*a+1}")
            A(f"v_cvt_pk_bf16_f32 v{L+4+4*p+2*q+1}, v{O+4*a+2}, v{O+4*a+3}")
    A(f"""s_lshl_b32 s21, s16, 17
s_add_u32 s21, s21, s97
buffer_store_dwordx4 {vr(L+4,4)}, v{V_OS}, s[{S_O}:{S_O+3}], s21 offen sc1
buffer_store_dwordx4 {vr(L+8,4)}, v{V_OS}, s[{S_O}:{S_O+3}], s21 offen offset:512 sc1
s_add_u32 s16, s16, 1
s_cmp_lt_u32 s16, 4
s_cbranch_scc1 .LFB_slot
""")
```

```python
from asmgen import *
O_IMG = 0x2000000

def gen_k3(A, OPT, name="k3_kernel", stamps=False):
    NSLOT = 4
    SLOT = 32768
    ACC = 64
    def acc(a, c): return ACC + (a*4 + c)*4
    FX = [0, 32]; FW = [16, 48]
    V_O, V_WA, V_WB, V_RX, V_RW = 2, 3, 4, 5, 6
    S_X = 4; S_W = 8; S_OUT = 12
    S_M0 = 40; S_CNT = 41; S_WAVE = 42; S_BR = 43; S_RT = 44; S_CT = 45
    S_XC = 24
    S_WC = 28
    S_T0 = 48
    def dma_list(slot):
        g = []
        for i in range(4):
            pre = [f"s_add_u32 m0, s{S_M0}, {slot*SLOT}"] if i == 0 else []
            so = "0" if i == 0 else f"s{S_XC+i-1}"
            g.append((pre, f"buffer_load_dwordx4 v{V_O}, s[{S_X}:{S_X+3}], {so} offen " + (f"offset:{i*1024} " if i else "") + "lds"))
        for i in range(4):
            pre = [f"s_add_u32 m0, s{S_M0}, {slot*SLOT + 16384}"] if i == 0 else []
            so = "0" if i == 0 else f"s{S_WC+i-1}"
            v = V_WA if i % 2 == 0 else V_WB
            g.append((pre, f"buffer_load_dwordx4 v{v}, s[{S_W}:{S_W+3}], {so} offen " + (f"offset:{i*1024} " if i else "") + "lds"))
        return g
    def advance():
        return [f"s_add_u32 s{S_X}, s{S_X}, 2048", f"s_addc_u32 s{S_X+1}, s{S_X+1}, 0", f"s_sub_u32 s{S_X+2}, s{S_X+2}, 2048",
                f"s_add_u32 s{S_W}, s{S_W}, {64*2048}", f"s_addc_u32 s{S_W+1}, s{S_W+1}, 0", f"s_sub_u32 s{S_W+2}, s{S_W+2}, {64*2048}"]
    def reads(slot, t, fs):
        r = []
        hi = slot >= 2
        so = (slot & 1)*SLOT
        def X(a): return (("X", a, fs), f"ds_read_b128 {ar(FX[fs]+4*a,4)}, v{V_RX + (10 if hi else 0)} offset:{so + a*2048 + t*1024}")
        def W(c, u): return (("W", c, u, fs), f"ds_read_b64_tr_b16 {ar(FW[fs]+4*c+2*u,2)}, v{V_RW + c + (10 if hi else 0)} offset:{so + t*8192 + u*4096}")
        r += [W(0,0), W(0,1), X(0), X(1), X(2), X(3)]
        for c in range(1, 4): r += [W(c,0), W(c,1)]
        return r
    def mfma(a, c, fs):
        d = vr(acc(a,c), 4)
        return f"v_mfma_f32_16x16x32_bf16 {d}, {ar(FW[fs]+4*c,4)}, {ar(FX[fs]+4*a,4)}, {d}"
    def stage(trk, s, dma, last, vm):
        slot = s % NSLOT
        for t in range(2):
            fs = t
            fill = [[] for _ in range(16)]
            if t == 0:
                for g, x in enumerate(reads(slot, 1, 1)): fill[g].append(("lds",) + x)
            else:
                if not last:
                    for g, x in enumerate(reads((slot+1) % NSLOT, 0, 0)): fill[g+1].append(("lds",) + x)
                if dma:
                    dl = dma_list((slot + 3) % NSLOT + 0 if False else (s + NSLOT) % NSLOT)
                    for g, d in enumerate(dl): fill[2*g+1].append(("dma", d))
                    fill[15].append(("raw", advance()))
            n = 0
            for c in range(4):
                for a in range(4):
                    need = trk.need([("X", a, fs), ("W", c, 0, fs), ("W", c, 1, fs)])
                    if t == 1 and n == 0 and not last:
                        A("s_waitcnt lgkmcnt(0)"); trk.all_done()
                    elif need is not None:
                        A(f"s_waitcnt lgkmcnt({need})")
                    A(mfma(a, c, fs))
                    if t == 1 and n == 0 and not last:
                        A(f"s_waitcnt vmcnt({vm})")
                        A("s_barrier")
                    m0w = False; between = 0
                    for f in fill[n]:
                        if f[0] == "dma":
                            for p in f[1][0]:
                                A(p); m0w = True
                    for f in fill[n]:
                        if f[0] == "lds":
                            A(f[2]); between += 1
                            trk.issue(f[1])
                    for f in fill[n]:
                        if f[0] == "dma":
                            if m0w and between == 0: A("s_nop 0")
                            A(f[1][1])
                    for f in fill[n]:
                        if f[0] == "raw":
                            for p in f[1]: A(p)
                    n += 1
    A(f".globl {name}\n.p2align 8\n.type {name},@function\n{name}:")
    if stamps: A(f"s_memrealtime s[{S_T0}:{S_T0+1}]")
    A(f"""s_cmp_ge_u32 s2, 256
s_cbranch_scc1 .L{name}_done
s_and_b32 s16, s2, 7
s_lshr_b32 s17, s2, 3
s_and_b32 s{S_BR}, s16, 1
s_lshr_b32 s16, s16, 1
s_lshl_b32 s16, s16, 2
s_and_b32 s18, s17, 3
s_add_u32 s{S_RT}, s16, s18
s_lshr_b32 s{S_CT}, s17, 2
s_mul_i32 s16, s{S_BR}, 24
s_add_u32 s16, s16, 16
s_load_dwordx2 s[20:21], s[0:1], s16
s_load_dwordx2 s[22:23], s[0:1], 64
s_load_dwordx2 s[{S_OUT}:{S_OUT+1}], s[0:1], 48
v_lshrrev_b32 v1, 6, v0
v_and_b32 v0, 63, v0
v_readfirstlane_b32 s{S_WAVE}, v1
s_mov_b32 s{S_OUT+2}, 0x800000
s_mov_b32 s{S_OUT+3}, 0x20000
""")
    for i in range(1, 4):
        A(f"s_mov_b32 s{S_XC+i-1}, {(i>>1)*32768 + (i&1)*1024 - i*1024}")
        A(f"s_mov_b32 s{S_WC+i-1}, {i*4*2048 - i*1024}")
    A(f"""s_lshl_b32 s{S_M0}, s{S_WAVE}, 12
v_lshlrev_b32 v20, 4, v0
s_lshl_b32 s16, s{S_WAVE}, 16
v_add_u32 v{V_O}, s16, v20
v_lshrrev_b32 v21, 4, v0            ; g = l>>4
v_and_b32 v22, 15, v0
v_lshlrev_b32 v23, 1, v21
v_xor_b32 v23, v22, v23
v_lshlrev_b32 v23, 4, v23
s_lshl_b32 s16, s{S_WAVE}, 4
v_add_u32 v24, s16, v21
v_lshlrev_b32 v24, 11, v24
v_add_u32 v{V_WA}, v24, v23
v_xor_b32 v{V_WB}, 128, v{V_WA}
s_lshr_b32 s16, s{S_WAVE}, 1
s_lshl_b32 s16, s16, 13
v_add_u32 v{V_RX}, s16, v20
v_add_u32 v{V_RX+10}, 0x10000, v{V_RX}
v_bfe_u32 v22, v0, 2, 2             ; r
v_lshlrev_b32 v23, 2, v21           ; 4g
v_add_u32 v23, v23, v22             ; k (0..15)
v_and_b32 v24, 7, v23               ; k&7
v_lshlrev_b32 v23, 8, v23           ; k*256
v_and_b32 v25, 3, v0
v_lshlrev_b32 v25, 3, v25
v_add_u32 v23, v23, v25
v_add_u32 v23, 0x4000, v23
s_and_b32 s16, s{S_WAVE}, 1
s_lshl_b32 s16, s16, 2              ; 4wn
""")
    for c in range(4):
        A(f"s_add_u32 s17, s16, {c}\nv_xor_b32 v25, s17, v24\nv_lshlrev_b32 v25, 5, v25\nv_add_u32 v{V_RW+c}, v23, v25\nv_add_u32 v{V_RW+c+10}, 0x10000, v{V_RW+c}")
    A(f"""s_waitcnt lgkmcnt(0)
s_lshl_b32 s16, s{S_BR}, 22
s_lshl_b32 s17, s{S_RT}, 18
s_add_u32 s16, s16, s17
s_add_u32 s16, s16, {O_IMG}
s_add_u32 s{S_X}, s22, s16
s_addc_u32 s{S_X+1}, s23, 0
s_mov_b32 s{S_X+2}, 0x40000
s_mov_b32 s{S_X+3}, 0x20000
s_lshl_b32 s16, s{S_CT}, 8
s_add_u32 s{S_W}, s20, s16
s_addc_u32 s{S_W+1}, s21, 0
s_sub_u32 s{S_W+2}, 0x200000, s16
s_mov_b32 s{S_W+3}, 0x20000
""")
    for s in range(NSLOT):
        for pre, ins in dma_list(s):
            for p in pre: A(p)
            A("s_nop 0"); A(ins)
        for p in advance(): A(p)
    for r in range(ACC, ACC+64): A(f"v_mov_b32 v{r}, 0")
    A(f"s_waitcnt vmcnt({8*(NSLOT-1)})\ns_barrier")
    if stamps:
        A(f"s_memrealtime s[{S_T0+2}:{S_T0+3}]\ns_memtime s[{S_T0+8}:{S_T0+9}]\ns_waitcnt lgkmcnt(0)")
    trk = LgkmTracker()
    for tag, ins in reads(0, 0, 0):
        A(ins); trk.issue(tag)
    A(f"s_mov_b32 s{S_CNT}, 0")
    A(".p2align 6")
    A.label(f".L{name}_loop")
    for s in range(NSLOT): stage(trk, s, True, False, 8*(NSLOT-2))
    A(f"s_add_u32 s{S_CNT}, s{S_CNT}, 1\ns_cmp_lt_u32 s{S_CNT}, 3\ns_cbranch_scc1 .L{name}_loop")
    stage(trk, 12, False, False, 16)
    stage(trk, 13, False, False, 8)
    stage(trk, 14, False, False, 0)
    stage(trk, 15, False, True, 0)
    if stamps:
        A(f"s_memrealtime s[{S_T0+4}:{S_T0+5}]\ns_memtime s[{S_T0+10}:{S_T0+11}]")
    A("s_nop 7\ns_nop 7")
    A(f"""v_and_b32 v20, 15, v0
s_lshl_b32 s16, s{S_RT}, 7
s_lshr_b32 s17, s{S_WAVE}, 1
s_lshl_b32 s17, s17, 6
s_add_u32 s16, s16, s17
v_add_u32 v20, s16, v20
v_lshlrev_b32 v20, 12, v20
v_lshrrev_b32 v21, 4, v0
v_and_b32 v22, 1, v21
v_lshlrev_b32 v22, 5, v22            ; 16 cols*2B
v_lshrrev_b32 v21, 1, v21
v_lshlrev_b32 v21, 4, v21            ; 8 cols*2B
v_add_u32 v20, v20, v22
v_add_u32 v20, v20, v21
s_lshl_b32 s16, s{S_BR}, 11
s_lshl_b32 s17, s{S_CT}, 8
s_add_u32 s16, s16, s17
s_and_b32 s17, s{S_WAVE}, 1
s_lshl_b32 s17, s17, 7
s_add_u32 s16, s16, s17
v_add_u32 v20, s16, v20
""")
    k = 0
    for a in range(4):
        A(f"s_mov_b32 s17, {a*16*4096}")
        for cp in range(2):
            tmp = 24 + 4*(k % 4); k += 1
            b0 = acc(a, 2*cp); b1 = acc(a, 2*cp+1)
            A(f"v_cvt_pk_bf16_f32 v{tmp}, v{b0}, v{b0+1}")
            A(f"v_cvt_pk_bf16_f32 v{tmp+1}, v{b0+2}, v{b0+3}")
            A(f"v_cvt_pk_bf16_f32 v{tmp+2}, v{b1}, v{b1+1}")
            A(f"v_cvt_pk_bf16_f32 v{tmp+3}, v{b1+2}, v{b1+3}")
            A("s_nop 1")
            A(f"v_permlane16_swap_b32 v{tmp}, v{tmp+2}")
            A(f"v_permlane16_swap_b32 v{tmp+1}, v{tmp+3}")
            A(f"buffer_store_dwordx4 v[{tmp}:{tmp+3}], v20, s[{S_OUT}:{S_OUT+3}], s17 offen offset:{cp*64}")
    if stamps:
        A(f"""s_waitcnt vmcnt(0)
s_memrealtime s[{S_T0+6}:{S_T0+7}]
s_waitcnt lgkmcnt(0)
s_cmp_lg_u32 s{S_WAVE}, 0
s_cbranch_scc1 .L{name}_done
""")
        for q in range(12): A(f"v_mov_b32 v{20+q}, s{S_T0+q}")
        A(f"""s_mov_b32 s{S_OUT}, s22
s_mov_b32 s{S_OUT+1}, s23
s_mov_b32 s{S_OUT+2}, 0x10000000
s_lshl_b32 s16, s2, 6
s_add_u32 s16, s16, 0x8010000
v_mov_b32 v40, s16
v_cmp_eq_u32 vcc, 0, v0
s_and_saveexec_b64 s[18:19], vcc
s_cbranch_execz .L{name}_done
buffer_store_dwordx4 v[20:23], v40, s[{S_OUT}:{S_OUT+3}], 0 offen
buffer_store_dwordx4 v[24:27], v40, s[{S_OUT}:{S_OUT+3}], 0 offen offset:16
buffer_store_dwordx4 v[28:31], v40, s[{S_OUT}:{S_OUT+3}], 0 offen offset:32
""")
    A.label(f".L{name}_done")
    A("s_endpgm")
    return kdesc(name, 192, 128, 64), NSLOT*SLOT

if __name__ == "__main__":
    import sys
    A = Asm()
    B = Asm()
    kd, lds = gen_k3(B, {}, stamps=True)
    A(f"; @launch kernel=k3_kernel grid=(256,1,1) block=(256,1,1) lds={lds}")
    A('.amdgcn_target "amdgcn-amd-amdhsa--gfx950"\n.text')
    A(B.text())
    A('.section .rodata,"a"')
    A(kd)
    open("k3.s", "w").write(A.text())
```

```python
import sys
from asmgen import *
import k1_gen, k3_gen, hazard
OPT = dict(stamps=0, out="full.s")
for a in sys.argv[1:]:
    k, v = a.split("="); OPT[k] = int(v) if v.lstrip('-').isdigit() else v
B1 = Asm(); kd1, lds1 = k1_gen.gen_k1(B1, OPT)
B3 = Asm(); kd3, lds3 = k3_gen.gen_k3(B3, OPT, stamps=bool(OPT["stamps"]))
A = Asm()
A(f"; @launch kernel=k1_kernel grid=(256,1,1) block=(256,1,1) lds={lds1}")
A(f"; @launch kernel=k3_kernel grid=(256,1,1) block=(256,1,1) lds={lds3}")
A('.amdgcn_target "amdgcn-amd-amdhsa--gfx950"\n.text')
A(B1.text()); A(B3.text())
A('.section .rodata,"a"'); A(kd1); A(kd3)
open(OPT["out"], "w").write(A.text())
hazard.check(A.text())
```

```python
from asmgen import *
O_IMG = 0x2000000
HALO  = 0x1000000
PART  = 0x1800000
STAMP = 0x8000000
LOG2E = 0x3fb8aa3b
QSCALE = 0x3e8293ee
EPS = 0x358637bd
NEGBIG = 0xf149f2ca

XSLOT = 32768
WB = 98304
WSL = [WB, WB+24576]
LDS1 = 163840
ACC = 64
def acc(a, c): return ACC + (a*6 + c)*4
FX = [0, 64]; FW = [32, 96]
V_XA, V_XB, V_WA, V_WB = 2, 3, 4, 5
V_RX = [6, 7]; V_RW = 8
V_PX = 10; V_PW = 11; V_DUM = 12
S_X = 4; S_W = 8; S_O = 12
S_XC = 64; S_WC = 80
S_M0X = 40; S_M0W = 41; S_CNT = 42; S_BR = 43; S_MB = 44; S_HP = 45; S_WAVE = 46
S_T0 = 48
S_D = 60
S_MASK = 64
S_FB = 96
S_KX = 37; S_KW = 38; S_XR = 39


def gen_k1(A, OPT, name="k1_kernel"):
    stamps = OPT.get("stamps", 0)
    ROT = OPT.get("rot", 4); GSTEP = OPT.get("gstep", 4); GAP0 = OPT.get("gap0", 2)
    DX = OPT.get("dx", 2); DW = OPT.get("dw", 2)
    def xdma(w3):
        g = []
        n = 14 if w3 else 6
        for m in range(n):
            pre = [f"s_add_u32 m0, s{S_M0X}, {(m//4)*4096}"] if m % 4 == 0 else []
            so = "0" if m == 0 else f"s{S_XC + m - 1}"
            v = V_XA if m % 2 == 0 else V_XB
            off = (m % 4)*1024
            g.append((pre, f"buffer_load_dwordx4 v{v}, s[{S_X}:{S_X+3}], {so} offen " + (f"offset:{off} " if off else "") + "lds"))
        return g
    def wdma(slot):
        g = []
        for u in range(8):
            pre = [f"s_add_u32 m0, s{S_M0W}, {WSL[slot] + (u//4)*4096}"] if u % 4 == 0 else []
            so = "0" if u == 0 else f"s{S_WC + u - 1}"
            v = V_WA if u % 2 == 0 else V_WB
            off = (u % 4)*1024
            g.append((pre, f"buffer_load_dwordx4 v{v}, s[{S_W}:{S_W+3}], {so} offen " + (f"offset:{off} " if off else "") + "lds"))
        return g
    def warm():
        return [([], f"buffer_load_dword v{V_DUM}, v{V_PX}, s[{S_X}:{S_X+3}], 0 offen"),
                ([], f"buffer_load_dword v{V_DUM}, v{V_PW}, s[{S_W}:{S_W+3}], 0 offen")]
    def padv():
        return ["s_add_u32 s90, s90, 1", "s_cmp_eq_u32 s90, 16", "s_cselect_b32 s16, s100, s101", "s_and_b32 s90, s90, 15", f"v_add_u32 v{V_PX}, s16, v{V_PX}",
                "s_add_u32 s91, s91, 1", "s_cmp_eq_u32 s91, 16", "s_cselect_b32 s16, s98, s99", "s_and_b32 s91, s91, 15", f"v_add_u32 v{V_PW}, s16, v{V_PW}"]
    def xadv():
        return [f"s_add_u32 s{S_KX}, s{S_KX}, 1", f"s_cmp_eq_u32 s{S_KX}, 16", f"s_cselect_b32 s16, s100, s101", f"s_and_b32 s{S_KX}, s{S_KX}, 15",
                f"v_add_u32 v{V_XA}, s16, v{V_XA}", f"v_add_u32 v{V_XB}, s16, v{V_XB}",
                f"s_add_u32 s{S_M0X}, s{S_M0X}, {XSLOT}", f"s_cmp_ge_u32 s{S_M0X}, {3*XSLOT}", f"s_cselect_b32 s16, {3*XSLOT}, 0", f"s_sub_u32 s{S_M0X}, s{S_M0X}, s16"]
    def wadv():
        return [f"s_add_u32 s{S_KW}, s{S_KW}, 1", f"s_cmp_eq_u32 s{S_KW}, 16", f"s_cselect_b32 s16, s98, s99", f"s_and_b32 s{S_KW}, s{S_KW}, 15",
                f"v_add_u32 v{V_WA}, s16, v{V_WA}", f"v_add_u32 v{V_WB}, s16, v{V_WB}"]
    def xradv(t):
        c = S_XR if t == 0 else 47
        return [f"s_add_u32 s{c}, s{c}, 1", f"s_cmp_eq_u32 s{c}, 3", f"s_cselect_b32 s17, s97, s96", f"s_cselect_b32 s{c}, 0, s{c}",
                f"v_add_u32 v{V_RX[t]}, s17, v{V_RX[t]}"]
    def reads(wslot, t, fs):
        r = []
        def X(a): return (("X", a, fs), f"ds_read_b128 {ar(FX[fs]+4*a,4)}, v{V_RX[t]} offset:{a*2048}")
        def W(c, u):
            j, b = c//2, c % 2
            return (("W", c, u, fs), f"ds_read_b64_tr_b16 {ar(FW[fs]+4*c+2*u,2)}, v{V_RW + b} offset:{WSL[wslot]-WB + j*8192 + t*4096 + u*512}")
        r.append(X(0))
        for c in range(6): r += [W(c,0), W(c,1)]
        for a in range(1, 8): r.append(X(a))
        return r
    def mfma(a, c, fs, swap):
        x = ar(FX[fs]+4*a, 4); w = ar(FW[fs]+4*c, 4); d = vr(acc(a,c), 4)
        if swap[c//2]: x, w = w, x
        return f"v_mfma_f32_16x16x32_bf16 {d}, {x}, {w}, {d}"
    carry = []
    def stage(trk, par, swap, do_x, do_w, do_warm, vm_bar, last, w3, extra=None):
        for t in range(2):
            fs = t
            fill = [[] for _ in range(48)]
            if t == 0:
                for pos, item in carry: fill[pos].append(item)
                carry.clear()
                for g, x in enumerate(reads(par, 1, 1)): fill[2*g].append(("lds",) + x)
                fill[41].append(("raw", xradv(1)))
                if not last: fill[43].append(("raw", xradv(0)))
            else:
                if not last:
                    for g, x in enumerate(reads(par ^ 1, 0, 0)): fill[2*g+2].append(("lds",) + x)
                vm = []
                if do_w and not w3:
                    vm += [(d, None) for d in wdma(par)]; vm[-1] = (vm[-1][0], wadv())
                if do_x:
                    vm += [(d, None) for d in xdma(w3)]; vm[-1] = (vm[-1][0], xadv())
                if w3 and do_warm:
                    vm += [(d, None) for d in warm()]; vm[-1] = (vm[-1][0], padv())
                for g, (d, adv) in enumerate(vm):
                    pos = GAP0 + GSTEP*g
                    if pos > 47:
                        carry.append((pos - 48, ("dma", d)))
                        if adv: carry.append((pos - 48, ("raw", adv)))
                    else:
                        fill[pos].append(("dma", d))
                        if adv: fill[pos].append(("raw", adv))
            if t == 1 and extra: fill[3].append(("call", extra))
            n = 0
            for a in range(8):
                for c in range(6):
                    need = trk.need([("X", a, fs), ("W", c, 0, fs), ("W", c, 1, fs)])
                    if t == 1 and n == 0 and not last:
                        A("s_waitcnt lgkmcnt(0)"); trk.all_done()
                    elif need is not None:
                        A(f"s_waitcnt lgkmcnt({need})")
                    A(mfma(a, c, fs, swap))
                    if t == 1 and n == 0 and not last:
                        A(f"s_waitcnt vmcnt({vm_bar})")
                        A("s_barrier")
                    m0w = False; between = 0
                    for f in fill[n]:
                        if f[0] == "dma":
                            for p in f[1][0]:
                                A(p); m0w = True
                    for f in fill[n]:
                        if f[0] == "lds":
                            A(f[2]); between += 1
                            trk.issue(f[1])
                    for f in fill[n]:
                        if f[0] == "dma":
                            if m0w and between == 0: A("s_nop 0")
                            A(f[1][1])
                    for f in fill[n]:
                        if f[0] == "raw":
                            for p in f[1]: A(p)
                        if f[0] == "call": f[1]()
                    n += 1
    def gen_main(tag, swap, w3):
        trk = LgkmTracker()
        for tg, ins in reads(0, 0, 0):
            A(ins); trk.issue(tg)
        A(f"s_mov_b32 s{S_CNT}, 0")
        nx_ = 14 if w3 else 6; nwarm = 2 if w3 else 0
        vm = nx_ if not w3 else (nwarm + nx_ + nwarm)
        stage(trk, 0, swap, True, True, True, nx_ + nwarm, False, w3)
        A(".p2align 6"); A.label(f".L{tag}_loop")
        stage(trk, 1, swap, True, True, True, vm, False, w3)
        stage(trk, 0, swap, True, True, True, vm, False, w3)
        A(f"s_add_u32 s{S_CNT}, s{S_CNT}, 1\ns_cmp_lt_u32 s{S_CNT}, 6\ns_cbranch_scc1 .L{tag}_loop")
        ex = None
        if w3 and OPT.get("cpf", 1):
            ex = lambda: code_prefetch(A, "late" + tag, ".Lph2_A", ".Lall_text_end", 13, V_DUM, True, n=4, sbase=20)
        stage(trk, 1, swap, False, True, False, vm, False, w3, ex)
        stage(trk, 0, swap, False, False, False, 0, False, w3)
        stage(trk, 1, swap, False, False, False, 0, True, w3)
    def stamp(i):
        if not stamps: return
        if i < 6: A(f"s_memrealtime s[{S_T0+2*i}:{S_T0+2*i+1}]")
        else: A(f"s_memrealtime s[{24+2*(i-6)}:{25+2*(i-6)}]")

    A(f".globl {name}\n.p2align 8\n.type {name},@function\n{name}:")
    stamp(0)
    A(f"""s_load_dwordx4 s[16:19], s[0:1], 0
s_load_dwordx4 s[20:23], s[0:1], 24
s_load_dwordx4 s[{S_D}:{S_D+3}], s[0:1], 56
s_cmp_ge_u32 s2, 256
s_cbranch_scc1 .L{name}_done
v_lshrrev_b32 v1, 6, v0
v_and_b32 v0, 63, v0
s_and_b32 s24, s2, 7
v_readfirstlane_b32 s{S_WAVE}, v1
s_lshr_b32 s25, s2, 3
s_and_b32 s{S_BR}, s24, 1
s_lshr_b32 s26, s24, 1               ; q = xcd>>1
s_and_b32 s27, s26, 1
s_lshr_b32 s28, s26, 1
s_lshl_b32 s27, s27, 2
s_and_b32 s29, s25, 3
s_add_u32 s{S_MB}, s27, s29
s_lshl_b32 s28, s28, 3
s_lshr_b32 s29, s25, 2
s_add_u32 s{S_HP}, s28, s29
s_mul_i32 s26, s26, {ROT}
s_and_b32 s{S_KX}, s26, 15
s_mov_b32 s{S_KW}, s{S_KX}
v_lshrrev_b32 v20, 3, v0            ; l>>3
v_lshrrev_b32 v21, 4, v0            ; g
v_and_b32 v22, 7, v0
v_xor_b32 v23, v22, v21
v_lshlrev_b32 v23, 4, v23
s_mul_i32 s24, s{S_WAVE}, 6
s_lshl_b32 s{S_M0X}, s24, 10
s_lshl_b32 s25, s24, 14
s_lshl_b32 s26, s{S_KX}, 7
s_add_u32 s25, s25, s26
v_lshlrev_b32 v24, 11, v20
v_add3_u32 v{V_XA}, v24, v23, s25
v_xor_b32 v{V_XB}, 64, v{V_XA}
v_and_b32 v23, 1, v21
v_lshlrev_b32 v23, 1, v23
v_xor_b32 v23, v22, v23
v_lshlrev_b32 v23, 4, v23
v_mul_u32_u24 v24, 6144, v20
s_lshl_b32 s{S_M0W}, s{S_WAVE}, 13
s_lshl_b32 s25, s{S_WAVE}, 11
s_mul_i32 s26, s{S_KW}, 393216
s_add_u32 s25, s25, s26
v_add3_u32 v{V_WA}, v24, v23, s25
v_xor_b32 v{V_WB}, 64, v{V_WA}
""")
    for m in range(1, 14): A(f"s_mov_b32 s{S_XC+m-1}, {m*16384 - (m%4)*1024}")
    for u in range(1, 8): A(f"s_mov_b32 s{S_WC+u-1}, {u*8*6144 - (u%4)*1024}")
    if OPT.get("cpf", 1):
        A(f"""s_getpc_b64 s[24:25]
.Lpc_early:
s_cmp_eq_u32 s{S_BR}, 0
s_cselect_b32 s26, .Lv_A0-.Lpc_early, 0
s_cselect_b32 s27, .Lv_A3-.Lpc_early, 0
s_cselect_b32 s28, 0, .Lv_B0-.Lpc_early
s_cselect_b32 s29, 0, .Lv_B3-.Lpc_early
s_add_u32 s26, s26, s28
s_add_u32 s27, s27, s29
s_cmp_eq_u32 s{S_WAVE}, 3
s_cselect_b32 s26, s27, s26
s_add_u32 s24, s24, s26
s_addc_u32 s25, s25, 0
v_lshlrev_b32 v13, 7, v0
global_load_dword v{V_DUM}, v13, s[24:25]
v_add_u32 v13, 0x2000, v13
v_min_u32 v13, 0x2400, v13
global_load_dword v{V_DUM}, v13, s[24:25]
""")
    A(f"""s_mov_b32 s100, -1920
s_mov_b32 s101, 128
s_mov_b32 s98, {-15*393216}
s_mov_b32 s99, 393216
s_cmp_eq_u32 s{S_BR}, 0
s_waitcnt lgkmcnt(0)
s_cselect_b32 s16, s16, s20
s_cselect_b32 s17, s17, s21
s_cselect_b32 s18, s18, s22
s_cselect_b32 s19, s19, s23
s_lshl_b32 s24, s{S_MB}, 19
s_add_u32 s{S_X}, s16, s24
s_addc_u32 s{S_X+1}, s17, 0
s_sub_u32 s{S_X+2}, 0x400000, s24
s_mov_b32 s{S_X+3}, 0x20000
s_lshl_b32 s24, s{S_HP}, 7
s_add_u32 s{S_W}, s18, s24
s_addc_u32 s{S_W+1}, s19, 0
s_sub_u32 s{S_W+2}, 0x600000, s24
s_mov_b32 s{S_W+3}, 0x20000
""")
    def issue(lst):
        for pre, ins in lst:
            for p in pre: A(p)
            if pre: A("s_nop 0")
            A(ins)
    def late_setup():
        A(f"""s_mov_b32 s{S_O}, s{S_D+2}
s_mov_b32 s{S_O+1}, s{S_D+3}
s_mov_b32 s{S_O+2}, 0x10000000
s_mov_b32 s{S_O+3}, 0x20000
s_mov_b32 s{S_D+2}, 256
s_mov_b32 s{S_D+3}, 0x20000
s_mov_b32 s97, {-2*XSLOT}
s_mov_b32 s96, {XSLOT}
s_mov_b32 s{S_XR}, 0
s_mov_b32 s47, 0
v_lshrrev_b32 v21, 4, v0
v_and_b32 v20, 15, v0
v_bfe_u32 v22, v0, 1, 3
v_xor_b32 v22, v22, v21
s_lshr_b32 s16, s{S_WAVE}, 1
s_lshl_b32 s16, s16, 7
v_add_u32 v23, s16, v20
v_lshlrev_b32 v23, 7, v23
""")
        for t in range(2):
            A(f"v_xor_b32 v24, {4*t}, v22\nv_lshlrev_b32 v24, 4, v24\nv_add_u32 v{V_RX[t]}, v23, v24")
        A(f"""v_bfe_u32 v20, v0, 2, 2
v_lshlrev_b32 v22, 3, v21
v_add_u32 v22, v22, v20
v_lshlrev_b32 v22, 7, v22
v_bfe_u32 v23, v0, 3, 1
v_and_b32 v24, 1, v21
v_lshlrev_b32 v24, 1, v24
v_or_b32 v23, v23, v24
s_and_b32 s16, s{S_WAVE}, 1
s_lshl_b32 s16, s16, 1
v_xor_b32 v23, s16, v23
v_lshlrev_b32 v23, 5, v23
v_add_u32 v22, v22, v23
v_and_b32 v23, 3, v0
v_lshlrev_b32 v23, 3, v23
v_add_u32 v22, v22, v23
v_add_u32 v{V_RW}, {WB}, v22
v_xor_b32 v{V_RW+1}, 32, v{V_RW}
""")
        from k1b_gen import early_setup_B
        early_setup_B(A)
        for r in range(ACC, 256): A(f"v_mov_b32 v{r}, 0")
    A(f"s_cmp_eq_u32 s{S_WAVE}, 3\ns_cbranch_scc1 .Lp3")
    issue(xdma(False)); [A(p) for p in xadv()]
    issue(wdma(0)); [A(p) for p in wadv()]
    issue(wdma(1)); [A(p) for p in wadv()]
    issue(xdma(False)); [A(p) for p in xadv()]
    issue(xdma(False)); [A(p) for p in xadv()]
    late_setup()
    A(f"s_waitcnt vmcnt({8+6+6})\ns_barrier")
    stamp(1)
    A(f"s_cmp_eq_u32 s{S_BR}, 0\ns_cbranch_scc1 .Lmain_A0")
    A.label(".Lv_B0"); gen_main("B0", [1, 1, 0], False); A("s_branch .Lph2_B")
    A.label(".Lmain_A0"); A.label(".Lv_A0"); gen_main("A0", [1, 0, 0], False); A("s_branch .Lph2_A")
    A.label(".Lp3")
    issue(xdma(True)); [A(p) for p in xadv()]
    issue(xdma(True)); [A(p) for p in xadv()]
    issue(xdma(True)); [A(p) for p in xadv()]
    A(f"""; warm voffsets
s_and_b32 s16, s{S_HP}, 7
s_lshl_b32 s16, s16, 5
v_and_b32 v20, 31, v0
v_add_u32 v20, s16, v20
v_lshlrev_b32 v20, 11, v20
s_add_u32 s90, s{S_KW}, {3 + DX}
s_mul_i32 s16, s2, 1
s_and_b32 s16, s2, 7
s_lshr_b32 s16, s16, 1
s_mul_i32 s16, s16, {ROT}
s_add_u32 s90, s16, {3 + DX}
s_and_b32 s90, s90, 15
s_lshl_b32 s17, s90, 7
v_add_u32 v{V_PX}, s17, v20
s_and_b32 s17, s{S_MB}, 3
s_lshl_b32 s17, s17, 4
v_and_b32 v20, 15, v0
v_add_u32 v20, s17, v20
v_mul_u32_u24 v20, 6144, v20
v_lshrrev_b32 v21, 4, v0
v_min_u32 v22, 2, v21
v_lshlrev_b32 v22, 11, v22
v_add_u32 v20, v20, v22
s_add_u32 s91, s16, {2 + DW}
s_and_b32 s91, s91, 15
s_mul_i32 s17, s91, 393216
v_add_u32 v{V_PW}, s17, v20
""")
    issue(warm()); [A(p) for p in padv()]
    late_setup()
    A(f"s_waitcnt vmcnt({28 + 2})\ns_barrier")
    stamp(1)
    A(f"s_cmp_eq_u32 s{S_BR}, 0\ns_cbranch_scc1 .Lmain_A3")
    A.label(".Lv_B3"); gen_main("B3", [1, 1, 0], True); A("s_branch .Lph2_B")
    A.label(".Lmain_A3"); A.label(".Lv_A3"); gen_main("A3", [1, 0, 0], True)
    A.label(".Lph2_A")
    stamp(2)
    A("s_waitcnt vmcnt(0)\ns_barrier\ns_nop 7")
    phase2_A(A, OPT, stamp)
    A(f"s_branch .L{name}_fin")
    A.label(".Lph2_B")
    stamp(2)
    A("s_waitcnt vmcnt(0)\ns_barrier\ns_nop 7")
    phase2_B(A, OPT, stamp)
    A.label(f".L{name}_fin")
    if stamps:
        A("s_waitcnt vmcnt(0)")
        stamp(5)
        A(f"""s_waitcnt lgkmcnt(0)
s_cmp_lg_u32 s{S_WAVE}, 0
s_cbranch_scc1 .L{name}_done
""")
        for q in range(12): A(f"v_mov_b32 v{20+q}, s{S_T0+q}")
        for q in range(6): A(f"v_mov_b32 v{32+q}, s{24+2*q}")
        A(f"""s_lshl_b32 s16, s2, 5
s_add_u32 s16, s16, {STAMP + 0x8000}
v_mov_b32 v41, s16
s_lshl_b32 s16, s2, 6
s_add_u32 s16, s16, {STAMP}
v_mov_b32 v40, s16
v_cmp_eq_u32 vcc, 0, v0
s_and_saveexec_b64 s[18:19], vcc
s_cbranch_execz .L{name}_done
buffer_store_dwordx4 v[20:23], v40, s[{S_O}:{S_O+3}], 0 offen
buffer_store_dwordx4 v[24:27], v40, s[{S_O}:{S_O+3}], 0 offen offset:16
buffer_store_dwordx4 v[28:31], v40, s[{S_O}:{S_O+3}], 0 offen offset:32
buffer_store_dwordx4 v[32:35], v41, s[{S_O}:{S_O+3}], 0 offen
buffer_store_dwordx2 v[36:37], v41, s[{S_O}:{S_O+3}], 0 offen offset:16
""")
    A.label(f".L{name}_done")
    A("s_endpgm")
    A.label(".Lk1_text_end")
    return kdesc(name, 512, 256, 102), LDS1

def code_prefetch(A, tag, start, end, voff, vdst, forward, n=1, sbase=20):
    A(f"s_getpc_b64 s[{sbase}:{sbase+1}]")
    A.label(f".Lpc_{tag}")
    if forward:
        A(f"s_add_u32 s{sbase}, s{sbase}, {start}-.Lpc_{tag}")
        A(f"s_addc_u32 s{sbase+1}, s{sbase+1}, 0")
    else:
        A(f"s_sub_u32 s{sbase}, s{sbase}, .Lpc_{tag}-{start}")
        A(f"s_subb_u32 s{sbase+1}, s{sbase+1}, 0")
    A(f"v_lshlrev_b32 v{voff}, 7, v0")
    for i in range(n):
        A(f"v_min_u32 v{voff+1}, {end}-{start}-4, v{voff}")
        A(f"global_load_dword v{vdst}, v{voff+1}, s[{sbase}:{sbase+1}]")
        if i < n-1: A(f"v_add_u32 v{voff}, 0x2000, v{voff}")

POLL_LIMIT = 200000
def poll(A, tag, dword_off_expr_sreg, test, tv=60):
    A(f"""s_cmp_lg_u32 s{S_WAVE}, 0
s_cbranch_scc1 .Lpoll_{tag}_end
s_mov_b32 s17, 0
.Lpoll_{tag}:
buffer_load_dword v{tv}, off, s[{S_D}:{S_D+3}], s{dword_off_expr_sreg} sc1
s_waitcnt vmcnt(0)
v_readfirstlane_b32 s16, v{tv}
{test}
s_cbranch_scc1 .Lpoll_{tag}_end
s_sleep 1
s_add_u32 s17, s17, 1
s_cmp_lt_u32 s17, {POLL_LIMIT}
s_cbranch_scc1 .Lpoll_{tag}
.Lpoll_{tag}_end:""")

def signal(A, tag, off_sreg, val_sreg, tv=60):
    A(f"""s_cmp_lg_u32 s{S_WAVE}, 0
s_cbranch_scc1 .Lsig_{tag}_end
v_mov_b32 v{tv}, s{val_sreg}
s_mov_b64 exec, 1
buffer_atomic_add v{tv}, off, s[{S_D}:{S_D+3}], s{off_sreg}
s_mov_b64 exec, -1
.Lsig_{tag}_end:""")

def phi_ops(regs, tmp):
    ops = []
    for k in range(0, len(regs), 2):
        r = regs[k]; t = tmp[(k//2) % len(tmp)]
        ops.append(f"v_pk_mul_f32 v[{t}:{t+1}], v[{r}:{r+1}], s[18:19]")
        ops.append(f"v_max_f32 v{r}, 0, v{r}")
        ops.append(f"v_exp_f32_e64 v{t}, v{t} clamp")
        ops.append(f"v_exp_f32_e64 v{t+1}, v{t+1} clamp")
        ops.append(f"v_max_f32 v{r+1}, 0, v{r+1}")
        ops.append(f"v_pk_add_f32 v[{r}:{r+1}], v[{r}:{r+1}], v[{t}:{t+1}]")
        ops.append(f"v_pk_add_f32 v[{r}:{r+1}], v[{r}:{r+1}], s[22:23]")
    return ops

def phase2_A(A, OPT, stamp):
    KV = 16
    Z = 32
    ONES = 40
    TMP = [44, 46, 48, 50]
    if OPT.get("wopf", 1):
        A(f"""s_lshl_b32 s16, s{S_MB}, 4
s_add_u32 s16, s16, s{S_HP}
s_lshl_b32 s16, s16, 2
s_add_u32 s16, s16, s{S_WAVE}
s_lshr_b32 s17, s16, 8
s_mul_i32 s17, s17, 24
s_add_u32 s17, s17, 16
s_load_dwordx2 s[20:21], s[0:1], s17
s_and_b32 s16, s16, 255
s_lshl_b32 s16, s16, 13
v_lshlrev_b32 v13, 7, v0
v_add_u32 v13, s16, v13
s_waitcnt lgkmcnt(0)
global_load_dword v12, v13, s[20:21]
""")
    A(f"""s_mov_b32 s18, {LOG2E}
s_mov_b32 s19, {LOG2E}
s_mov_b32 s22, {EPS}
s_mov_b32 s23, {EPS}
""")
    for r in range(4): A(f"v_mov_b32 v{ONES+r}, 0x3f803f80")
    for s in range(4):
        for b in range(2):
            t0 = acc(2*s, 2+b); t1 = acc(2*s+1, 2+b)
            for op in phi_ops([t0, t0+1, t0+2, t0+3, t1, t1+1, t1+2, t1+3], TMP): A(op)
            A(f"v_cvt_pk_bf16_f32 v{t0}, v{t0}, v{t0+1}")
            A(f"v_cvt_pk_bf16_f32 v{t0+1}, v{t0+2}, v{t0+3}")
            A(f"v_cvt_pk_bf16_f32 v{t0+2}, v{t1}, v{t1+1}")
            A(f"v_cvt_pk_bf16_f32 v{t0+3}, v{t1+2}, v{t1+3}")
        for b in range(2):
            t0 = acc(2*s, 4+b); t1 = acc(2*s+1, 4+b)
            A(f"v_cvt_pk_bf16_f32 v{t0}, v{t0}, v{t0+1}")
            A(f"v_cvt_pk_bf16_f32 v{t0+1}, v{t0+2}, v{t0+3}")
            A(f"v_cvt_pk_bf16_f32 v{t0+2}, v{t1}, v{t1+1}")
            A(f"v_cvt_pk_bf16_f32 v{t0+3}, v{t1+2}, v{t1+3}")
        A("s_nop 1")
        for b in range(2):
            pk = vr(acc(2*s, 2+b), 4)
            for bp in range(2):
                d = vr(KV + (b*2+bp)*4, 4)
                A(f"v_mfma_f32_16x16x32_bf16 {d}, {pk}, {vr(acc(2*s, 4+bp), 4)}, {'0' if s == 0 else d}")
            d = vr(Z + 4*b, 4)
            A(f"v_mfma_f32_16x16x32_bf16 {d}, {pk}, {vr(ONES,4)}, {'0' if s == 0 else d}")
    A(f"""v_lshlrev_b32 v44, 4, v0
s_and_b32 s16, s{S_WAVE}, 1
s_mul_i32 s16, s16, 6144
v_add_u32 v44, s16, v44
s_nop 7
s_cmp_lt_u32 s{S_WAVE}, 2
s_cbranch_scc1 .LA_skipw
""")
    for i in range(6): A(f"ds_write_b128 v44, {vr(KV+4*i,4)} offset:{i*1024}")
    A.label(".LA_skipw")
    A("s_waitcnt lgkmcnt(0)\ns_barrier")
    A(f"s_cmp_ge_u32 s{S_WAVE}, 2\ns_cbranch_scc1 .LA_skipr")
    for i in range(6): A(f"ds_read_b128 {ar(4*i,4)}, v44 offset:{i*1024}")
    A("s_waitcnt lgkmcnt(0)")
    for i in range(24):
        A(f"v_accvgpr_read_b32 v{46 + (i%2)}, a{i}")
        A(f"v_add_f32 v{KV+i}, v{KV+i}, v{46 + (i%2)}")
    A(f"""s_lshl_b32 s16, s{S_HP}, 1
s_and_b32 s17, s{S_WAVE}, 1
s_add_u32 s16, s16, s17              ; head
s_lshl_b32 s17, s{S_MB}, 5
s_add_u32 s16, s16, s17
s_lshl_b32 s16, s16, 13
s_add_u32 s16, s16, {PART}
v_lshlrev_b32 v45, 4, v0
""")
    for i in range(4): A(f"buffer_store_dwordx4 {vr(KV+4*i,4)}, v45, s[{S_O}:{S_O+3}], s16 offen offset:{i*1024} sc1")
    A(f"""v_lshrrev_b32 v46, 4, v0
v_lshlrev_b32 v46, 4, v46
v_and_b32 v47, 15, v0
v_cmp_eq_u32 vcc, 0, v47
s_add_u32 s16, s16, 4096
s_and_saveexec_b64 s[20:21], vcc
buffer_store_dwordx4 {vr(Z,4)}, v46, s[{S_O}:{S_O+3}], s16 offen sc1
buffer_store_dwordx4 {vr(Z+4,4)}, v46, s[{S_O}:{S_O+3}], s16 offen offset:64 sc1
s_mov_b64 exec, s[20:21]
""")
    A.label(".LA_skipr")
    for a in range(8):
        t0 = acc(a, 0); t1 = acc(a, 1)
        for op in phi_ops([t0, t0+1, t0+2, t0+3, t1, t1+1, t1+2, t1+3], TMP): A(op)
        A(f"v_cvt_pk_bf16_f32 v{t0}, v{t0}, v{t0+1}")
        A(f"v_cvt_pk_bf16_f32 v{t0+1}, v{t0+2}, v{t0+3}")
        A(f"v_cvt_pk_bf16_f32 v{t0+2}, v{t1}, v{t1+1}")
        A(f"v_cvt_pk_bf16_f32 v{t0+3}, v{t1+2}, v{t1+3}")
    stamp(3)
    A("s_waitcnt vmcnt(0)\ns_barrier")
    stamp(6)
    A(f"s_lshl_b32 s20, s{S_HP}, 2\ns_add_u32 s20, s20, 128\ns_mov_b32 s21, 1")
    signal(A, "A", 20, 21)
    poll(A, "A", 20, "s_cmp_ge_u32 s16, 8")
    A("s_barrier")
    stamp(7)
    A(f"""s_lshl_b32 s16, s{S_HP}, 1
s_and_b32 s17, s{S_WAVE}, 1
s_add_u32 s16, s16, s17              ; head
s_lshr_b32 s17, s{S_WAVE}, 1
s_lshl_b32 s17, s17, 7               ; 4wm*32
s_add_u32 s16, s16, s17
s_lshl_b32 s16, s16, 13
s_add_u32 s16, s16, {PART}
v_lshlrev_b32 v45, 4, v0
v_lshrrev_b32 v46, 4, v0
v_lshlrev_b32 v46, 4, v46
v_add_u32 v46, 4096, v46
""")
    for i in range(4):
        for q in range(4): A(f"buffer_load_dwordx4 {ar(i*24 + 4*q, 4)}, v45, s[{S_O}:{S_O+3}], s16 offen offset:{q*1024} sc1")
        for b in range(2): A(f"buffer_load_dwordx4 {ar(i*24 + 16 + 4*b, 4)}, v46, s[{S_O}:{S_O+3}], s16 offen offset:{b*64} sc1")
        if i < 3: A(f"s_add_u32 s16, s16, {32*8192}")
    A("s_waitcnt vmcnt(0)")
    stamp(8)
    for r in range(24):
        A(f"v_accvgpr_read_b32 v{KV+r}, a{r}")
        A(f"v_accvgpr_read_b32 v46, a{24+r}")
        A(f"v_accvgpr_read_b32 v47, a{48+r}")
        A(f"v_accvgpr_read_b32 v48, a{72+r}")
        A(f"v_add_f32 v{KV+r}, v{KV+r}, v46")
        A(f"v_add_f32 v47, v47, v48")
        A(f"v_add_f32 v{KV+r}, v{KV+r}, v47")
    A(f"""v_lshlrev_b32 v44, 4, v0
s_mul_i32 s16, s{S_WAVE}, 6144
v_add_u32 v45, s16, v44
s_xor_b32 s17, s{S_WAVE}, 2
s_mul_i32 s16, s17, 6144
v_add_u32 v44, s16, v44
""")
    for i in range(6): A(f"ds_write_b128 v45, {vr(KV+4*i,4)} offset:{16384 + i*1024}")
    A("s_waitcnt lgkmcnt(0)\ns_barrier")
    for i in range(6): A(f"ds_read_b128 {ar(4*i,4)}, v44 offset:{16384 + i*1024}")
    A("s_waitcnt lgkmcnt(0)")
    for i in range(24):
        A(f"v_accvgpr_read_b32 v{46 + (i%2)}, a{i}")
        A(f"v_add_f32 v{KV+i}, v{KV+i}, v{46 + (i%2)}")
    for bp in range(2):
        for b in range(2):
            s = KV + (b*2+bp)*4; d = 48 + 4*bp + 2*b
            A(f"v_cvt_pk_bf16_f32 v{d}, v{s}, v{s+1}")
            A(f"v_cvt_pk_bf16_f32 v{d+1}, v{s+2}, v{s+3}")
    for b in range(2):
        s = Z + 4*b; d = 56 + 2*b
        A(f"v_cvt_pk_bf16_f32 v{d}, v{s}, v{s+1}")
        A(f"v_cvt_pk_bf16_f32 v{d+1}, v{s+2}, v{s+3}")
    A("s_nop 1")
    for a in range(8):
        pq = vr(acc(a, 0), 4)
        A(f"v_mfma_f32_16x16x32_bf16 {vr(acc(a,2),4)}, v[48:51], {pq}, 0")
        A(f"v_mfma_f32_16x16x32_bf16 {vr(acc(a,3),4)}, v[52:55], {pq}, 0")
        A(f"v_mfma_f32_16x16x32_bf16 {vr(acc(a,4),4)}, v[56:59], {pq}, 0")
    A(f"""s_lshl_b32 s16, s{S_MB}, 4
s_lshr_b32 s17, s{S_WAVE}, 1
s_lshl_b32 s17, s17, 3
s_add_u32 s16, s16, s17
s_lshl_b32 s16, s16, 5
s_lshl_b32 s17, s{S_HP}, 1
s_add_u32 s16, s16, s17
s_and_b32 s17, s{S_WAVE}, 1
s_add_u32 s16, s16, s17
s_lshl_b32 s16, s16, 10
s_add_u32 s16, s16, {O_IMG}
v_lshlrev_b32 v45, 4, v0
""")
    for a in range(8):
        n0 = acc(a, 2); n1 = acc(a, 3); de = acc(a, 4); o = acc(a, 5)
        A(f"v_add_f32 v{de+1}, {EPS}, v{de}")
        A(f"v_rcp_f32 v{de+1}, v{de+1}")
        A("s_nop 0")
        for r in range(4): A(f"v_mul_f32 v{n0+r}, v{n0+r}, v{de+1}")
        for r in range(4): A(f"v_mul_f32 v{n1+r}, v{n1+r}, v{de+1}")
        A(f"v_cvt_pk_bf16_f32 v{o}, v{n0}, v{n0+1}")
        A(f"v_cvt_pk_bf16_f32 v{o+1}, v{n0+2}, v{n0+3}")
        A(f"v_cvt_pk_bf16_f32 v{o+2}, v{n1}, v{n1+1}")
        A(f"v_cvt_pk_bf16_f32 v{o+3}, v{n1+2}, v{n1+3}")
        A(f"buffer_store_dwordx4 {vr(o,4)}, v45, s[{S_O}:{S_O+3}], s16 offen sc1")
        if a < 7: A(f"s_add_u32 s16, s16, 32768")
    stamp(4)

def phase2_B(A, OPT, stamp):
    from k1b_gen import gen_B
    gen_B(A, OPT, stamp)
```

```python
from asmgen import *
import k1_gen as K
from k1_gen import *

KBASE, VBASE, QBASE = 0, 65536, 131072
V_KW, V_VW, V_QW, V_HL, V_KR, V_VR, V_OS, V_QR = 24, 25, 26, 27, 28, 29, 30, 31
V_T = 15
PM = 16
CMA, CMB = 32, 48
SA = [64, 80]; SB = 96
PB = [112, 120]
O_ = lambda i: 128 + 16*i
L_ = lambda i: 64 + 16*i
FT = 200
QF = lambda i, t: 128 + 8*i + 4*t
KF = [160, 168]; KF2 = 176
VF = [184, 192]; VF2 = 200
ONES = 208
HS = 0

def gen_B(A, OPT, stamp):
    PXr = 216
    PYr = 192
    def kq_off(a, b): return (a >> 1)*2048 + b*1024 + (a & 1)*256
    def v_off(a, b): return (a >> 1)*2048 + (a & 1)*1024 + b*256
    A(f"""; halo store base (this WG): HALO + ((mb*16+hp)*4 + wave)*16384
s_lshl_b32 s20, s{S_MB}, 4
s_add_u32 s20, s20, s{S_HP}
s_lshl_b32 s20, s20, 2
s_add_u32 s20, s20, s{S_WAVE}
s_lshl_b32 s20, s20, 14
s_add_u32 s20, s20, {HALO}
s_mov_b32 s22, {QSCALE}
s_mov_b32 s23, {QSCALE}
""")
    for a in range(8):
        for j, (cc, vw, offf) in enumerate(((2, V_KW, kq_off), (4, V_VW, v_off))):
            t0 = acc(a, cc); t1 = acc(a, cc+1)
            A(f"v_cvt_pk_bf16_f32 v{t0}, v{t0}, v{t0+1}\nv_cvt_pk_bf16_f32 v{t0+1}, v{t0+2}, v{t0+3}")
            A(f"v_cvt_pk_bf16_f32 v{t0+2}, v{t1}, v{t1+1}\nv_cvt_pk_bf16_f32 v{t0+3}, v{t1+2}, v{t1+3}")
            k = j*8 + a
            A(f"s_add_u32 s21, s20, {(k//4)*4096}")
            A(f"buffer_store_dwordx4 {vr(t0,4)}, v{V_HL}, s[{S_O}:{S_O+3}], s21 offen offset:{(k%4)*1024} sc1")
            for b in range(2): A(f"ds_write_b64 v{vw}, {vr(t0+2*b,2)} offset:{offf(a,b)}")
        t0 = acc(a, 0); t1 = acc(a, 1)
        for t in (t0, t0+2, t1, t1+2): A(f"v_pk_mul_f32 v[{t}:{t+1}], v[{t}:{t+1}], s[22:23]")
        A(f"v_cvt_pk_bf16_f32 v{t0}, v{t0}, v{t0+1}\nv_cvt_pk_bf16_f32 v{t0+1}, v{t0+2}, v{t0+3}")
        A(f"v_cvt_pk_bf16_f32 v{t0+2}, v{t1}, v{t1+1}\nv_cvt_pk_bf16_f32 v{t0+3}, v{t1+2}, v{t1+3}")
        for b in range(2): A(f"ds_write_b64 v{V_QW}, {vr(t0+2*b,2)} offset:{kq_off(a,b)}")
    stamp(6)
    A(f"""s_cmp_lg_u32 s{S_MB}, 0
s_cbranch_scc1 .LB_nozero
s_and_b32 s16, s{S_WAVE}, 1
s_lshl_b32 s16, s16, 15
s_lshr_b32 s17, s{S_WAVE}, 1
s_lshl_b32 s17, s17, 16
s_add_u32 s16, s16, s17
v_add_u32 v10, s16, v{V_HL}
v_mov_b32 v4, 0
v_mov_b32 v5, 0
v_mov_b32 v6, 0
v_mov_b32 v7, 0
""")
    for k in range(16): A(f"ds_write_b128 v10, v[4:7] offset:{k*1024}")
    A.label(".LB_nozero")
    for rho in range(16):
        key = 8*(rho//4) + rho % 4
        A(f"v_cmp_le_i32 s[{S_MASK+2*rho}:{S_MASK+2*rho+1}], {key}, v{V_T}")
    A("v_mov_b32 v12, 0x3f803f80")
    for r in range(4): A(f"v_accvgpr_write_b32 a{ONES+r}, v12")
    A(f"""s_lshl_b32 s16, s{S_MB}, 3
s_lshr_b32 s17, s{S_WAVE}, 1
s_add_u32 s16, s16, s17
s_lshl_b32 s16, s16, 16
s_lshl_b32 s17, s{S_HP}, 1
s_and_b32 s18, s{S_WAVE}, 1
s_add_u32 s17, s17, s18
s_lshl_b32 s17, s17, 10
s_add_u32 s16, s16, s17
s_add_u32 s97, s16, {O_IMG + 0x400000}
s_mov_b32 s{S_FB}, 0
s_mov_b32 s98, 0x33800000
s_mov_b32 s99, 0x53800000
s_waitcnt lgkmcnt(0)
s_barrier
""")
    for i in range(4):
        for t in range(2): A(f"ds_read_b128 {ar(QF(i,t),4)}, v{V_QR} offset:{i*4096 + t*1024}")
    A("s_waitcnt lgkmcnt(0)")
    stamp(3)

    def mkjobs(pas):
        jobs = []
        for i in range(4):
            if pas == 1:
                for d in range(1, 2*i+1): jobs.append(dict(slot=i, kind="full", bk=8+2*i-d, cm=None))
            else:
                for d in range(2*i+1, 8): jobs.append(dict(slot=i, kind="full", bk=8+2*i-d, cm=(CMA if d == 2*i+1 else CMB)))
                jobs.append(dict(slot=i, kind="merged", bk=8+2*i, bk2=2*i, cm=None))
        return jobs
    touched = set()
    def run_pipeline(jobs, hooks, final):
        trk = LgkmTracker()
        N = len(jobs)
        def loadK(n):
            j = jobs[n]; r = []
            for t in range(2): r.append((("K", n, t), f"ds_read_b128 {ar(KF[n%2]+4*t,4)}, v{V_KR} offset:{j['bk']*2048 + t*1024}"))
            if j["kind"] == "merged":
                for t in range(2): r.append((("K2", n, t), f"ds_read_b128 {ar(KF2+4*t,4)}, v{V_KR} offset:{j['bk2']*2048 + t*1024}"))
            return r
        def loadV(n):
            j = jobs[n]; r = []
            for t in range(2): r.append((("V", n, t), f"ds_read_b128 {ar(VF[n%2]+4*t,4)}, v{V_VR} offset:{j['bk']*2048 + t*1024}"))
            if j["kind"] == "merged":
                for t in range(2): r.append((("V2", n, t), f"ds_read_b128 {ar(VF2+4*t,4)}, v{V_VR} offset:{j['bk2']*2048 + t*1024}"))
            return r
        def partA(n):
            j = jobs[n]; i = j["slot"]; S = SA[n % 2]; m = []
            c0 = "0" if j["cm"] is None else vr(j["cm"], 16)
            m.append(([("K", n, 0)], f"v_mfma_f32_32x32x16_bf16 {vr(S,16)}, {ar(KF[n%2],4)}, {ar(QF(i,0),4)}, {c0}"))
            m.append(([("K", n, 1)], f"v_mfma_f32_32x32x16_bf16 {vr(S,16)}, {ar(KF[n%2]+4,4)}, {ar(QF(i,1),4)}, {vr(S,16)}"))
            if j["kind"] == "merged":
                m.append(([("K2", n, 0)], f"v_mfma_f32_32x32x16_bf16 {vr(SB,16)}, {ar(KF2,4)}, {ar(QF(i,0),4)}, {vr(CMB,16)}"))
                m.append(([("K2", n, 1)], f"v_mfma_f32_32x32x16_bf16 {vr(SB,16)}, {ar(KF2+4,4)}, {ar(QF(i,1),4)}, {vr(SB,16)}"))
            return m
        def partV(n):
            j = jobs[n]; S = SA[n % 2]; P = PB[n % 2]; v = []
            if j["kind"] == "merged":
                v.append((8, "s_nop 1"))
                for r in range(16): v.append((4, f"v_cndmask_b32 v{S+r}, v{SB+r}, v{S+r}, s[{S_MASK+2*r}:{S_MASK+2*r+1}]"))
            seq = []
            for r in range(16):
                v.append((8, f"v_exp_f32 v{S+r}, v{S+r}"))
                if r >= 2 and r % 2 == 0: v.append((4, f"v_cvt_pk_bf16_f32 v{P+(r-2)//2}, v{S+r-2}, v{S+r-1}"))
            v.append((4, f"s_nop 0"))
            v.append((4, f"v_cvt_pk_bf16_f32 v{P+7}, v{S+14}, v{S+15}"))
            if j["kind"] == "merged":
                for k in range(8):
                    v.append((4, f"v_and_b32 v{PXr+k}, v{PM+k}, v{P+k}"))
                    v.append((4, f"v_bfi_b32 v{PYr+k}, v{PM+k}, 0, v{P+k}"))
            return v
        def partB(n):
            j = jobs[n]; i = j["slot"]; P = PB[n % 2]; m = []
            first = i not in touched
            touched.add(i)
            O = vr(O_(i), 16); L = ar(L_(i), 16)
            if j["kind"] == "full":
                m.append(([("V", n, 0)], f"v_mfma_f32_32x32x16_bf16 {O}, {ar(VF[n%2],4)}, {vr(P,4)}, {'0' if first else O}"))
                m.append(([], f"v_mfma_f32_32x32x16_bf16 {L}, {ar(ONES,4)}, {vr(P,4)}, {'0' if first else L}"))
                m.append(([("V", n, 1)], f"v_mfma_f32_32x32x16_bf16 {O}, {ar(VF[n%2]+4,4)}, {vr(P+4,4)}, {O}"))
                m.append(([], f"v_mfma_f32_32x32x16_bf16 {L}, {ar(ONES,4)}, {vr(P+4,4)}, {L}"))
            else:
                m.append(([("V", n, 0)], f"v_mfma_f32_32x32x16_bf16 {O}, {ar(VF[n%2],4)}, {vr(PXr,4)}, {'0' if first else O}"))
                m.append(([], f"v_mfma_f32_32x32x16_bf16 {L}, {ar(ONES,4)}, {vr(P,4)}, {'0' if first else L}"))
                m.append(([("V", n, 1)], f"v_mfma_f32_32x32x16_bf16 {O}, {ar(VF[n%2]+4,4)}, {vr(PXr+4,4)}, {O}"))
                m.append(([], f"v_mfma_f32_32x32x16_bf16 {L}, {ar(ONES,4)}, {vr(P+4,4)}, {L}"))
                m.append(([("V2", n, 0)], f"v_mfma_f32_32x32x16_bf16 {O}, {ar(VF2,4)}, {vr(PYr,4)}, {O}"))
                m.append(([("V2", n, 1)], f"v_mfma_f32_32x32x16_bf16 {O}, {ar(VF2+4,4)}, {vr(PYr+4,4)}, {O}"))
            return m
        def emit_iter(mf, va, lds):
            total = sum(c for c, _ in va)
            m = len(mf)
            vi = 0; cum = 0
            ldsq = list(lds)
            if m == 0:
                for tag, ins in ldsq:
                    A(ins); trk.issue(tag)
                if va: A("s_nop 7\ns_nop 3")
                for c, ins in va: A(ins)
                return
            for k, (tags, ins) in enumerate(mf):
                need = trk.need(tags) if tags else None
                if need is not None: A(f"s_waitcnt lgkmcnt({need})")
                A(ins)
                nl = (len(ldsq) + (m - k) - 1)//(m - k) if ldsq else 0
                for _ in range(min(nl, len(ldsq))):
                    tag, li = ldsq.pop(0); A(li); trk.issue(tag)
                target = total*(k+1)/m
                while vi < len(va) and (cum < target - 2 or k == m-1):
                    A(va[vi][1]); cum += va[vi][0]; vi += 1
        pendfin = []
        for n in range(-2, N+2):
            mfA = partA(n+1) if 0 <= n+1 < N else []
            mfB = partB(n-1) if 0 <= n-1 < N else []
            mf = []
            ia = ib = 0
            while ia < len(mfA) or ib < len(mfB):
                if ia < len(mfA): mf.append(mfA[ia]); ia += 1
                if ib < len(mfB): mf.append(mfB[ib]); ib += 1
                if ib < len(mfB) and ia >= len(mfA):
                    pass
            va = partV(n) if 0 <= n < N else []
            if pendfin and pendfin[0][0] <= n:
                va = va + pendfin.pop(0)[1]
            lds = []
            if 0 <= n+2 < N: lds += loadK(n+2)
            if 0 <= n < N: lds += loadV(n)
            if n == 0 or (n == -1): pass
            if va and n == 0: A("s_nop 7\ns_nop 3")
            emit_iter(mf, va, lds)
            if 0 <= n-1 < N and final and jobs[n-1]["kind"] == "merged":
                pendfin.append((n+1, fin_ops(jobs[n-1]["slot"])))
            for h in hooks.get(n, []): h()
        while pendfin:
            A("s_nop 7\ns_nop 3")
            for c, ins in pendfin.pop(0)[1]: A(ins)
    def fin_ops(i):
        O = O_(i); L = FT; v = []
        v.append((4, f"v_accvgpr_read_b32 v{L}, a{L_(i)}"))
        v.append((4, f"v_mov_b32 v{L+3}, 0x7f7fffff"))
        v.append((4, f"v_cmp_nle_f32 vcc, s98, v{L}"))
        v.append((8, f"v_rcp_f32 v{L+1}, v{L}"))
        v.append((4, f"v_cmp_nge_f32 s[20:21], s99, v{L}"))
        v.append((4, f"s_or_b64 s[100:101], s[20:21], vcc"))
        for r in range(16): v.append((4, f"v_mul_f32 v{O+r}, v{O+r}, v{L+1}"))
        v.append((4, f"v_max3_f32 v{L+2}, abs(v{O}), abs(v{O+1}), abs(v{O+2})"))
        for r in range(3, 15, 2): v.append((4, f"v_max3_f32 v{L+2}, v{L+2}, abs(v{O+r}), abs(v{O+r+1})"))
        v.append((4, f"v_max_f32 v{L+2}, v{L+2}, abs(v{O+15})"))
        for p in range(2):
            for q, a in enumerate((p, p+2)):
                v.append((4, f"v_cvt_pk_bf16_f32 v{L+4+4*p+2*q}, v{O+4*a}, v{O+4*a+1}"))
                v.append((4, f"v_cvt_pk_bf16_f32 v{L+4+4*p+2*q+1}, v{O+4*a+2}, v{O+4*a+3}"))
        v.append((4, f"v_cmp_nle_f32 vcc, v{L+2}, v{L+3}"))
        v.append((4, f"s_add_u32 s21, s97, {i*131072}"))
        v.append((4, f"s_or_b64 s[100:101], s[100:101], vcc"))
        v.append((4, f"buffer_store_dwordx4 {vr(L+4,4)}, v{V_OS}, s[{S_O}:{S_O+3}], s21 offen sc1"))
        v.append((4, f"buffer_store_dwordx4 {vr(L+8,4)}, v{V_OS}, s[{S_O}:{S_O+3}], s21 offen offset:512 sc1"))
        v.append((4, f"s_cmp_lg_u64 s[100:101], 0"))
        v.append((4, f"s_cselect_b32 s{S_FB}, 1, s{S_FB}"))
        return v

    def hook_signal():
        A("s_waitcnt vmcnt(0)\ns_barrier")
        stamp(7)
        A(f"s_cmp_eq_u32 s{S_MB}, 7\ns_cbranch_scc1 .LB_nosig")
        A(f"s_lshl_b32 s20, s{S_HP}, 2\ns_lshl_b32 s21, 1, s{S_MB}")
        signal(A, "B", 20, 21, 10)
        A.label(".LB_nosig")
    run_pipeline(mkjobs(1), {3: [hook_signal]}, False)
    stamp(8)
    A(f"s_cmp_eq_u32 s{S_MB}, 0\ns_cbranch_scc1 .LB_nopoll")
    A(f"s_lshl_b32 s20, s{S_HP}, 2\ns_sub_u32 s22, s{S_MB}, 1")
    poll(A, "B", 20, "s_bitcmp1_b32 s16, s22", 10)
    A.label(".LB_nopoll")
    A("s_barrier")
    stamp(9)
    A(f"s_cmp_eq_u32 s{S_MB}, 0\ns_cbranch_scc1 .LB_noload")
    A(f"""s_sub_u32 s20, s{S_MB}, 1
s_lshl_b32 s20, s20, 4
s_add_u32 s20, s20, s{S_HP}
s_lshl_b32 s20, s20, 2
s_add_u32 s20, s20, s{S_WAVE}
s_lshl_b32 s20, s20, 14
s_add_u32 s20, s20, {HALO}
""")
    for k in range(16):
        A(f"s_add_u32 s21, s20, {(k//4)*4096}")
        A(f"buffer_load_dwordx4 {ar(HS+4*k,4)}, v{V_HL}, s[{S_O}:{S_O+3}], s21 offen offset:{(k%4)*1024} sc1")
    A(f"v_subrev_u32 v12, 16384, v{V_KW}\nv_subrev_u32 v13, 16384, v{V_VW}")
    for k in range(16):
        A(f"s_waitcnt vmcnt({15-k})")
        a = k % 8
        for b in range(2):
            if k < 8: A(f"ds_write_b64 v12, {ar(HS+4*k+2*b,2)} offset:{kq_off(a,b)}")
            else: A(f"ds_write_b64 v13, {ar(HS+4*k+2*b,2)} offset:{v_off(a,b)}")
    A.label(".LB_noload")
    A("s_waitcnt lgkmcnt(0)\ns_barrier")
    stamp(4)
    run_pipeline(mkjobs(2), {}, True)
    A(f"s_cmp_eq_u32 s{S_FB}, 0\ns_cbranch_scc1 .LB_end")
    gen_fallback(A)
    A.label(".LB_end")

def gen_fallback(A):
    S = 64; O = 128; L = 208; P = 112
    A(f"""s_waitcnt vmcnt(0)
s_mov_b32 s16, 0                     ; slot
v_and_b32 v2, 31, v0                ; q
v_lshrrev_b32 v3, 5, v0
v_lshlrev_b32 v3, 2, v3            ; 4h
.LFB_slot:
s_lshr_b32 s17, s{S_WAVE}, 1
s_lshl_b32 s18, s16, 1
s_add_u32 s17, s17, s18              ; qt
s_lshl_b32 s18, s16, 12
v_add_u32 v4, s18, v{V_QR}
ds_read_b128 a[128:131], v4
ds_read_b128 a[132:135], v4 offset:1024
s_lshl_b32 s18, s17, 5
s_add_u32 s18, s18, 256
v_add_u32 v5, s18, v2              ; qp
v_mov_b32 v6, {NEGBIG}
s_mov_b32 s19, 0                     ; pass
.LFB_pass:
s_mov_b32 s18, 0                     ; delta 0..8
.LFB_blk:
s_add_u32 s20, s17, 8
s_sub_u32 s20, s20, s18
s_cmp_lg_u32 s{S_MB}, 0
s_cbranch_scc1 .LFB_ok
s_cmp_lt_u32 s20, 8
s_cbranch_scc1 .LFB_next
.LFB_ok:
s_lshr_b32 s21, s{S_WAVE}, 1
s_sub_u32 s21, s20, s21
s_lshl_b32 s21, s21, 11
v_add_u32 v7, s21, v{V_KR}
v_add_u32 v8, s21, v{V_VR}
ds_read_b128 a[160:163], v7
ds_read_b128 a[164:167], v7 offset:1024
ds_read_b128 a[184:187], v8
ds_read_b128 a[188:191], v8 offset:1024
s_waitcnt lgkmcnt(0)
v_mfma_f32_32x32x16_bf16 {vr(S,16)}, a[160:163], a[128:131], 0
v_mfma_f32_32x32x16_bf16 {vr(S,16)}, a[164:167], a[132:135], {vr(S,16)}
s_lshl_b32 s21, s20, 5
v_add_u32 v9, s21, v3
v_sub_u32 v9, v5, v9
s_nop 7
s_nop 3
""")
    for r in range(16):
        key = 8*(r//4) + r % 4
        A(f"v_subrev_u32 v10, {key}, v9")
        A(f"v_cmp_gt_u32 vcc, 0x100, v10")
        A(f"v_mov_b32 v11, {NEGBIG}")
        A("s_nop 0")
        A(f"v_cndmask_b32 v{S+r}, v11, v{S+r}, vcc")
    A("s_cmp_eq_u32 s19, 1\ns_cbranch_scc1 .LFB_p2")
    for r in range(16): A(f"v_max_f32 v6, v6, v{S+r}")
    A("s_branch .LFB_next")
    A.label(".LFB_p2")
    for r in range(16):
        A(f"v_sub_f32 v{S+r}, v{S+r}, v6")
    for r in range(16): A(f"v_exp_f32 v{S+r}, v{S+r}")
    A("s_nop 0")
    for k in range(8): A(f"v_cvt_pk_bf16_f32 v{P+k}, v{S+2*k}, v{S+2*k+1}")
    A("s_nop 1")
    A(f"v_mfma_f32_32x32x16_bf16 {vr(O,16)}, a[184:187], {vr(P,4)}, {vr(O,16)}")
    A(f"v_mfma_f32_32x32x16_bf16 {vr(L,16)}, {ar(ONES,4)}, {vr(P,4)}, {vr(L,16)}")
    A(f"v_mfma_f32_32x32x16_bf16 {vr(O,16)}, a[188:191], {vr(P+4,4)}, {vr(O,16)}")
    A(f"v_mfma_f32_32x32x16_bf16 {vr(L,16)}, {ar(ONES,4)}, {vr(P+4,4)}, {vr(L,16)}")
    A("s_nop 7\ns_nop 7")
    A.label(".LFB_next")
    A("s_add_u32 s18, s18, 1\ns_cmp_le_u32 s18, 8\ns_cbranch_scc1 .LFB_blk")
    A("s_cmp_eq_u32 s19, 1\ns_cbranch_scc1 .LFB_fin")
    A("v_mov_b32 v7, v6\ns_nop 1\nv_permlane32_swap_b32 v6, v7\ns_nop 1\nv_max_f32 v6, v6, v7")
    for r in range(16): A(f"v_mov_b32 v{O+r}, 0\nv_mov_b32 v{L+r}, 0")
    A("s_mov_b32 s19, 1\ns_branch .LFB_pass")
    A.label(".LFB_fin")
    A(f"v_rcp_f32 v{L+1}, v{L}\ns_nop 0")
    for r in range(16): A(f"v_mul_f32 v{O+r}, v{O+r}, v{L+1}")
    for p in range(2):
        for q, a in enumerate((p, p+2)):
            A(f"v_cvt_pk_bf16_f32 v{L+4+4*p+2*q}, v{O+4*a}, v{O+4*a+1}")
            A(f"v_cvt_pk_bf16_f32 v{L+4+4*p+2*q+1}, v{O+4*a+2}, v{O+4*a+3}")
    A(f"""s_lshl_b32 s21, s16, 17
s_add_u32 s21, s21, s97
buffer_store_dwordx4 {vr(L+4,4)}, v{V_OS}, s[{S_O}:{S_O+3}], s21 offen sc1
buffer_store_dwordx4 {vr(L+8,4)}, v{V_OS}, s[{S_O}:{S_O+3}], s21 offen offset:512 sc1
s_add_u32 s16, s16, 1
s_cmp_lt_u32 s16, 4
s_cbranch_scc1 .LFB_slot
""")


def early_setup_B(A):
    A(f"""; ---- B phase2 constants
v_and_b32 v13, 15, v0               ; r / c16
v_lshrrev_b32 v14, 4, v0            ; g
s_and_b32 s16, s{S_WAVE}, 1         ; wn
s_lshr_b32 s17, s{S_WAVE}, 1
s_lshl_b32 s18, s16, 15
s_lshl_b32 s19, s17, 13
s_add_u32 s18, s18, s19
s_add_u32 s18, s18, 16384
v_lshrrev_b32 v16, 1, v14
v_lshlrev_b32 v16, 9, v16
v_lshlrev_b32 v17, 4, v13
v_add_u32 v16, v16, v17
v_and_b32 v18, 1, v14
v_lshlrev_b32 v18, 3, v18
v_add_u32 v16, v16, v18
v_add_u32 v{V_KW}, s18, v16
s_lshl_b32 s20, s16, 14
s_add_u32 s20, s20, s19
s_add_u32 s20, s20, {QBASE}
v_add_u32 v{V_QW}, s20, v16
v_and_b32 v16, 1, v14
v_lshlrev_b32 v16, 9, v16
v_add_u32 v16, v16, v17
v_lshrrev_b32 v18, 1, v14
v_lshlrev_b32 v18, 3, v18
v_add_u32 v16, v16, v18
s_add_u32 s18, s18, {VBASE}
v_add_u32 v{V_VW}, s18, v16
v_lshlrev_b32 v{V_HL}, 4, v0
s_lshl_b32 s18, s16, 15
s_lshl_b32 s19, s17, 11
s_add_u32 s18, s18, s19
v_add_u32 v{V_KR}, s18, v{V_HL}
v_add_u32 v{V_VR}, {VBASE}, v{V_KR}
s_lshl_b32 s18, s16, 14
s_add_u32 s18, s18, s19
s_add_u32 s18, s18, {QBASE}
v_add_u32 v{V_QR}, s18, v{V_HL}
v_bfe_u32 v16, v0, 4, 1
v_lshlrev_b32 v16, 15, v16
v_lshrrev_b32 v17, 5, v0
v_lshlrev_b32 v18, 8, v17
v_add_u32 v16, v16, v18
v_and_b32 v18, 15, v0
v_lshlrev_b32 v18, 4, v18
v_add_u32 v{V_OS}, v16, v18
; t = q - 4h
v_and_b32 v16, 31, v0
v_lshlrev_b32 v17, 2, v17
v_sub_u32 v{V_T}, v16, v17
v_mov_b32 v13, 0xffff
v_mov_b32 v14, 0xffff0000
""")
    for k in range(8):
        k0 = 8*((2*k)//4) + (2*k) % 4; k1 = 8*((2*k+1)//4) + (2*k+1) % 4
        A(f"v_cmp_le_i32 vcc, {k0}, v{V_T}")
        A(f"v_cmp_le_i32 s[20:21], {k1}, v{V_T}")
        A("s_nop 0")
        A(f"v_cndmask_b32 v1, 0, v13, vcc")
        A(f"v_cndmask_b32 v{PM+k}, 0, v14, s[20:21]")
        A(f"v_or_b32 v{PM+k}, v{PM+k}, v1")
    A(f"""s_cmp_eq_u32 s{S_MB}, 0
s_cselect_b32 s16, {NEGBIG}, 0
s_cmp_lt_u32 s{S_WAVE}, 2
s_cselect_b32 s17, s16, 0
""")
    for r in range(16):
        A(f"v_mov_b32 v{CMA+r}, s17")
        A(f"v_mov_b32 v{CMB+r}, s16")
```

```python
from asmgen import *
O_IMG = 0x2000000

def gen_k3(A, OPT, name="k3_kernel", stamps=False):
    NSLOT = 4
    SLOT = 32768
    ACC = 64
    def acc(a, c): return ACC + (a*4 + c)*4
    FX = [0, 32]; FW = [16, 48]
    V_O, V_WA, V_WB, V_RX, V_RW = 2, 3, 4, 5, 6
    S_X = 4; S_W = 8; S_OUT = 12
    S_M0 = 40; S_CNT = 41; S_WAVE = 42; S_BR = 43; S_RT = 44; S_CT = 45
    S_XC = 24
    S_WC = 28
    S_T0 = 48
    def dma_list(slot):
        g = []
        for i in range(4):
            pre = [f"s_add_u32 m0, s{S_M0}, {slot*SLOT}"] if i == 0 else []
            so = "0" if i == 0 else f"s{S_XC+i-1}"
            g.append((pre, f"buffer_load_dwordx4 v{V_O}, s[{S_X}:{S_X+3}], {so} offen " + (f"offset:{i*1024} " if i else "") + "lds"))
        for i in range(4):
            pre = [f"s_add_u32 m0, s{S_M0}, {slot*SLOT + 16384}"] if i == 0 else []
            so = "0" if i == 0 else f"s{S_WC+i-1}"
            v = V_WA if i % 2 == 0 else V_WB
            g.append((pre, f"buffer_load_dwordx4 v{v}, s[{S_W}:{S_W+3}], {so} offen " + (f"offset:{i*1024} " if i else "") + "lds"))
        return g
    def advance():
        return [f"s_add_u32 s{S_X}, s{S_X}, 2048", f"s_addc_u32 s{S_X+1}, s{S_X+1}, 0", f"s_sub_u32 s{S_X+2}, s{S_X+2}, 2048",
                f"s_add_u32 s{S_W}, s{S_W}, {64*2048}", f"s_addc_u32 s{S_W+1}, s{S_W+1}, 0", f"s_sub_u32 s{S_W+2}, s{S_W+2}, {64*2048}"]
    def reads(slot, t, fs):
        r = []
        hi = slot >= 2
        so = (slot & 1)*SLOT
        def X(a): return (("X", a, fs), f"ds_read_b128 {ar(FX[fs]+4*a,4)}, v{V_RX + (10 if hi else 0)} offset:{so + a*2048 + t*1024}")
        def W(c, u): return (("W", c, u, fs), f"ds_read_b64_tr_b16 {ar(FW[fs]+4*c+2*u,2)}, v{V_RW + c + (10 if hi else 0)} offset:{so + t*8192 + u*4096}")
        r += [W(0,0), W(0,1), X(0), X(1), X(2), X(3)]
        for c in range(1, 4): r += [W(c,0), W(c,1)]
        return r
    def mfma(a, c, fs):
        d = vr(acc(a,c), 4)
        return f"v_mfma_f32_16x16x32_bf16 {d}, {ar(FW[fs]+4*c,4)}, {ar(FX[fs]+4*a,4)}, {d}"
    carry = []
    def stage(trk, s, dma, last, vm):
        slot = s % NSLOT
        for t in range(2):
            fs = t
            fill = [[] for _ in range(16)]
            if t == 0:
                for pos, item in carry: fill[pos].append(item)
                carry.clear()
                for g, x in enumerate(reads(slot, 1, 1)): fill[g].append(("lds",) + x)
            else:
                if not last:
                    for g, x in enumerate(reads((slot+1) % NSLOT, 0, 0)): fill[g+1].append(("lds",) + x)
                if dma:
                    dl = dma_list((s + NSLOT) % NSLOT)
                    GS = OPT.get("k3step", 4)
                    for g, d in enumerate(dl):
                        pos = 1 + GS*g
                        if pos > 15: carry.append((pos - 16, ("dma", d)))
                        else: fill[pos].append(("dma", d))
                    lastpos = 1 + GS*7
                    if lastpos > 15: carry.append((min(lastpos - 16 + 1, 15), ("raw", advance())))
                    else: fill[15].append(("raw", advance()))
            n = 0
            for c in range(4):
                for a in range(4):
                    need = trk.need([("X", a, fs), ("W", c, 0, fs), ("W", c, 1, fs)])
                    if t == 1 and n == 0 and not last:
                        A("s_waitcnt lgkmcnt(0)"); trk.all_done()
                    elif need is not None:
                        A(f"s_waitcnt lgkmcnt({need})")
                    A(mfma(a, c, fs))
                    if t == 1 and n == 0 and not last:
                        A(f"s_waitcnt vmcnt({vm})")
                        A("s_barrier")
                    m0w = False; between = 0
                    for f in fill[n]:
                        if f[0] == "dma":
                            for p in f[1][0]:
                                A(p); m0w = True
                    for f in fill[n]:
                        if f[0] == "lds":
                            A(f[2]); between += 1
                            trk.issue(f[1])
                    for f in fill[n]:
                        if f[0] == "dma":
                            if m0w and between == 0: A("s_nop 0")
                            A(f[1][1])
                    for f in fill[n]:
                        if f[0] == "raw":
                            for p in f[1]: A(p)
                    n += 1
    A(f".globl {name}\n.p2align 8\n.type {name},@function\n{name}:")
    if stamps: A(f"s_memrealtime s[{S_T0}:{S_T0+1}]")
    A(f"""s_cmp_ge_u32 s2, 256
s_cbranch_scc1 .L{name}_done
s_and_b32 s16, s2, 7
s_lshr_b32 s17, s2, 3
s_and_b32 s{S_BR}, s16, 1
s_lshr_b32 s16, s16, 1
s_lshl_b32 s16, s16, 2
s_and_b32 s18, s17, 3
s_add_u32 s{S_RT}, s16, s18
s_lshr_b32 s{S_CT}, s17, 2
s_mul_i32 s16, s{S_BR}, 24
s_add_u32 s16, s16, 16
s_load_dwordx2 s[20:21], s[0:1], s16
s_load_dwordx2 s[22:23], s[0:1], 64
s_load_dwordx2 s[{S_OUT}:{S_OUT+1}], s[0:1], 48
v_lshrrev_b32 v1, 6, v0
v_and_b32 v0, 63, v0
v_readfirstlane_b32 s{S_WAVE}, v1
s_mov_b32 s{S_OUT+2}, 0x800000
s_mov_b32 s{S_OUT+3}, 0x20000
""")
    if OPT.get("cpf", 1):
        import k1_gen
        k1_gen.code_prefetch(A, "k3", name, ".Lall_text_end", 30, 32, False, n=2, sbase=16)
    for i in range(1, 4):
        A(f"s_mov_b32 s{S_XC+i-1}, {(i>>1)*32768 + (i&1)*1024 - i*1024}")
        A(f"s_mov_b32 s{S_WC+i-1}, {i*4*2048 - i*1024}")
    A(f"""s_lshl_b32 s{S_M0}, s{S_WAVE}, 12
v_lshlrev_b32 v20, 4, v0
s_lshl_b32 s16, s{S_WAVE}, 16
v_add_u32 v{V_O}, s16, v20
v_lshrrev_b32 v21, 4, v0            ; g = l>>4
v_and_b32 v22, 15, v0
v_lshlrev_b32 v23, 1, v21
v_xor_b32 v23, v22, v23
v_lshlrev_b32 v23, 4, v23
s_lshl_b32 s16, s{S_WAVE}, 4
v_add_u32 v24, s16, v21
v_lshlrev_b32 v24, 11, v24
v_add_u32 v{V_WA}, v24, v23
v_xor_b32 v{V_WB}, 128, v{V_WA}
s_lshr_b32 s16, s{S_WAVE}, 1
s_lshl_b32 s16, s16, 13
v_add_u32 v{V_RX}, s16, v20
v_add_u32 v{V_RX+10}, 0x10000, v{V_RX}
v_bfe_u32 v22, v0, 2, 2             ; r
v_lshlrev_b32 v23, 2, v21           ; 4g
v_add_u32 v23, v23, v22             ; k (0..15)
v_and_b32 v24, 7, v23               ; k&7
v_lshlrev_b32 v23, 8, v23           ; k*256
v_and_b32 v25, 3, v0
v_lshlrev_b32 v25, 3, v25
v_add_u32 v23, v23, v25
v_add_u32 v23, 0x4000, v23
s_and_b32 s16, s{S_WAVE}, 1
s_lshl_b32 s16, s16, 2              ; 4wn
""")
    for c in range(4):
        A(f"s_add_u32 s17, s16, {c}\nv_xor_b32 v25, s17, v24\nv_lshlrev_b32 v25, 5, v25\nv_add_u32 v{V_RW+c}, v23, v25\nv_add_u32 v{V_RW+c+10}, 0x10000, v{V_RW+c}")
    A(f"""s_waitcnt lgkmcnt(0)
s_lshl_b32 s16, s{S_BR}, 22
s_lshl_b32 s17, s{S_RT}, 18
s_add_u32 s16, s16, s17
s_add_u32 s16, s16, {O_IMG}
s_add_u32 s{S_X}, s22, s16
s_addc_u32 s{S_X+1}, s23, 0
s_mov_b32 s{S_X+2}, 0x40000
s_mov_b32 s{S_X+3}, 0x20000
s_lshl_b32 s16, s{S_CT}, 8
s_add_u32 s{S_W}, s20, s16
s_addc_u32 s{S_W+1}, s21, 0
s_sub_u32 s{S_W+2}, 0x200000, s16
s_mov_b32 s{S_W+3}, 0x20000
""")
    for s in range(NSLOT):
        for pre, ins in dma_list(s):
            for p in pre: A(p)
            A("s_nop 0"); A(ins)
        for p in advance(): A(p)
    for r in range(ACC, ACC+64): A(f"v_mov_b32 v{r}, 0")
    A(f"s_waitcnt vmcnt({8*(NSLOT-1)})\ns_barrier")
    if stamps:
        A(f"s_memrealtime s[{S_T0+2}:{S_T0+3}]\ns_memtime s[{S_T0+8}:{S_T0+9}]\ns_waitcnt lgkmcnt(0)")
    trk = LgkmTracker()
    for tag, ins in reads(0, 0, 0):
        A(ins); trk.issue(tag)
    A(f"s_mov_b32 s{S_CNT}, 0")
    stage(trk, 0, True, False, 8*(NSLOT-2))
    A(".p2align 6")
    A.label(f".L{name}_loop")
    for s in range(1, NSLOT+1): stage(trk, s, True, False, 8*(NSLOT-2))
    A(f"s_add_u32 s{S_CNT}, s{S_CNT}, 1\ns_cmp_lt_u32 s{S_CNT}, 2\ns_cbranch_scc1 .L{name}_loop")
    stage(trk, 9, True, False, 16)
    stage(trk, 10, True, False, 16)
    stage(trk, 11, True, False, 16)
    stage(trk, 12, False, False, 16)
    stage(trk, 13, False, False, 8)
    stage(trk, 14, False, False, 0)
    stage(trk, 15, False, True, 0)
    if stamps:
        A(f"s_memrealtime s[{S_T0+4}:{S_T0+5}]\ns_memtime s[{S_T0+10}:{S_T0+11}]")
    A("s_nop 7\ns_nop 7")
    A(f"""v_and_b32 v20, 15, v0
s_lshl_b32 s16, s{S_RT}, 7
s_lshr_b32 s17, s{S_WAVE}, 1
s_lshl_b32 s17, s17, 6
s_add_u32 s16, s16, s17
v_add_u32 v20, s16, v20
v_lshlrev_b32 v20, 12, v20
v_lshrrev_b32 v21, 4, v0
v_and_b32 v22, 1, v21
v_lshlrev_b32 v22, 5, v22            ; 16 cols*2B
v_lshrrev_b32 v21, 1, v21
v_lshlrev_b32 v21, 4, v21            ; 8 cols*2B
v_add_u32 v20, v20, v22
v_add_u32 v20, v20, v21
s_lshl_b32 s16, s{S_BR}, 11
s_lshl_b32 s17, s{S_CT}, 8
s_add_u32 s16, s16, s17
s_and_b32 s17, s{S_WAVE}, 1
s_lshl_b32 s17, s17, 7
s_add_u32 s16, s16, s17
v_add_u32 v20, s16, v20
""")
    k = 0
    for a in range(4):
        A(f"s_mov_b32 s17, {a*16*4096}")
        for cp in range(2):
            tmp = 24 + 4*(k % 4); k += 1
            b0 = acc(a, 2*cp); b1 = acc(a, 2*cp+1)
            A(f"v_cvt_pk_bf16_f32 v{tmp}, v{b0}, v{b0+1}")
            A(f"v_cvt_pk_bf16_f32 v{tmp+1}, v{b0+2}, v{b0+3}")
            A(f"v_cvt_pk_bf16_f32 v{tmp+2}, v{b1}, v{b1+1}")
            A(f"v_cvt_pk_bf16_f32 v{tmp+3}, v{b1+2}, v{b1+3}")
            A("s_nop 1")
            A(f"v_permlane16_swap_b32 v{tmp}, v{tmp+2}")
            A(f"v_permlane16_swap_b32 v{tmp+1}, v{tmp+3}")
            A(f"buffer_store_dwordx4 v[{tmp}:{tmp+3}], v20, s[{S_OUT}:{S_OUT+3}], s17 offen offset:{cp*64} {OPT.get('ost', '')}")
    if stamps:
        A(f"""s_waitcnt vmcnt(0)
s_memrealtime s[{S_T0+6}:{S_T0+7}]
s_waitcnt lgkmcnt(0)
s_cmp_lg_u32 s{S_WAVE}, 0
s_cbranch_scc1 .L{name}_done
""")
        for q in range(12): A(f"v_mov_b32 v{20+q}, s{S_T0+q}")
        A(f"""s_mov_b32 s{S_OUT}, s22
s_mov_b32 s{S_OUT+1}, s23
s_mov_b32 s{S_OUT+2}, 0x10000000
s_lshl_b32 s16, s2, 6
s_add_u32 s16, s16, 0x8010000
v_mov_b32 v40, s16
v_cmp_eq_u32 vcc, 0, v0
s_and_saveexec_b64 s[18:19], vcc
s_cbranch_execz .L{name}_done
buffer_store_dwordx4 v[20:23], v40, s[{S_OUT}:{S_OUT+3}], 0 offen
buffer_store_dwordx4 v[24:27], v40, s[{S_OUT}:{S_OUT+3}], 0 offen offset:16
buffer_store_dwordx4 v[28:31], v40, s[{S_OUT}:{S_OUT+3}], 0 offen offset:32
""")
    A.label(f".L{name}_done")
    A("s_endpgm")
    A.label(".Lall_text_end")
    return kdesc(name, 192, 128, 64), NSLOT*SLOT

if __name__ == "__main__":
    import sys
    A = Asm()
    B = Asm()
    kd, lds = gen_k3(B, {}, stamps=True)
    A(f"; @launch kernel=k3_kernel grid=(256,1,1) block=(256,1,1) lds={lds}")
    A('.amdgcn_target "amdgcn-amd-amdhsa--gfx950"\n.text')
    A(B.text())
    A('.section .rodata,"a"')
    A(kd)
    open("k3.s", "w").write(A.text())
```

```python
from asmgen import *
O_IMG = 0x2000000
HALO  = 0x1000000
PART  = 0x1800000
STAMP = 0x8000000
FLG = 0x1C00000
V_FL = 62
LOG2E = 0x3fb8aa3b
QSCALE = 0x3e8293ee
EPS = 0x358637bd
NEGBIG = 0xf149f2ca

XSLOT = 32768
WB = 98304
WSL = [WB, WB+24576]
LDS1 = 163840
ACC = 64
def acc(a, c): return ACC + (a*6 + c)*4
FX = [0, 64]; FW = [32, 96]
V_XA, V_XB, V_WA, V_WB = 2, 3, 4, 5
V_RX = [6, 7]; V_RW = 8
V_PX = 10; V_PW = 11; V_DUM = 12
S_X = 4; S_W = 8; S_O = 12
S_XC = 64; S_WC = 80
S_M0X = 40; S_M0W = 41; S_CNT = 42; S_BR = 43; S_MB = 44; S_HP = 45; S_WAVE = 46
S_T0 = 48
S_D = 60
S_MASK = 64
S_FB = 96
S_KX = 37; S_KW = 38; S_XR = 39


def gen_k1(A, OPT, name="k1_kernel"):
    stamps = OPT.get("stamps", 0)
    ROT = OPT.get("rot", 4); GSTEP = OPT.get("gstep", 4); GAP0 = OPT.get("gap0", 2)
    DX = OPT.get("dx", 2); DW = OPT.get("dw", 2)
    def xdma(w3):
        g = []
        n = 14 if w3 else 6
        for m in range(n):
            pre = [f"s_add_u32 m0, s{S_M0X}, {(m//4)*4096}"] if m % 4 == 0 else []
            so = "0" if m == 0 else f"s{S_XC + m - 1}"
            v = V_XA if m % 2 == 0 else V_XB
            off = (m % 4)*1024
            g.append((pre, f"buffer_load_dwordx4 v{v}, s[{S_X}:{S_X+3}], {so} offen " + (f"offset:{off} " if off else "") + "lds"))
        return g
    def wdma(slot):
        g = []
        for u in range(8):
            pre = [f"s_add_u32 m0, s{S_M0W}, {WSL[slot] + (u//4)*4096}"] if u % 4 == 0 else []
            so = "0" if u == 0 else f"s{S_WC + u - 1}"
            v = V_WA if u % 2 == 0 else V_WB
            off = (u % 4)*1024
            g.append((pre, f"buffer_load_dwordx4 v{v}, s[{S_W}:{S_W+3}], {so} offen " + (f"offset:{off} " if off else "") + "lds"))
        return g
    def warm():
        return [([], f"buffer_load_dword v{V_DUM}, v{V_PX}, s[{S_X}:{S_X+3}], 0 offen"),
                ([], f"buffer_load_dword v{V_DUM}, v{V_PW}, s[{S_W}:{S_W+3}], 0 offen")]
    def padv():
        return ["s_add_u32 s90, s90, 1", "s_cmp_eq_u32 s90, 16", "s_cselect_b32 s16, s100, s101", "s_and_b32 s90, s90, 15", f"v_add_u32 v{V_PX}, s16, v{V_PX}",
                "s_add_u32 s91, s91, 1", "s_cmp_eq_u32 s91, 16", "s_cselect_b32 s16, s98, s99", "s_and_b32 s91, s91, 15", f"v_add_u32 v{V_PW}, s16, v{V_PW}"]
    def xadv():
        return [f"s_add_u32 s{S_KX}, s{S_KX}, 1", f"s_cmp_eq_u32 s{S_KX}, 16", f"s_cselect_b32 s16, s100, s101", f"s_and_b32 s{S_KX}, s{S_KX}, 15",
                f"v_add_u32 v{V_XA}, s16, v{V_XA}", f"v_add_u32 v{V_XB}, s16, v{V_XB}",
                f"s_add_u32 s{S_M0X}, s{S_M0X}, {XSLOT}", f"s_cmp_ge_u32 s{S_M0X}, {3*XSLOT}", f"s_cselect_b32 s16, {3*XSLOT}, 0", f"s_sub_u32 s{S_M0X}, s{S_M0X}, s16"]
    def wadv():
        return [f"s_add_u32 s{S_KW}, s{S_KW}, 1", f"s_cmp_eq_u32 s{S_KW}, 16", f"s_cselect_b32 s16, s98, s99", f"s_and_b32 s{S_KW}, s{S_KW}, 15",
                f"v_add_u32 v{V_WA}, s16, v{V_WA}", f"v_add_u32 v{V_WB}, s16, v{V_WB}"]
    def xradv(t):
        c = S_XR if t == 0 else 47
        return [f"s_add_u32 s{c}, s{c}, 1", f"s_cmp_eq_u32 s{c}, 3", f"s_cselect_b32 s17, s97, s96", f"s_cselect_b32 s{c}, 0, s{c}",
                f"v_add_u32 v{V_RX[t]}, s17, v{V_RX[t]}"]
    def reads(wslot, t, fs):
        r = []
        def X(a): return (("X", a, fs), f"ds_read_b128 {ar(FX[fs]+4*a,4)}, v{V_RX[t]} offset:{a*2048}")
        def W(c, u):
            j, b = c//2, c % 2
            return (("W", c, u, fs), f"ds_read_b64_tr_b16 {ar(FW[fs]+4*c+2*u,2)}, v{V_RW + b} offset:{WSL[wslot]-WB + j*8192 + t*4096 + u*512}")
        r.append(X(0))
        for c in range(6): r += [W(c,0), W(c,1)]
        for a in range(1, 8): r.append(X(a))
        return r
    def mfma(a, c, fs, swap, zero=False):
        x = ar(FX[fs]+4*a, 4); w = ar(FW[fs]+4*c, 4); d = vr(acc(a,c), 4)
        if swap[c//2]: x, w = w, x
        return f"v_mfma_f32_16x16x32_bf16 {d}, {x}, {w}, {'0' if zero else d}"
    carry = []
    def stage(trk, par, swap, do_x, do_w, do_warm, vm_bar, last, w3, extra=None, first=False, valu=None):
        for t in range(2):
            fs = t
            fill = [[] for _ in range(48)]
            if t == 0:
                for pos, item in carry: fill[pos].append(item)
                carry.clear()
                for g, x in enumerate(reads(par, 1, 1)): fill[2*g].append(("lds",) + x)
                fill[41].append(("raw", xradv(1)))
                if not last: fill[43].append(("raw", xradv(0)))
            else:
                if not last:
                    for g, x in enumerate(reads(par ^ 1, 0, 0)): fill[2*g+2].append(("lds",) + x)
                vm = []
                if do_w and not w3:
                    vm += [(d, None) for d in wdma(par)]; vm[-1] = (vm[-1][0], wadv())
                if do_x:
                    vm += [(d, None) for d in xdma(w3)]; vm[-1] = (vm[-1][0], xadv())
                if w3 and do_warm:
                    vm += [(d, None) for d in warm()]; vm[-1] = (vm[-1][0], padv())
                for g, (d, adv) in enumerate(vm):
                    pos = GAP0 + GSTEP*g
                    if pos > 47:
                        carry.append((pos - 48, ("dma", d)))
                        if adv: carry.append((pos - 48, ("raw", adv)))
                    else:
                        fill[pos].append(("dma", d))
                        if adv: fill[pos].append(("raw", adv))
            if t == 1 and extra: fill[3].append(("call", extra))
            if valu is not None:
                for gp in range(1, 48):
                    k = 1 if (gp % 2 == 1 or gp >= 40) else 0
                    for _ in range(k):
                        if valu: fill[gp].append(("raw", valu.pop(0).split("|")))
            n = 0
            for a in range(8):
                for c in range(6):
                    need = trk.need([("X", a, fs), ("W", c, 0, fs), ("W", c, 1, fs)])
                    if t == 1 and n == 0 and not last:
                        A("s_waitcnt lgkmcnt(0)"); trk.all_done()
                    elif need is not None:
                        A(f"s_waitcnt lgkmcnt({need})")
                    A(mfma(a, c, fs, swap, first and t == 0))
                    if t == 1 and n == 0 and not last:
                        A(f"s_waitcnt vmcnt({vm_bar})")
                        A("s_barrier")
                    m0w = False; between = 0
                    for f in fill[n]:
                        if f[0] == "dma":
                            for p in f[1][0]:
                                A(p); m0w = True
                    for f in fill[n]:
                        if f[0] == "lds":
                            A(f[2]); between += 1
                            trk.issue(f[1])
                    for f in fill[n]:
                        if f[0] == "dma":
                            if m0w and between == 0: A("s_nop 0")
                            A(f[1][1])
                    for f in fill[n]:
                        if f[0] == "raw":
                            for p in f[1]: A(p)
                        if f[0] == "call": f[1]()
                    n += 1
    def gen_main(tag, swap, w3):
        trk = LgkmTracker()
        for tg, ins in reads(0, 0, 0):
            A(ins); trk.issue(tg)
        A(f"s_mov_b32 s{S_CNT}, 0")
        nx_ = 14 if w3 else 6; nwarm = 2 if w3 else 0
        vm = nx_ if not w3 else (nwarm + nx_ + nwarm)
        stage(trk, 0, swap, True, True, True, nx_ + nwarm, False, w3, first=True)
        A(".p2align 6"); A.label(f".L{tag}_loop")
        stage(trk, 1, swap, True, True, True, vm, False, w3)
        stage(trk, 0, swap, True, True, True, vm, False, w3)
        A(f"s_add_u32 s{S_CNT}, s{S_CNT}, 1\ns_cmp_lt_u32 s{S_CNT}, 6\ns_cbranch_scc1 .L{tag}_loop")
        ex = None
        if w3 and OPT.get("cpf", 1):
            ex = lambda: code_prefetch(A, "late" + tag, ".Lph2_A", ".Lall_text_end", 10, V_DUM, True, n=4, sbase=20)
        vl = None
        if tag.startswith("B"):
            from k1b_gen import early_setup_B
            T = Asm(); early_setup_B(T)
            vl = [l.split(';')[0].strip() for l in T.lines if l.split(';')[0].strip()]
        stage(trk, 1, swap, False, True, False, vm, False, w3, ex, valu=vl)
        stage(trk, 0, swap, False, False, False, 0, False, w3, valu=vl)
        stage(trk, 1, swap, False, False, False, 0, True, w3, valu=vl)
        if vl:
            for l in vl:
                for p in l.split("|"): A(p)
    def stamp(i):
        if not stamps: return
        if i < 6: A(f"s_memrealtime s[{S_T0+2*i}:{S_T0+2*i+1}]")
        else: A(f"s_memrealtime s[{4+2*(i-6)}:{5+2*(i-6)}]")

    A(f".globl {name}\n.p2align 8\n.type {name},@function\n{name}:")
    stamp(0)
    A(f"""s_load_dwordx4 s[16:19], s[0:1], 0
s_load_dwordx4 s[20:23], s[0:1], 24
s_load_dwordx4 s[{S_D}:{S_D+3}], s[0:1], 56
s_cmp_ge_u32 s2, 256
s_cbranch_scc1 .L{name}_done
v_lshrrev_b32 v1, 6, v0
v_and_b32 v0, 63, v0
s_and_b32 s24, s2, 7
v_readfirstlane_b32 s{S_WAVE}, v1
s_lshr_b32 s25, s2, 3
s_and_b32 s{S_BR}, s24, 1
s_lshr_b32 s26, s24, 1               ; q = xcd>>1
s_and_b32 s27, s26, 1
s_lshr_b32 s28, s26, 1
s_lshl_b32 s27, s27, 2
s_and_b32 s29, s25, 3
s_add_u32 s{S_MB}, s27, s29
s_lshl_b32 s28, s28, 3
s_lshr_b32 s29, s25, 2
s_add_u32 s{S_HP}, s28, s29
s_mul_i32 s26, s26, {ROT}
s_and_b32 s{S_KX}, s26, 15
s_mov_b32 s{S_KW}, s{S_KX}
v_lshrrev_b32 v20, 3, v0            ; l>>3
v_lshrrev_b32 v21, 4, v0            ; g
v_and_b32 v22, 7, v0
v_xor_b32 v23, v22, v21
v_lshlrev_b32 v23, 4, v23
s_mul_i32 s24, s{S_WAVE}, 6
s_lshl_b32 s{S_M0X}, s24, 10
s_lshl_b32 s25, s24, 14
s_lshl_b32 s26, s{S_KX}, 7
s_add_u32 s25, s25, s26
v_lshlrev_b32 v24, 11, v20
v_add3_u32 v{V_XA}, v24, v23, s25
v_xor_b32 v{V_XB}, 64, v{V_XA}
v_and_b32 v23, 1, v21
v_lshlrev_b32 v23, 1, v23
v_xor_b32 v23, v22, v23
v_lshlrev_b32 v23, 4, v23
v_mul_u32_u24 v24, 6144, v20
s_lshl_b32 s{S_M0W}, s{S_WAVE}, 13
s_lshl_b32 s25, s{S_WAVE}, 11
s_mul_i32 s26, s{S_KW}, 393216
s_add_u32 s25, s25, s26
v_add3_u32 v{V_WA}, v24, v23, s25
v_xor_b32 v{V_WB}, 64, v{V_WA}
""")
    for m in range(1, 14): A(f"s_mov_b32 s{S_XC+m-1}, {m*16384 - (m%4)*1024}")
    for u in range(1, 8): A(f"s_mov_b32 s{S_WC+u-1}, {u*8*6144 - (u%4)*1024}")
    if OPT.get("cpf", 1):
        A(f"""s_getpc_b64 s[24:25]
.Lpc_early:
s_cmp_eq_u32 s{S_BR}, 0
s_cselect_b32 s26, .Lv_A0-.Lpc_early, 0
s_cselect_b32 s27, .Lv_A3-.Lpc_early, 0
s_cselect_b32 s28, 0, .Lv_B0-.Lpc_early
s_cselect_b32 s29, 0, .Lv_B3-.Lpc_early
s_add_u32 s26, s26, s28
s_add_u32 s27, s27, s29
s_cmp_eq_u32 s{S_WAVE}, 3
s_cselect_b32 s26, s27, s26
s_add_u32 s24, s24, s26
s_addc_u32 s25, s25, 0
v_lshlrev_b32 v13, 7, v0
global_load_dword v{V_DUM}, v13, s[24:25]
v_add_u32 v13, 0x2000, v13
v_min_u32 v13, 0x2400, v13
global_load_dword v{V_DUM}, v13, s[24:25]
""")
    A(f"""s_mov_b32 s100, -1920
s_mov_b32 s101, 128
s_mov_b32 s98, {-15*393216}
s_mov_b32 s99, 393216
s_cmp_eq_u32 s{S_BR}, 0
s_waitcnt lgkmcnt(0)
s_cselect_b32 s16, s16, s20
s_cselect_b32 s17, s17, s21
s_cselect_b32 s18, s18, s22
s_cselect_b32 s19, s19, s23
s_lshl_b32 s24, s{S_MB}, 19
s_add_u32 s{S_X}, s16, s24
s_addc_u32 s{S_X+1}, s17, 0
s_sub_u32 s{S_X+2}, 0x400000, s24
s_mov_b32 s{S_X+3}, 0x20000
s_lshl_b32 s24, s{S_HP}, 7
s_add_u32 s{S_W}, s18, s24
s_addc_u32 s{S_W+1}, s19, 0
s_sub_u32 s{S_W+2}, 0x600000, s24
s_mov_b32 s{S_W+3}, 0x20000
""")
    A(f"""s_mov_b32 s{S_O}, s{S_D+2}
s_mov_b32 s{S_O+1}, s{S_D+3}
s_mov_b32 s{S_O+2}, 0x10000000
s_mov_b32 s{S_O+3}, 0x20000
v_and_b32 v13, 7, v0
v_and_b32 v14, 1, v0
s_sub_u32 s24, s{S_MB}, 1
s_max_i32 s24, s24, 0
v_mov_b32 v15, s24
v_mov_b32 v16, s{S_MB}
v_cmp_eq_u32 vcc, 0, v14
s_cmp_eq_u32 s{S_BR}, 0
s_cselect_b32 s25, 0x4000, 0
v_cndmask_b32 v15, v15, v16, vcc
s_cselect_b64 vcc, -1, 0
s_lshl_b32 s26, s{S_HP}, 7
s_add_u32 s25, s25, s26
s_add_u32 s25, s25, {FLG}
v_cndmask_b32 v15, v15, v13, vcc
v_lshlrev_b32 v15, 11, v15
v_bfe_u32 v14, v0, 1, 1
v_lshlrev_b32 v14, 15, v14
v_cndmask_b32 v14, v14, 0, vcc
v_add3_u32 v{V_FL+1}, s25, v15, v14
buffer_load_dword v{V_FL}, v{V_FL+1}, s[{S_O}:{S_O+3}], 0 offen sc1
""")
    def issue(lst):
        for pre, ins in lst:
            for p in pre: A(p)
            if pre: A("s_nop 0")
            A(ins)
    def flag_extract():
        A(f"""s_cmp_eq_u32 s{S_BR}, 0
s_cselect_b32 s24, s{S_MB}, 0
s_cselect_b32 s25, 0x4000, 0
v_readlane_b32 s30, v{V_FL}, s24
v_readlane_b32 s31, v{V_FL}, 1
v_readlane_b32 s33, v{V_FL+1}, 1
v_readlane_b32 s3, v{V_FL}, 2
v_readlane_b32 s34, v{V_FL}, 3
s_lshl_b32 s24, s{S_MB}, 4
s_add_u32 s24, s24, s{S_HP}
s_lshl_b32 s24, s24, 7
s_add_u32 s32, s24, s25
s_add_u32 s32, s32, {FLG}
""")
    def late_setup():
        A(f"""s_mov_b32 s{S_D+2}, 256
s_mov_b32 s{S_D+3}, 0x20000
s_mov_b32 s97, {-2*XSLOT}
s_mov_b32 s96, {XSLOT}
s_mov_b32 s{S_XR}, 0
s_mov_b32 s47, 0
v_lshrrev_b32 v21, 4, v0
v_and_b32 v20, 15, v0
v_bfe_u32 v22, v0, 1, 3
v_xor_b32 v22, v22, v21
s_lshr_b32 s16, s{S_WAVE}, 1
s_lshl_b32 s16, s16, 7
v_add_u32 v23, s16, v20
v_lshlrev_b32 v23, 7, v23
""")
        for t in range(2):
            A(f"v_xor_b32 v24, {4*t}, v22\nv_lshlrev_b32 v24, 4, v24\nv_add_u32 v{V_RX[t]}, v23, v24")
        A(f"""v_bfe_u32 v20, v0, 2, 2
v_lshlrev_b32 v22, 3, v21
v_add_u32 v22, v22, v20
v_lshlrev_b32 v22, 7, v22
v_bfe_u32 v23, v0, 3, 1
v_and_b32 v24, 1, v21
v_lshlrev_b32 v24, 1, v24
v_or_b32 v23, v23, v24
s_and_b32 s16, s{S_WAVE}, 1
s_lshl_b32 s16, s16, 1
v_xor_b32 v23, s16, v23
v_lshlrev_b32 v23, 5, v23
v_add_u32 v22, v22, v23
v_and_b32 v23, 3, v0
v_lshlrev_b32 v23, 3, v23
v_add_u32 v22, v22, v23
v_add_u32 v{V_RW}, {WB}, v22
v_xor_b32 v{V_RW+1}, 32, v{V_RW}
""")
    A(f"s_cmp_eq_u32 s{S_WAVE}, 3\ns_cbranch_scc1 .Lp3")
    issue(xdma(False)); [A(p) for p in xadv()]
    issue(wdma(0)); [A(p) for p in wadv()]
    issue(wdma(1)); [A(p) for p in wadv()]
    issue(xdma(False)); [A(p) for p in xadv()]
    issue(xdma(False)); [A(p) for p in xadv()]
    late_setup()
    A(f"s_waitcnt vmcnt({8+6+6})")
    flag_extract()
    A("s_barrier")
    stamp(1)
    A(f"s_cmp_eq_u32 s{S_BR}, 0\ns_cbranch_scc1 .Lmain_A0")
    A.label(".Lv_B0"); gen_main("B0", [1, 1, 0], False); A("s_branch .Lph2_B")
    A.label(".Lmain_A0"); A.label(".Lv_A0"); gen_main("A0", [1, 0, 0], False); A("s_branch .Lph2_A")
    A.label(".Lp3")
    issue(xdma(True)); [A(p) for p in xadv()]
    issue(xdma(True)); [A(p) for p in xadv()]
    issue(xdma(True)); [A(p) for p in xadv()]
    A(f"""; warm voffsets
s_and_b32 s16, s{S_HP}, 7
s_lshl_b32 s16, s16, 5
v_and_b32 v20, 31, v0
v_add_u32 v20, s16, v20
v_lshlrev_b32 v20, 11, v20
s_add_u32 s90, s{S_KW}, {3 + DX}
s_mul_i32 s16, s2, 1
s_and_b32 s16, s2, 7
s_lshr_b32 s16, s16, 1
s_mul_i32 s16, s16, {ROT}
s_add_u32 s90, s16, {3 + DX}
s_and_b32 s90, s90, 15
s_lshl_b32 s17, s90, 7
v_add_u32 v{V_PX}, s17, v20
s_and_b32 s17, s{S_MB}, 3
s_lshl_b32 s17, s17, 4
v_and_b32 v20, 15, v0
v_add_u32 v20, s17, v20
v_mul_u32_u24 v20, 6144, v20
v_lshrrev_b32 v21, 4, v0
v_min_u32 v22, 2, v21
v_lshlrev_b32 v22, 11, v22
v_add_u32 v20, v20, v22
s_add_u32 s91, s16, {2 + DW}
s_and_b32 s91, s91, 15
s_mul_i32 s17, s91, 393216
v_add_u32 v{V_PW}, s17, v20
""")
    issue(warm()); [A(p) for p in padv()]
    late_setup()
    A(f"s_waitcnt vmcnt({28 + 2})")
    flag_extract()
    A("s_barrier")
    stamp(1)
    A(f"s_cmp_eq_u32 s{S_BR}, 0\ns_cbranch_scc1 .Lmain_A3")
    A.label(".Lv_B3"); gen_main("B3", [1, 1, 0], True); A("s_branch .Lph2_B")
    A.label(".Lmain_A3"); A.label(".Lv_A3"); gen_main("A3", [1, 0, 0], True)
    A.label(".Lph2_A")
    stamp(2)
    A("s_waitcnt vmcnt(0)\ns_barrier\ns_nop 7")
    phase2_A(A, OPT, stamp)
    A(f"s_branch .L{name}_fin")
    A.label(".Lph2_B")
    stamp(2)
    A("s_waitcnt vmcnt(0)\ns_barrier\ns_nop 7")
    phase2_B(A, OPT, stamp)
    A.label(f".L{name}_fin")
    if stamps:
        A("s_waitcnt vmcnt(0)")
        stamp(5)
        A(f"""s_waitcnt lgkmcnt(0)
s_cmp_lg_u32 s{S_WAVE}, 0
s_cbranch_scc1 .L{name}_done
""")
        for q in range(12): A(f"v_mov_b32 v{20+q}, s{S_T0+q}")
        for q in range(4): A(f"v_mov_b32 v{32+q}, s{4+2*q}")
        A(f"""s_lshl_b32 s16, s2, 5
s_add_u32 s16, s16, {STAMP + 0x8000}
v_mov_b32 v41, s16
s_lshl_b32 s16, s2, 6
s_add_u32 s16, s16, {STAMP}
v_mov_b32 v40, s16
v_cmp_eq_u32 vcc, 0, v0
s_and_saveexec_b64 s[18:19], vcc
s_cbranch_execz .L{name}_done
buffer_store_dwordx4 v[20:23], v40, s[{S_O}:{S_O+3}], 0 offen
buffer_store_dwordx4 v[24:27], v40, s[{S_O}:{S_O+3}], 0 offen offset:16
buffer_store_dwordx4 v[28:31], v40, s[{S_O}:{S_O+3}], 0 offen offset:32
buffer_store_dwordx4 v[32:35], v41, s[{S_O}:{S_O+3}], 0 offen
buffer_store_dwordx2 v[36:37], v41, s[{S_O}:{S_O+3}], 0 offen offset:16
""")
    A.label(f".L{name}_done")
    A("s_endpgm")
    A.label(".Lk1_text_end")
    return kdesc(name, 512, 256, 102), LDS1

def code_prefetch(A, tag, start, end, voff, vdst, forward, n=1, sbase=20):
    A(f"s_getpc_b64 s[{sbase}:{sbase+1}]")
    A.label(f".Lpc_{tag}")
    if forward:
        A(f"s_add_u32 s{sbase}, s{sbase}, {start}-.Lpc_{tag}")
        A(f"s_addc_u32 s{sbase+1}, s{sbase+1}, 0")
    else:
        A(f"s_sub_u32 s{sbase}, s{sbase}, .Lpc_{tag}-{start}")
        A(f"s_subb_u32 s{sbase+1}, s{sbase+1}, 0")
    A(f"v_lshlrev_b32 v{voff}, 7, v0")
    for i in range(n):
        A(f"v_min_u32 v{voff+1}, {end}-{start}-4, v{voff}")
        A(f"global_load_dword v{vdst}, v{voff+1}, s[{sbase}:{sbase+1}]")
        if i < n-1: A(f"v_add_u32 v{voff}, 0x2000, v{voff}")

POLL_LIMIT = 200000
def signal2(A, tag, off_sreg, val_sreg, tv, oldreg=30, flagreg=32):
    A(f"""s_cmp_lg_u32 s{S_WAVE}, 0
s_cbranch_scc1 .Lsig_{tag}_end
s_add_u32 s{oldreg}, s{oldreg}, 1
v_mov_b32 v{tv}, s{oldreg}
v_mov_b32 v{tv+1}, s{val_sreg}
s_mov_b64 exec, 1
buffer_store_dword v{tv}, off, s[{S_O}:{S_O+3}], s{flagreg} sc1
buffer_atomic_add v{tv+1}, off, s[{S_D}:{S_D+3}], s{off_sreg}
s_mov_b64 exec, -1
.Lsig_{tag}_end:""")

def poll2(A, tag, isA, dbg_off_sreg, dbg_test, tv, seenreg=31, flagreg=33, allwaves=False, pre=None):
    if pre is not None:
        A(f"""s_waitcnt vmcnt(0)
v_readfirstlane_b32 s16, v{pre}
s_nop 0
s_cmp_lg_u32 s16, s{seenreg}
s_cbranch_scc1 .Lpoll_{tag}_end""")
    if not allwaves:
        A(f"""s_cmp_lg_u32 s{S_WAVE}, 0
s_cbranch_scc1 .Lpoll_{tag}_end""")
    A(f"""s_mov_b32 s17, 0
.Lpoll_{tag}:""")
    if isA:
        A(f"""buffer_load_dword v{tv}, v{V_FL+1}, s[{S_O}:{S_O+3}], 0 offen sc1
s_waitcnt vmcnt(0)
v_cmp_ne_u32 vcc, v{tv}, v{V_FL}
s_nop 1
s_and_b32 s16, vcc_lo, 0xff
s_cmp_eq_u32 s16, 0xff
s_cbranch_scc1 .Lpoll_{tag}_end""")
    else:
        A(f"""buffer_load_dword v{tv}, off, s[{S_O}:{S_O+3}], s{flagreg} sc1
s_waitcnt vmcnt(0)
v_readfirstlane_b32 s16, v{tv}
s_nop 0
s_cmp_lg_u32 s16, s{seenreg}
s_cbranch_scc1 .Lpoll_{tag}_end""")
    A(f"""s_add_u32 s17, s17, 1
s_and_b32 s16, s17, 15
s_cmp_lg_u32 s16, 0
s_cbranch_scc1 .Lpoll_{tag}
buffer_load_dword v{tv}, off, s[{S_D}:{S_D+3}], s{dbg_off_sreg} sc1
s_waitcnt vmcnt(0)
v_readfirstlane_b32 s16, v{tv}
s_nop 0
{dbg_test}
s_cbranch_scc1 .Lpoll_{tag}_end
s_cmp_lt_u32 s17, {POLL_LIMIT}
s_cbranch_scc1 .Lpoll_{tag}
.Lpoll_{tag}_end:""")

def phi_ops(regs, tmp):
    ops = []
    for k in range(0, len(regs), 2):
        r = regs[k]; t = tmp[(k//2) % len(tmp)]
        ops.append(f"v_pk_mul_f32 v[{t}:{t+1}], v[{r}:{r+1}], s[18:19]")
        ops.append(f"v_max_f32 v{r}, 0, v{r}")
        ops.append(f"v_exp_f32_e64 v{t}, v{t} clamp")
        ops.append(f"v_exp_f32_e64 v{t+1}, v{t+1} clamp")
        ops.append(f"v_max_f32 v{r+1}, 0, v{r+1}")
        ops.append(f"v_pk_add_f32 v[{r}:{r+1}], v[{r}:{r+1}], v[{t}:{t+1}]")
        ops.append(f"v_pk_add_f32 v[{r}:{r+1}], v[{r}:{r+1}], s[22:23]")
    return ops

def phase2_A(A, OPT, stamp):
    KV = 16
    Z = 32
    ONES = 40
    TMP = [44, 46, 48, 50]
    if OPT.get("wopf", 1):
        A(f"""s_lshl_b32 s16, s{S_MB}, 4
s_add_u32 s16, s16, s{S_HP}
s_lshl_b32 s16, s16, 2
s_add_u32 s16, s16, s{S_WAVE}
s_lshr_b32 s17, s16, 8
s_mul_i32 s17, s17, 24
s_add_u32 s17, s17, 16
s_load_dwordx2 s[20:21], s[0:1], s17
s_and_b32 s16, s16, 255
s_lshl_b32 s16, s16, 13
v_lshlrev_b32 v13, 7, v0
v_add_u32 v13, s16, v13
s_waitcnt lgkmcnt(0)
global_load_dword v12, v13, s[20:21]
""")
    A(f"""s_mov_b32 s18, {LOG2E}
s_mov_b32 s19, {LOG2E}
s_mov_b32 s22, {EPS}
s_mov_b32 s23, {EPS}
""")
    for r in range(4): A(f"v_mov_b32 v{ONES+r}, 0x3f803f80")
    for s in range(4):
        for b in range(2):
            t0 = acc(2*s, 2+b); t1 = acc(2*s+1, 2+b)
            for op in phi_ops([t0, t0+1, t0+2, t0+3, t1, t1+1, t1+2, t1+3], TMP): A(op)
            A(f"v_cvt_pk_bf16_f32 v{t0}, v{t0}, v{t0+1}")
            A(f"v_cvt_pk_bf16_f32 v{t0+1}, v{t0+2}, v{t0+3}")
            A(f"v_cvt_pk_bf16_f32 v{t0+2}, v{t1}, v{t1+1}")
            A(f"v_cvt_pk_bf16_f32 v{t0+3}, v{t1+2}, v{t1+3}")
        for b in range(2):
            t0 = acc(2*s, 4+b); t1 = acc(2*s+1, 4+b)
            A(f"v_cvt_pk_bf16_f32 v{t0}, v{t0}, v{t0+1}")
            A(f"v_cvt_pk_bf16_f32 v{t0+1}, v{t0+2}, v{t0+3}")
            A(f"v_cvt_pk_bf16_f32 v{t0+2}, v{t1}, v{t1+1}")
            A(f"v_cvt_pk_bf16_f32 v{t0+3}, v{t1+2}, v{t1+3}")
        A("s_nop 1")
        for b in range(2):
            pk = vr(acc(2*s, 2+b), 4)
            for bp in range(2):
                d = vr(KV + (b*2+bp)*4, 4)
                A(f"v_mfma_f32_16x16x32_bf16 {d}, {pk}, {vr(acc(2*s, 4+bp), 4)}, {'0' if s == 0 else d}")
            d = vr(Z + 4*b, 4)
            A(f"v_mfma_f32_16x16x32_bf16 {d}, {pk}, {vr(ONES,4)}, {'0' if s == 0 else d}")
    A(f"""v_lshlrev_b32 v44, 4, v0
s_and_b32 s16, s{S_WAVE}, 1
s_mul_i32 s16, s16, 6144
v_add_u32 v44, s16, v44
s_nop 7
s_cmp_lt_u32 s{S_WAVE}, 2
s_cbranch_scc1 .LA_skipw
""")
    for i in range(6): A(f"ds_write_b128 v44, {vr(KV+4*i,4)} offset:{i*1024}")
    A.label(".LA_skipw")
    A("s_waitcnt lgkmcnt(0)\ns_barrier")
    A(f"s_cmp_ge_u32 s{S_WAVE}, 2\ns_cbranch_scc1 .LA_skipr")
    for i in range(6): A(f"ds_read_b128 {ar(4*i,4)}, v44 offset:{i*1024}")
    A("s_waitcnt lgkmcnt(0)")
    for i in range(24):
        A(f"v_accvgpr_read_b32 v{46 + (i%2)}, a{i}")
        A(f"v_add_f32 v{KV+i}, v{KV+i}, v{46 + (i%2)}")
    A(f"""s_lshl_b32 s16, s{S_HP}, 1
s_and_b32 s17, s{S_WAVE}, 1
s_add_u32 s16, s16, s17              ; head
s_lshl_b32 s17, s{S_MB}, 5
s_add_u32 s16, s16, s17
s_lshl_b32 s16, s16, 13
s_add_u32 s16, s16, {PART}
v_lshlrev_b32 v45, 4, v0
""")
    for i in range(4): A(f"buffer_store_dwordx4 {vr(KV+4*i,4)}, v45, s[{S_O}:{S_O+3}], s16 offen offset:{i*1024} sc1")
    A(f"""v_lshrrev_b32 v46, 4, v0
v_lshlrev_b32 v46, 4, v46
v_and_b32 v47, 15, v0
v_cmp_eq_u32 vcc, 0, v47
s_add_u32 s16, s16, 4096
s_and_saveexec_b64 s[20:21], vcc
buffer_store_dwordx4 {vr(Z,4)}, v46, s[{S_O}:{S_O+3}], s16 offen sc1
buffer_store_dwordx4 {vr(Z+4,4)}, v46, s[{S_O}:{S_O+3}], s16 offen offset:64 sc1
s_mov_b64 exec, s[20:21]
""")
    A.label(".LA_skipr")
    for a in range(8):
        t0 = acc(a, 0); t1 = acc(a, 1)
        for op in phi_ops([t0, t0+1, t0+2, t0+3, t1, t1+1, t1+2, t1+3], TMP): A(op)
        A(f"v_cvt_pk_bf16_f32 v{t0}, v{t0}, v{t0+1}")
        A(f"v_cvt_pk_bf16_f32 v{t0+1}, v{t0+2}, v{t0+3}")
        A(f"v_cvt_pk_bf16_f32 v{t0+2}, v{t1}, v{t1+1}")
        A(f"v_cvt_pk_bf16_f32 v{t0+3}, v{t1+2}, v{t1+3}")
    stamp(3)
    A("s_waitcnt vmcnt(0)\ns_barrier")
    stamp(6)
    A(f"s_lshl_b32 s20, s{S_HP}, 2\ns_add_u32 s20, s20, 128\ns_mov_b32 s21, 1")
    signal2(A, "A", 20, 21, 60)
    poll2(A, "A", True, 20, "s_cmp_ge_u32 s16, 8", 60)
    A("s_barrier")
    stamp(7)
    A(f"""s_lshl_b32 s16, s{S_HP}, 1
s_and_b32 s17, s{S_WAVE}, 1
s_add_u32 s16, s16, s17              ; head
s_lshr_b32 s17, s{S_WAVE}, 1
s_lshl_b32 s17, s17, 7               ; 4wm*32
s_add_u32 s16, s16, s17
s_lshl_b32 s16, s16, 13
s_add_u32 s16, s16, {PART}
v_lshlrev_b32 v45, 4, v0
v_lshrrev_b32 v46, 4, v0
v_lshlrev_b32 v46, 4, v46
v_add_u32 v46, 4096, v46
""")
    for i in range(4):
        for q in range(4): A(f"buffer_load_dwordx4 {ar(i*24 + 4*q, 4)}, v45, s[{S_O}:{S_O+3}], s16 offen offset:{q*1024} sc1")
        for b in range(2): A(f"buffer_load_dwordx4 {ar(i*24 + 16 + 4*b, 4)}, v46, s[{S_O}:{S_O+3}], s16 offen offset:{b*64} sc1")
        if i < 3: A(f"s_add_u32 s16, s16, {32*8192}")
    A("s_waitcnt vmcnt(0)")
    stamp(8)
    for r in range(24):
        A(f"v_accvgpr_read_b32 v{KV+r}, a{r}")
        A(f"v_accvgpr_read_b32 v46, a{24+r}")
        A(f"v_accvgpr_read_b32 v47, a{48+r}")
        A(f"v_accvgpr_read_b32 v48, a{72+r}")
        A(f"v_add_f32 v{KV+r}, v{KV+r}, v46")
        A(f"v_add_f32 v47, v47, v48")
        A(f"v_add_f32 v{KV+r}, v{KV+r}, v47")
    A(f"""v_lshlrev_b32 v44, 4, v0
s_mul_i32 s16, s{S_WAVE}, 6144
v_add_u32 v45, s16, v44
s_xor_b32 s17, s{S_WAVE}, 2
s_mul_i32 s16, s17, 6144
v_add_u32 v44, s16, v44
""")
    for i in range(6): A(f"ds_write_b128 v45, {vr(KV+4*i,4)} offset:{16384 + i*1024}")
    A("s_waitcnt lgkmcnt(0)\ns_barrier")
    for i in range(6): A(f"ds_read_b128 {ar(4*i,4)}, v44 offset:{16384 + i*1024}")
    A("s_waitcnt lgkmcnt(0)")
    for i in range(24):
        A(f"v_accvgpr_read_b32 v{46 + (i%2)}, a{i}")
        A(f"v_add_f32 v{KV+i}, v{KV+i}, v{46 + (i%2)}")
    for bp in range(2):
        for b in range(2):
            s = KV + (b*2+bp)*4; d = 48 + 4*bp + 2*b
            A(f"v_cvt_pk_bf16_f32 v{d}, v{s}, v{s+1}")
            A(f"v_cvt_pk_bf16_f32 v{d+1}, v{s+2}, v{s+3}")
    for b in range(2):
        s = Z + 4*b; d = 56 + 2*b
        A(f"v_cvt_pk_bf16_f32 v{d}, v{s}, v{s+1}")
        A(f"v_cvt_pk_bf16_f32 v{d+1}, v{s+2}, v{s+3}")
    A("s_nop 1")
    for a in range(8):
        pq = vr(acc(a, 0), 4)
        A(f"v_mfma_f32_16x16x32_bf16 {vr(acc(a,2),4)}, v[48:51], {pq}, 0")
        A(f"v_mfma_f32_16x16x32_bf16 {vr(acc(a,3),4)}, v[52:55], {pq}, 0")
        A(f"v_mfma_f32_16x16x32_bf16 {vr(acc(a,4),4)}, v[56:59], {pq}, 0")
    A(f"""s_lshl_b32 s16, s{S_MB}, 4
s_lshr_b32 s17, s{S_WAVE}, 1
s_lshl_b32 s17, s17, 3
s_add_u32 s16, s16, s17
s_lshl_b32 s16, s16, 5
s_lshl_b32 s17, s{S_HP}, 1
s_add_u32 s16, s16, s17
s_and_b32 s17, s{S_WAVE}, 1
s_add_u32 s16, s16, s17
s_lshl_b32 s16, s16, 10
s_add_u32 s16, s16, {O_IMG}
v_lshlrev_b32 v45, 4, v0
""")
    for a in range(8):
        n0 = acc(a, 2); n1 = acc(a, 3); de = acc(a, 4); o = acc(a, 5)
        A(f"v_add_f32 v{de+1}, {EPS}, v{de}")
        A(f"v_rcp_f32 v{de+1}, v{de+1}")
        A("s_nop 0")
        for r in range(4): A(f"v_mul_f32 v{n0+r}, v{n0+r}, v{de+1}")
        for r in range(4): A(f"v_mul_f32 v{n1+r}, v{n1+r}, v{de+1}")
        A(f"v_cvt_pk_bf16_f32 v{o}, v{n0}, v{n0+1}")
        A(f"v_cvt_pk_bf16_f32 v{o+1}, v{n0+2}, v{n0+3}")
        A(f"v_cvt_pk_bf16_f32 v{o+2}, v{n1}, v{n1+1}")
        A(f"v_cvt_pk_bf16_f32 v{o+3}, v{n1+2}, v{n1+3}")
        A(f"buffer_store_dwordx4 {vr(o,4)}, v45, s[{S_O}:{S_O+3}], s16 offen sc1")
        if a < 7: A(f"s_add_u32 s16, s16, 32768")
    stamp(4)

def phase2_B(A, OPT, stamp):
    from k1b_gen import gen_B
    gen_B(A, OPT, stamp)
```

```python
from asmgen import *
import k1_gen as K
from k1_gen import *

KBASE, VBASE, QBASE = 0, 65536, 131072
V_KW, V_VW, V_QW, V_HL, V_KR, V_VR, V_OS, V_QR = 24, 25, 26, 27, 28, 29, 30, 31
V_T = 15
V_GK, V_GV = 12, 13
V_HS = 14
PM = 16
CMA, CMB = 32, 48
SA = [64, 80]; SB = 96
PB = [112, 120]
O_ = lambda i: 128 + 16*i
L_ = lambda i: 64 + 16*i
FT = 200
QF = lambda i, t: 128 + 8*i + 4*t
KF = [160, 168]; KF2 = 176
VF = [184, 192]; VF2 = 200
ONES = 208
HS = 0

def gen_B(A, OPT, stamp):
    PXr = 216
    PYr = 192
    def kq_off(a, b): return (a >> 1)*2048 + b*1024 + (a & 1)*256
    def v_off(a, b): return (a >> 1)*2048 + (a & 1)*1024 + b*256
    A(f"""; halo store base (this WG): HALO + ((mb*16+hp)*4 + wave)*16384
s_lshl_b32 s36, s{S_MB}, 4
s_add_u32 s36, s36, s{S_HP}
s_lshl_b32 s36, s36, 16
s_add_u32 s36, s36, {HALO}
s_lshr_b32 s16, s{S_WAVE}, 1
s_lshl_b32 s16, s16, 16
s_and_b32 s17, s{S_WAVE}, 1
s_lshl_b32 s17, s17, 15
s_add_u32 s16, s16, s17
s_add_u32 s16, s16, 16384
v_add_u32 v{V_HS}, s16, v{V_HL}
v_accvgpr_read_b32 v{V_GK}, a250
v_accvgpr_read_b32 v{V_GV}, a251
s_mov_b32 s22, {QSCALE}
s_mov_b32 s23, {QSCALE}
""")
    def kq_o(a): return (a >> 1)*2048 + (a & 1)*256
    def v_o(a): return (a >> 1)*2048 + (a & 1)*1024
    A(f"""s_mov_b32 s24, s{S_O}
s_mov_b32 s25, s{S_O+1}
s_mov_b32 s27, 0x20000
s_cmp_ge_u32 s{S_WAVE}, 2
s_cselect_b32 s26, 0x10000000, 0
""")
    free = []
    UNIT = {}
    def kv_unit(a):
        for (nm, cc, vw, off, vg, swp) in (("K", 2, V_KW, kq_o(a), V_GK, "v_permlane16_swap_b32"), ("V", 4, V_VW, v_o(a), V_GV, "v_permlane32_swap_b32")):
            t0 = acc(a, cc); t1 = acc(a, cc+1)
            d = t0 if a >= 5 else free.pop(0)
            UNIT[(nm, a)] = d
            A(f"v_cvt_pk_bf16_f32 v{d}, v{t0}, v{t0+1}\nv_cvt_pk_bf16_f32 v{d+1}, v{t0+2}, v{t0+3}")
            A(f"v_cvt_pk_bf16_f32 v{d+2}, v{t1}, v{t1+1}\nv_cvt_pk_bf16_f32 v{d+3}, v{t1+2}, v{t1+3}")
            A(f"s_add_u32 s21, s36, {(off//2048)*2048}")
            A("s_nop 0")
            A(f"{swp} v{d}, v{d+2}\n{swp} v{d+1}, v{d+3}")
            A(f"buffer_store_dwordx4 {vr(d,4)}, v{vg}, s[24:27], s21 offen offset:{off % 2048} sc1")
            A(f"ds_write_b128 v{vw}, {vr(d,4)} offset:{off}")
    def q_unit(a):
        t0 = acc(a, 0); t1 = acc(a, 1)
        for t in (t0, t0+2, t1, t1+2): A(f"v_pk_mul_f32 v[{t}:{t+1}], v[{t}:{t+1}], s[22:23]")
        A(f"v_cvt_pk_bf16_f32 v{t0}, v{t0}, v{t0+1}\nv_cvt_pk_bf16_f32 v{t0+1}, v{t0+2}, v{t0+3}")
        A(f"v_cvt_pk_bf16_f32 v{t0+2}, v{t1}, v{t1+1}\nv_cvt_pk_bf16_f32 v{t0+3}, v{t1+2}, v{t1+3}")
        A("s_nop 1")
        A(f"v_permlane16_swap_b32 v{t0}, v{t0+2}\nv_permlane16_swap_b32 v{t0+1}, v{t0+3}")
        A(f"ds_write_b128 v{V_QW}, {vr(t0,4)} offset:{kq_o(a)}")
    for a in (7, 6, 5):
        kv_unit(a); q_unit(a)
        free += [c for c in (acc(a, 3), acc(a, 5), acc(a, 1), acc(a, 0)) if c >= 192]
    for a in (4, 3, 2, 1, 0): kv_unit(a)
    for a in (4, 3, 2, 1, 0): q_unit(a)
    assert all(v >= 192 for v in UNIT.values()), UNIT
    if not OPT.get("cyc"): stamp(6)
    for rho in range(16):
        key = 8*(rho//4) + rho % 4
        A(f"v_cmp_le_i32 s[{S_MASK+2*rho}:{S_MASK+2*rho+1}], {key}, v{V_T}")
    A("v_mov_b32 v10, 0x3f803f80")
    for r in range(4): A(f"v_accvgpr_write_b32 a{ONES+r}, v10")

    A(f"""s_lshl_b32 s16, s{S_MB}, 3
s_lshr_b32 s17, s{S_WAVE}, 1
s_add_u32 s16, s16, s17
s_lshl_b32 s16, s16, 16
s_lshl_b32 s17, s{S_HP}, 1
s_and_b32 s18, s{S_WAVE}, 1
s_add_u32 s17, s17, s18
s_lshl_b32 s17, s17, 10
s_add_u32 s16, s16, s17
s_add_u32 s97, s16, {O_IMG + 0x400000}
s_mov_b32 s{S_FB}, 0
s_mov_b32 s98, 0x33800000
s_mov_b32 s99, 0x53800000
s_waitcnt vmcnt(0) lgkmcnt(0)
s_barrier
""")
    SIGH_HERE = True
    import k1_gen as KG
    A(f"s_cmp_eq_u32 s{S_MB}, 7\ns_cbranch_scc1 .LB_nosigH")
    A(f"s_lshl_b32 s20, s{S_HP}, 2\ns_lshl_b32 s21, 1, s{S_MB}\ns_mov_b32 s23, s32")
    signal2(A, "BH", 20, 21, 10, 30, 23)
    A.label(".LB_nosigH")
    if not OPT.get("cyc"): stamp(7)
    A(f"""s_sub_u32 s20, s{S_MB}, 1
s_max_i32 s20, s20, 0
s_lshl_b32 s20, s20, 4
s_add_u32 s20, s20, s{S_HP}
s_lshl_b32 s20, s20, 16
s_add_u32 s20, s20, {HALO}
s_and_b32 s17, s{S_WAVE}, 1          ; wn
s_lshl_b32 s16, s17, 14
s_add_u32 s35, s20, s16
s_add_u32 s37, s35, 32768            ; V quarter
s_lshl_b32 s29, s17, 15
s_add_u32 s38, s29, 65536
s_lshl_b32 s16, s{S_WAVE}, 14
s_add_u32 s39, s20, s16
s_lshr_b32 s16, s{S_WAVE}, 1
s_lshl_b32 s16, s16, 16
s_add_u32 s47, s16, s29
s_cmp_eq_u32 s{S_MB}, 0
s_cselect_b32 s26, 0, 0x10000000
""")
    for i in range(4):
        for t in range(2): A(f"ds_read_b128 {ar(QF(i,t),4)}, v{V_QR} offset:{i*4096 + t*1024}")
    A("s_waitcnt lgkmcnt(0)")
    stamp(3)

    def full(i, d): return dict(slot=i, kind="full", bk=8+2*i-d, cm=(None if d <= 2*i else (CMA if d == 2*i+1 else CMB)))
    def merged(i): return dict(slot=i, kind="merged", bk=8+2*i, bk2=2*i, cm=None)
    P1 = [full(3,1), full(3,2), full(2,1), full(3,3), full(2,2), full(3,4), full(1,1), full(2,3), full(3,5), full(1,2), full(2,4), full(3,6)]
    HJ = [full(0,1), full(1,3), full(2,5), full(3,7), full(0,2), full(1,4), full(2,6), merged(3), full(0,3), full(1,5), full(2,7), full(0,4), full(1,6), merged(2)]
    LJ = [full(0,5), full(1,7), full(0,6), merged(1), full(0,7), merged(0)]
    JOBS = P1 + HJ + LJ
    kb = -1; prev = None
    for j in JOBS:
        if j["bk"] != prev: kb += 1; j["new"] = True
        else: j["new"] = False
        j["buf"] = kb % 2; j["tagid"] = kb; prev = j["bk"]
    touched = set()
    def run_pipeline(jobs, hooks, final, xl={}, xv={}):
        trk = LgkmTracker()
        N = len(jobs)
        def loadK(n):
            j = jobs[n]; r = []
            if j["new"]:
                for t in range(2): r.append((("K", j["tagid"], t), f"ds_read_b128 {ar(KF[j['buf']]+4*t,4)}, v{V_KR} offset:{j['bk']*2048 + t*1024}"))
            if j["kind"] == "merged":
                for t in range(2): r.append((("K2", n, t), f"ds_read_b128 {ar(KF2+4*t,4)}, v{V_KR} offset:{j['bk2']*2048 + t*1024}"))
            return r
        def loadV(n):
            j = jobs[n]; r = []
            if j["new"]:
                for t in range(2): r.append((("V", j["tagid"], t), f"ds_read_b128 {ar(VF[j['buf']]+4*t,4)}, v{V_VR} offset:{j['bk']*2048 + t*1024}"))
            if j["kind"] == "merged":
                for t in range(2): r.append((("V2", n, t), f"ds_read_b128 {ar(VF2+4*t,4)}, v{V_VR} offset:{j['bk2']*2048 + t*1024}"))
            return r
        def partA(n):
            j = jobs[n]; i = j["slot"]; S = SA[n % 2]; m = []
            c0 = "0" if j["cm"] is None else vr(j["cm"], 16)
            kf = KF[j["buf"]]; tg = j["tagid"]
            m.append(([("K", tg, 0)], f"v_mfma_f32_32x32x16_bf16 {vr(S,16)}, {ar(kf,4)}, {ar(QF(i,0),4)}, {c0}"))
            m.append(([("K", tg, 1)], f"v_mfma_f32_32x32x16_bf16 {vr(S,16)}, {ar(kf+4,4)}, {ar(QF(i,1),4)}, {vr(S,16)}"))
            if j["kind"] == "merged":
                m.append(([("K2", n, 0)], f"v_mfma_f32_32x32x16_bf16 {vr(SB,16)}, {ar(KF2,4)}, {ar(QF(i,0),4)}, {vr(CMB,16)}"))
                m.append(([("K2", n, 1)], f"v_mfma_f32_32x32x16_bf16 {vr(SB,16)}, {ar(KF2+4,4)}, {ar(QF(i,1),4)}, {vr(SB,16)}"))
            return m
        def partV(n):
            j = jobs[n]; S = SA[n % 2]; P = PB[n % 2]; v = []
            if j["kind"] == "merged":
                v.append((8, "s_nop 1"))
                for r in range(16): v.append((4, f"v_cndmask_b32 v{S+r}, v{SB+r}, v{S+r}, s[{S_MASK+2*r}:{S_MASK+2*r+1}]"))
            seq = []
            for r in range(16):
                v.append((8, f"v_exp_f32 v{S+r}, v{S+r}"))
                if r >= 2 and r % 2 == 0 and r < 14: v.append((4, f"v_cvt_pk_bf16_f32 v{P+(r-2)//2}, v{S+r-2}, v{S+r-1}"))
            v.append((4, f"v_cvt_pk_bf16_f32 v{P+6}, v{S+12}, v{S+13}"))
            v.append((4, f"v_cvt_pk_bf16_f32 v{P+7}, v{S+14}, v{S+15}"))
            if j["kind"] == "merged":
                for k in range(8):
                    v.append((4, f"v_and_b32 v{PXr+k}, v{PM+k}, v{P+k}"))
                    v.append((4, f"v_bfi_b32 v{PYr+k}, v{PM+k}, 0, v{P+k}"))
            return v
        def partB(n):
            j = jobs[n]; i = j["slot"]; P = PB[n % 2]; m = []
            first = i not in touched
            touched.add(i)
            O = vr(O_(i), 16); L = ar(L_(i), 16)
            vf = VF[j["buf"]]; tg = j["tagid"]
            if j["kind"] == "full":
                m.append(([("V", tg, 0)], f"v_mfma_f32_32x32x16_bf16 {O}, {ar(vf,4)}, {vr(P,4)}, {'0' if first else O}"))
                m.append(([], f"v_mfma_f32_32x32x16_bf16 {L}, {ar(ONES,4)}, {vr(P,4)}, {'0' if first else L}"))
                m.append(([("V", tg, 1)], f"v_mfma_f32_32x32x16_bf16 {O}, {ar(vf+4,4)}, {vr(P+4,4)}, {O}"))
                m.append(([], f"v_mfma_f32_32x32x16_bf16 {L}, {ar(ONES,4)}, {vr(P+4,4)}, {L}"))
            else:
                m.append(([("V", tg, 0)], f"v_mfma_f32_32x32x16_bf16 {O}, {ar(vf,4)}, {vr(PXr,4)}, {'0' if first else O}"))
                m.append(([], f"v_mfma_f32_32x32x16_bf16 {L}, {ar(ONES,4)}, {vr(P,4)}, {'0' if first else L}"))
                m.append(([("V", tg, 1)], f"v_mfma_f32_32x32x16_bf16 {O}, {ar(vf+4,4)}, {vr(PXr+4,4)}, {O}"))
                m.append(([], f"v_mfma_f32_32x32x16_bf16 {L}, {ar(ONES,4)}, {vr(P+4,4)}, {L}"))
                m.append(([("V2", n, 0)], f"v_mfma_f32_32x32x16_bf16 {O}, {ar(VF2,4)}, {vr(PYr,4)}, {O}"))
                m.append(([("V2", n, 1)], f"v_mfma_f32_32x32x16_bf16 {O}, {ar(VF2+4,4)}, {vr(PYr+4,4)}, {O}"))
            return m
        def emit_iter(mf, va, lds):
            total = sum(it[0] for it in va)
            m = len(mf)
            vi = 0; cum = 0
            ldsq = list(lds)
            if m == 0:
                for tag, ins in ldsq:
                    A(ins); trk.issue(tag)
                if va: A("s_nop 7\ns_nop 3")
                for it in va:
                    if len(it) > 2:
                        nd = trk.need(it[2])
                        if nd is not None: A(f"s_waitcnt lgkmcnt({nd})")
                    A(it[1])
                return
            for k, (tags, ins) in enumerate(mf):
                need = trk.need(tags) if tags else None
                if need is not None: A(f"s_waitcnt lgkmcnt({need})")
                A(ins)
                nl = (len(ldsq) + (m - k) - 1)//(m - k) if ldsq else 0
                for _ in range(min(nl, len(ldsq))):
                    tag, li = ldsq.pop(0); A(li); trk.issue(tag)
                target = total*(k+1)/m
                while vi < len(va) and (cum < target - 2 or k == m-1):
                    if len(va[vi]) > 2:
                        nd = trk.need(va[vi][2])
                        if nd is not None: A(f"s_waitcnt lgkmcnt({nd})")
                    A(va[vi][1]); cum += va[vi][0]; vi += 1
        pendfin = []
        for n in range(-2, N+2):
            mfA = partA(n+1) if 0 <= n+1 < N else []
            mfB = partB(n-1) if 0 <= n-1 < N else []
            mf = []
            ia = ib = 0
            while ia < len(mfA) or ib < len(mfB):
                if ia < len(mfA): mf.append(mfA[ia]); ia += 1
                if ib < len(mfB): mf.append(mfB[ib]); ib += 1
                if ib < len(mfB) and ia >= len(mfA):
                    pass
            va = partV(n) if 0 <= n < N else []
            if pendfin and pendfin[0][0] <= n:
                va = va + pendfin.pop(0)[1]
            if n in xv:
                L0 = len(va); ex = xv[n]; nv = []
                posl = [(q+1)*L0//(len(ex)+1) for q in range(len(ex))]
                qi = 0
                for p in range(L0+1):
                    while qi < len(ex) and posl[qi] == p:
                        nv.append(ex[qi]); qi += 1
                    if p < L0: nv.append(va[p])
                va = nv
            lds = []
            if n in xl: lds += xl[n]
            if 0 <= n+2 < N: lds += loadK(n+2)
            if 0 <= n < N: lds += loadV(n)
            if n == 0 or (n == -1): pass
            if va and n == 0: A("s_nop 7\ns_nop 3")
            emit_iter(mf, va, lds)
            if 0 <= n-1 < N and final and jobs[n-1]["kind"] == "merged":
                pendfin.append((n+1, fin_ops(jobs[n-1]["slot"])))
            if OPT.get("itprof"):
                A("s_memtime s[4:5]\ns_waitcnt lgkmcnt(0)")
                A(f"v_cmp_eq_u32 vcc, {2*(n+2)}, v0\nv_mov_b32 v2, s4\ns_nop 0\nv_cndmask_b32 v1, v1, v2, vcc")
            for h in hooks.get(n, []): h()
            if OPT.get("itprof") and 2*(n+2)+1 < 64:
                A("s_memtime s[4:5]\ns_waitcnt lgkmcnt(0)")
                A(f"v_cmp_eq_u32 vcc, {2*(n+2)+1}, v0\nv_mov_b32 v2, s4\ns_nop 0\nv_cndmask_b32 v1, v1, v2, vcc")
        while pendfin:
            A("s_nop 7\ns_nop 3")
            for it in pendfin.pop(0)[1]: A(it[1])
    def fin_ops(i):
        O = O_(i); L = FT; v = []
        v.append((4, f"v_accvgpr_read_b32 v{L}, a{L_(i)}"))
        v.append((4, f"v_mov_b32 v{L+3}, 0x7f7fffff"))
        v.append((4, f"v_cmp_nle_f32 vcc, s98, v{L}"))
        v.append((8, f"v_rcp_f32 v{L+1}, v{L}"))
        v.append((4, f"v_cmp_nge_f32 s[20:21], s99, v{L}"))
        v.append((4, f"s_or_b64 s[100:101], s[20:21], vcc"))
        for r in range(16): v.append((4, f"v_mul_f32 v{O+r}, v{O+r}, v{L+1}"))
        v.append((4, f"v_max3_f32 v{L+2}, abs(v{O}), abs(v{O+1}), abs(v{O+2})"))
        for r in range(3, 15, 2): v.append((4, f"v_max3_f32 v{L+2}, v{L+2}, abs(v{O+r}), abs(v{O+r+1})"))
        v.append((4, f"v_max_f32 v{L+2}, v{L+2}, abs(v{O+15})"))
        for p in range(2):
            for q, a in enumerate((p, p+2)):
                v.append((4, f"v_cvt_pk_bf16_f32 v{L+4+4*p+2*q}, v{O+4*a}, v{O+4*a+1}"))
                v.append((4, f"v_cvt_pk_bf16_f32 v{L+4+4*p+2*q+1}, v{O+4*a+2}, v{O+4*a+3}"))
        v.append((4, f"v_cmp_nle_f32 vcc, v{L+2}, v{L+3}"))
        v.append((4, f"s_add_u32 s21, s97, {i*131072}"))
        v.append((4, f"s_or_b64 s[100:101], s[100:101], vcc"))
        v.append((4, f"buffer_store_dwordx4 {vr(L+4,4)}, v{V_OS}, s[{S_O}:{S_O+3}], s21 offen sc1"))
        v.append((4, f"buffer_store_dwordx4 {vr(L+8,4)}, v{V_OS}, s[{S_O}:{S_O+3}], s21 offen offset:512 sc1"))
        v.append((8, f"s_cmp_lg_u64 s[100:101], 0\ns_cselect_b32 s{S_FB}, 1, s{S_FB}"))
        return v

    def sig(tag, bitoff, flagoff, oldreg):
        A("s_waitcnt vmcnt(0)\ns_barrier")
        A(f"s_cmp_eq_u32 s{S_MB}, 7\ns_cbranch_scc1 .LB_nosig{tag}")
        A(f"s_lshl_b32 s20, s{S_HP}, 2\ns_add_u32 s22, s{S_MB}, {bitoff}\ns_lshl_b32 s21, 1, s22\ns_add_u32 s23, s32, {flagoff}")
        signal2(A, "B" + tag, 20, 21, 10, oldreg, 23)
        A.label(f".LB_nosig{tag}")
    def pol(tag, bitoff, flagoff, seenreg):
        A(f"s_cmp_eq_u32 s{S_MB}, 0\ns_cbranch_scc1 .LB_nopoll{tag}")
        A(f"s_lshl_b32 s20, s{S_HP}, 2\ns_add_u32 s22, s{S_MB}, {bitoff - 1}\ns_add_u32 s23, s33, {flagoff}")
        poll2(A, "B" + tag, False, 20, "s_bitcmp1_b32 s16, s22", 10, seenreg, 23, allwaves=True, pre=8)
        A.label(f".LB_nopoll{tag}")
    uid = [0]
    def cond(wave_test, body):
        uid[0] += 1
        lab = f".LBc{uid[0]}"
        return (4, "\n".join([wave_test, f"s_cbranch_scc1 {lab}"] + body + [f"{lab}:"]))
    def dma(gofs, lofs, k):
        return f"buffer_load_dwordx4 v{V_HL}, s[24:27], s19 offen offset:{(k%4)*1024} sc1 lds"
    def dma_group(gbase, lbase, k0):
        return [f"s_add_u32 s19, {gbase}, {(k0//4)*4096}", f"s_add_u32 m0, {lbase}, {(k0//4)*4096}", "s_nop 0"] + [dma(0, 0, k) for k in range(k0, k0+4)]
    def hookPollH():
        A(f"s_cmp_lt_u32 s{S_WAVE}, 2\ns_cbranch_scc1 .LB_skipH")
        pol("H", 0, 0, 31)
        A.label(".LB_skipH")
        stamp(9)
    def hookPollL():
        pol("L", 8, 0x8000, 34)
    def wr(tag):
        def f():
            A("s_waitcnt vmcnt(0)\ns_barrier")
            if tag == "H":
                stamp(4)
                if OPT.get("cyc"): A("s_memtime s[4:5]")
        return f
    def hookSigL():
        A(f"s_cmp_ge_u32 s{S_WAVE}, 2\ns_cbranch_scc1 .LB_sl1\ns_waitcnt vmcnt(0)\n.LB_sl1:\ns_barrier")
        A(f"s_cmp_eq_u32 s{S_MB}, 7\ns_cbranch_scc1 .LB_nosigL")
        A(f"s_lshl_b32 s20, s{S_HP}, 2\ns_add_u32 s22, s{S_MB}, 8\ns_lshl_b32 s21, 1, s22\ns_add_u32 s23, s32, 0x8000")
        signal2(A, "BL", 20, 21, 10, 3, 23)
        A.label(".LB_nosigL")
    xv = {}
    def add(n, it): xv.setdefault(n, []).append(it)
    STLN = OPT.get("stln", 6); PH = OPT.get("pollh", 4); PL = OPT.get("polll", 12); SL = OPT.get("sigl", 7); PRE = OPT.get("pre", 2)
    ul = [x for a in range(7, -1, -1) for x in (("K", a), ("V", a))]
    grp = {}
    for q, (nm, a) in enumerate(ul):
        n = q*STLN//16
        off = kq_o(a) if nm == "K" else v_o(a)
        grp.setdefault(n, []).extend([f"s_add_u32 s19, s36, {(off//2048)*2048}",
            f"buffer_store_dwordx4 {vr(UNIT[(nm,a)],4)}, v{V_GK if nm == 'K' else V_GV}, s[{S_O}:{S_O+3}], s19 offen offset:{off % 2048} sc1"])
    for n, body in grp.items():
        if OPT.get("nostl"): continue
        add(n, cond(f"s_cmp_ge_u32 s{S_WAVE}, 2", body))
    for q, (gb, lb) in enumerate((("s35", "s29"), ("s37", "s38"))):
        add(PH + 1 + q, cond(f"s_cmp_lt_u32 s{S_WAVE}, 2", dma_group(gb, lb, 8) + dma_group(gb, lb, 12)))
    for w in range(4):
        add(PL + 1 + w, cond(f"s_cmp_lg_u32 s{S_WAVE}, {w}", dma_group("s39", "s47", 0) + dma_group("s39", "s47", 4)))
    add(PH - PRE + 1, cond(f"s_cmp_lt_u32 s{S_WAVE}, 2", ["s_add_u32 s18, s33, 0", f"buffer_load_dword v8, off, s[{S_O}:{S_O+3}], s18 sc1"]))
    add(PL - PRE + 1, (4, "s_add_u32 s18, s33, 0x8000"))
    add(PL - PRE + 1, (4, f"buffer_load_dword v8, off, s[{S_O}:{S_O+3}], s18 sc1"))
    WL = OPT.get("wrl", 23)
    hooks = {PH: [hookPollH], SL: [hookSigL], 9: [wr("H")], PL: [hookPollL], WL: [wr("L")]}
    run_pipeline(JOBS, hooks, True, {}, xv)
    stamp(8)
    if OPT.get("cyc"): A("s_memtime s[6:7]")
    if OPT.get("itprof"):
        A(f"""s_lshl_b32 s16, s2, 10
s_lshl_b32 s17, s{S_WAVE}, 8
s_add_u32 s16, s16, s17
s_add_u32 s16, s16, {STAMP + 0x40000}
v_lshlrev_b32 v2, 2, v0
buffer_store_dword v1, v2, s[{S_O}:{S_O+3}], s16 offen
""")
    A(f"s_cmp_eq_u32 s{S_FB}, 0\ns_cbranch_scc1 .LB_end")
    gen_fallback(A)
    A.label(".LB_end")

def gen_fallback(A):
    S = 64; O = 128; L = 208; P = 112
    A(f"""s_waitcnt vmcnt(0)
s_mov_b32 s16, 0                     ; slot
v_and_b32 v2, 31, v0                ; q
v_lshrrev_b32 v3, 5, v0
v_lshlrev_b32 v3, 2, v3            ; 4h
.LFB_slot:
s_lshr_b32 s17, s{S_WAVE}, 1
s_lshl_b32 s18, s16, 1
s_add_u32 s17, s17, s18              ; qt
s_lshl_b32 s18, s16, 12
v_add_u32 v4, s18, v{V_QR}
ds_read_b128 a[128:131], v4
ds_read_b128 a[132:135], v4 offset:1024
s_lshl_b32 s18, s17, 5
s_add_u32 s18, s18, 256
v_add_u32 v5, s18, v2              ; qp
v_mov_b32 v6, {NEGBIG}
s_mov_b32 s19, 0                     ; pass
.LFB_pass:
s_mov_b32 s18, 0                     ; delta 0..8
.LFB_blk:
s_add_u32 s20, s17, 8
s_sub_u32 s20, s20, s18
s_cmp_lg_u32 s{S_MB}, 0
s_cbranch_scc1 .LFB_ok
s_cmp_lt_u32 s20, 8
s_cbranch_scc1 .LFB_next
.LFB_ok:
s_lshr_b32 s21, s{S_WAVE}, 1
s_sub_u32 s21, s20, s21
s_lshl_b32 s21, s21, 11
v_add_u32 v7, s21, v{V_KR}
v_add_u32 v8, s21, v{V_VR}
ds_read_b128 a[160:163], v7
ds_read_b128 a[164:167], v7 offset:1024
ds_read_b128 a[184:187], v8
ds_read_b128 a[188:191], v8 offset:1024
s_waitcnt lgkmcnt(0)
v_mfma_f32_32x32x16_bf16 {vr(S,16)}, a[160:163], a[128:131], 0
v_mfma_f32_32x32x16_bf16 {vr(S,16)}, a[164:167], a[132:135], {vr(S,16)}
s_lshl_b32 s21, s20, 5
v_add_u32 v9, s21, v3
v_sub_u32 v9, v5, v9
s_nop 7
s_nop 3
""")
    for r in range(16):
        key = 8*(r//4) + r % 4
        A(f"v_subrev_u32 v10, {key}, v9")
        A(f"v_cmp_gt_u32 vcc, 0x100, v10")
        A(f"v_mov_b32 v11, {NEGBIG}")
        A("s_nop 0")
        A(f"v_cndmask_b32 v{S+r}, v11, v{S+r}, vcc")
    A("s_cmp_eq_u32 s19, 1\ns_cbranch_scc1 .LFB_p2")
    for r in range(16): A(f"v_max_f32 v6, v6, v{S+r}")
    A("s_branch .LFB_next")
    A.label(".LFB_p2")
    for r in range(16):
        A(f"v_sub_f32 v{S+r}, v{S+r}, v6")
    for r in range(16): A(f"v_exp_f32 v{S+r}, v{S+r}")
    A("s_nop 0")
    for k in range(8): A(f"v_cvt_pk_bf16_f32 v{P+k}, v{S+2*k}, v{S+2*k+1}")
    A("s_nop 1")
    A(f"v_mfma_f32_32x32x16_bf16 {vr(O,16)}, a[184:187], {vr(P,4)}, {vr(O,16)}")
    A(f"v_mfma_f32_32x32x16_bf16 {vr(L,16)}, {ar(ONES,4)}, {vr(P,4)}, {vr(L,16)}")
    A(f"v_mfma_f32_32x32x16_bf16 {vr(O,16)}, a[188:191], {vr(P+4,4)}, {vr(O,16)}")
    A(f"v_mfma_f32_32x32x16_bf16 {vr(L,16)}, {ar(ONES,4)}, {vr(P+4,4)}, {vr(L,16)}")
    A("s_nop 7\ns_nop 7")
    A.label(".LFB_next")
    A("s_add_u32 s18, s18, 1\ns_cmp_le_u32 s18, 8\ns_cbranch_scc1 .LFB_blk")
    A("s_cmp_eq_u32 s19, 1\ns_cbranch_scc1 .LFB_fin")
    A("v_mov_b32 v7, v6\ns_nop 1\nv_permlane32_swap_b32 v6, v7\ns_nop 1\nv_max_f32 v6, v6, v7")
    for r in range(16): A(f"v_mov_b32 v{O+r}, 0\nv_mov_b32 v{L+r}, 0")
    A("s_mov_b32 s19, 1\ns_branch .LFB_pass")
    A.label(".LFB_fin")
    A(f"v_rcp_f32 v{L+1}, v{L}\ns_nop 0")
    for r in range(16): A(f"v_mul_f32 v{O+r}, v{O+r}, v{L+1}")
    for p in range(2):
        for q, a in enumerate((p, p+2)):
            A(f"v_cvt_pk_bf16_f32 v{L+4+4*p+2*q}, v{O+4*a}, v{O+4*a+1}")
            A(f"v_cvt_pk_bf16_f32 v{L+4+4*p+2*q+1}, v{O+4*a+2}, v{O+4*a+3}")
    A(f"""s_lshl_b32 s21, s16, 17
s_add_u32 s21, s21, s97
buffer_store_dwordx4 {vr(L+4,4)}, v{V_OS}, s[{S_O}:{S_O+3}], s21 offen sc1
buffer_store_dwordx4 {vr(L+8,4)}, v{V_OS}, s[{S_O}:{S_O+3}], s21 offen offset:512 sc1
s_add_u32 s16, s16, 1
s_cmp_lt_u32 s16, 4
s_cbranch_scc1 .LFB_slot
""")


def early_setup_B(A):
    A(f"""; ---- B phase2 constants
v_and_b32 v13, 15, v0               ; r / c16
v_lshrrev_b32 v14, 4, v0            ; g
s_and_b32 s24, s{S_WAVE}, 1         ; wn
s_lshr_b32 s25, s{S_WAVE}, 1
s_lshl_b32 s26, s24, 15
s_lshl_b32 s27, s25, 13
s_add_u32 s26, s26, s27
s_add_u32 s26, s26, 16384
v_lshrrev_b32 v16, 1, v14
v_lshlrev_b32 v16, 9, v16
v_lshlrev_b32 v17, 4, v13
v_add_u32 v16, v16, v17
v_and_b32 v18, 1, v14
v_lshlrev_b32 v18, 10, v18
v_add_u32 v16, v16, v18
v_add_u32 v{V_KW}, s26, v16
s_lshl_b32 s28, s24, 14
s_add_u32 s28, s28, s27
v_add_u32 v19, s28, v16
s_add_u32 s28, s28, {QBASE}
v_add_u32 v{V_QW}, s28, v16
v_and_b32 v16, 1, v14
v_lshlrev_b32 v16, 9, v16
v_add_u32 v16, v16, v17
v_lshrrev_b32 v18, 1, v14
v_lshlrev_b32 v18, 8, v18
v_add_u32 v16, v16, v18
s_add_u32 s26, s26, {VBASE}
v_add_u32 v{V_VW}, s26, v16
s_sub_u32 s28, s28, {QBASE - 32768}
v_add_u32 v1, s28, v16
v_accvgpr_write_b32 a250, v19
v_accvgpr_write_b32 a251, v1
v_lshlrev_b32 v{V_HL}, 4, v0
s_lshl_b32 s26, s24, 15
s_lshl_b32 s27, s25, 11
s_add_u32 s26, s26, s27
v_add_u32 v{V_KR}, s26, v{V_HL}
v_add_u32 v{V_VR}, {VBASE}, v{V_KR}
s_lshl_b32 s26, s24, 14
s_add_u32 s26, s26, s27
s_add_u32 s26, s26, {QBASE}
v_add_u32 v{V_QR}, s26, v{V_HL}
v_bfe_u32 v16, v0, 4, 1
v_lshlrev_b32 v16, 15, v16
v_lshrrev_b32 v17, 5, v0
v_lshlrev_b32 v18, 8, v17
v_add_u32 v16, v16, v18
v_and_b32 v18, 15, v0
v_lshlrev_b32 v18, 4, v18
v_add_u32 v{V_OS}, v16, v18
; t = q - 4h
v_and_b32 v16, 31, v0
v_lshlrev_b32 v17, 2, v17
v_sub_u32 v{V_T}, v16, v17
v_mov_b32 v13, 0xffff
v_mov_b32 v14, 0xffff0000
""")
    for k in range(8):
        k0 = 8*((2*k)//4) + (2*k) % 4; k1 = 8*((2*k+1)//4) + (2*k+1) % 4
        A(f"v_cmp_le_i32 vcc, {k0}, v{V_T}")
        A(f"v_cmp_le_i32 s[28:29], {k1}, v{V_T}")
        A("s_nop 0")
        A(f"v_cndmask_b32 v1, 0, v13, vcc")
        A(f"v_cndmask_b32 v{PM+k}, 0, v14, s[28:29]")
        A(f"v_or_b32 v{PM+k}, v{PM+k}, v1")
    A(f"""s_cmp_eq_u32 s{S_MB}, 0|s_cselect_b32 s24, {NEGBIG}, 0
s_cmp_lt_u32 s{S_WAVE}, 2|s_cselect_b32 s25, s24, 0
""")
    for r in range(16):
        A(f"v_mov_b32 v{CMA+r}, s25")
        A(f"v_mov_b32 v{CMB+r}, s24")
```

```python
from asmgen import *
O_IMG = 0x2000000
HALO  = 0x1000000
PART  = 0x1800000
STAMP = 0x8000000
FLG = 0x1C00000
V_FL = 62
LOG2E = 0x3fb8aa3b
QSCALE = 0x3e8293ee
EPS = 0x358637bd
NEGBIG = 0xf149f2ca

XSLOT = 32768
WB = 98304
WSL = [WB, WB+24576]
LDS1 = 163840
ACC = 64
def acc(a, c): return ACC + (a*6 + c)*4
FX = [0, 64]; FW = [32, 96]
V_XA, V_XB, V_WA, V_WB = 2, 3, 4, 5
V_RX = [6, 7]; V_RW = 8
V_PX = 10; V_PW = 11; V_DUM = 12
S_X = 4; S_W = 8; S_O = 12
S_XC = 64; S_WC = 80
S_M0X = 40; S_M0W = 41; S_CNT = 42; S_BR = 43; S_MB = 44; S_HP = 45; S_WAVE = 46
S_T0 = 48
S_D = 60
S_MASK = 64
S_FB = 96
S_KX = 37; S_KW = 38; S_XR = 39


def gen_k1(A, OPT, name="k1_kernel"):
    stamps = OPT.get("stamps", 0)
    ROT = OPT.get("rot", 4); GSTEP = OPT.get("gstep", 4); GAP0 = OPT.get("gap0", 2)
    DX = OPT.get("dx", 2); DW = OPT.get("dw", 2)
    def xdma(w3):
        g = []
        n = 14 if w3 else 6
        for m in range(n):
            pre = [f"s_add_u32 m0, s{S_M0X}, {(m//4)*4096}"] if m % 4 == 0 else []
            so = "0" if m == 0 else f"s{S_XC + m - 1}"
            v = V_XA if m % 2 == 0 else V_XB
            off = (m % 4)*1024
            g.append((pre, f"buffer_load_dwordx4 v{v}, s[{S_X}:{S_X+3}], {so} offen " + (f"offset:{off} " if off else "") + "lds"))
        return g
    def wdma(slot):
        g = []
        for u in range(8):
            pre = [f"s_add_u32 m0, s{S_M0W}, {WSL[slot] + (u//4)*4096}"] if u % 4 == 0 else []
            so = "0" if u == 0 else f"s{S_WC + u - 1}"
            v = V_WA if u % 2 == 0 else V_WB
            off = (u % 4)*1024
            g.append((pre, f"buffer_load_dwordx4 v{v}, s[{S_W}:{S_W+3}], {so} offen " + (f"offset:{off} " if off else "") + "lds"))
        return g
    def warm():
        return [([], f"buffer_load_dword v{V_DUM}, v{V_PX}, s[{S_X}:{S_X+3}], 0 offen"),
                ([], f"buffer_load_dword v{V_DUM}, v{V_PW}, s[{S_W}:{S_W+3}], 0 offen")]
    def padv():
        return ["s_add_u32 s90, s90, 1", "s_cmp_eq_u32 s90, 16", "s_cselect_b32 s16, s100, s101", "s_and_b32 s90, s90, 15", f"v_add_u32 v{V_PX}, s16, v{V_PX}",
                "s_add_u32 s91, s91, 1", "s_cmp_eq_u32 s91, 16", "s_cselect_b32 s16, s98, s99", "s_and_b32 s91, s91, 15", f"v_add_u32 v{V_PW}, s16, v{V_PW}"]
    def xadv():
        return [f"s_add_u32 s{S_KX}, s{S_KX}, 1", f"s_cmp_eq_u32 s{S_KX}, 16", f"s_cselect_b32 s16, s100, s101", f"s_and_b32 s{S_KX}, s{S_KX}, 15",
                f"v_add_u32 v{V_XA}, s16, v{V_XA}", f"v_add_u32 v{V_XB}, s16, v{V_XB}",
                f"s_add_u32 s{S_M0X}, s{S_M0X}, {XSLOT}", f"s_cmp_ge_u32 s{S_M0X}, {3*XSLOT}", f"s_cselect_b32 s16, {3*XSLOT}, 0", f"s_sub_u32 s{S_M0X}, s{S_M0X}, s16"]
    def wadv():
        return [f"s_add_u32 s{S_KW}, s{S_KW}, 1", f"s_cmp_eq_u32 s{S_KW}, 16", f"s_cselect_b32 s16, s98, s99", f"s_and_b32 s{S_KW}, s{S_KW}, 15",
                f"v_add_u32 v{V_WA}, s16, v{V_WA}", f"v_add_u32 v{V_WB}, s16, v{V_WB}"]
    def xradv(t):
        c = S_XR if t == 0 else 47
        return [f"s_add_u32 s{c}, s{c}, 1", f"s_cmp_eq_u32 s{c}, 3", f"s_cselect_b32 s17, s97, s96", f"s_cselect_b32 s{c}, 0, s{c}",
                f"v_add_u32 v{V_RX[t]}, s17, v{V_RX[t]}"]
    def reads(wslot, t, fs):
        r = []
        def X(a): return (("X", a, fs), f"ds_read_b128 {ar(FX[fs]+4*a,4)}, v{V_RX[t]} offset:{a*2048}")
        def W(c, u):
            j, b = c//2, c % 2
            return (("W", c, u, fs), f"ds_read_b64_tr_b16 {ar(FW[fs]+4*c+2*u,2)}, v{V_RW + b} offset:{WSL[wslot]-WB + j*8192 + t*4096 + u*512}")
        r.append(X(0))
        for c in range(6): r += [W(c,0), W(c,1)]
        for a in range(1, 8): r.append(X(a))
        return r
    def mfma(a, c, fs, swap, zero=False):
        x = ar(FX[fs]+4*a, 4); w = ar(FW[fs]+4*c, 4); d = vr(acc(a,c), 4)
        if swap[c//2]: x, w = w, x
        return f"v_mfma_f32_16x16x32_bf16 {d}, {x}, {w}, {'0' if zero else d}"
    carry = []
    def stage(trk, par, swap, do_x, do_w, do_warm, vm_bar, last, w3, extra=None, first=False, valu=None):
        for t in range(2):
            fs = t
            fill = [[] for _ in range(48)]
            if t == 0:
                for pos, item in carry: fill[pos].append(item)
                carry.clear()
                for g, x in enumerate(reads(par, 1, 1)): fill[2*g].append(("lds",) + x)
                fill[41].append(("raw", xradv(1)))
                if not last: fill[43].append(("raw", xradv(0)))
            else:
                if not last:
                    for g, x in enumerate(reads(par ^ 1, 0, 0)): fill[2*g+2].append(("lds",) + x)
                vm = []
                if do_w and not w3:
                    vm += [(d, None) for d in wdma(par)]; vm[-1] = (vm[-1][0], wadv())
                if do_x:
                    vm += [(d, None) for d in xdma(w3)]; vm[-1] = (vm[-1][0], xadv())
                if w3 and do_warm:
                    vm += [(d, None) for d in warm()]; vm[-1] = (vm[-1][0], padv())
                for g, (d, adv) in enumerate(vm):
                    pos = GAP0 + GSTEP*g
                    if pos > 47:
                        carry.append((pos - 48, ("dma", d)))
                        if adv: carry.append((pos - 48, ("raw", adv)))
                    else:
                        fill[pos].append(("dma", d))
                        if adv: fill[pos].append(("raw", adv))
            if t == 1 and extra: fill[3].append(("call", extra))
            if valu is not None:
                for gp in range(1, 48):
                    k = 1 if (gp % 2 == 1 or gp >= 40) else 0
                    for _ in range(k):
                        if valu: fill[gp].append(("raw", valu.pop(0).split("|")))
            n = 0
            for a in range(8):
                for c in range(6):
                    need = trk.need([("X", a, fs), ("W", c, 0, fs), ("W", c, 1, fs)])
                    if t == 1 and n == 0 and not last:
                        A("s_waitcnt lgkmcnt(0)"); trk.all_done()
                    elif need is not None:
                        A(f"s_waitcnt lgkmcnt({need})")
                    A(mfma(a, c, fs, swap, first and t == 0))
                    if t == 1 and n == 0 and not last:
                        A(f"s_waitcnt vmcnt({vm_bar})")
                        A("s_barrier")
                    m0w = False; between = 0
                    for f in fill[n]:
                        if f[0] == "dma":
                            for p in f[1][0]:
                                A(p); m0w = True
                    for f in fill[n]:
                        if f[0] == "lds":
                            A(f[2]); between += 1
                            trk.issue(f[1])
                    for f in fill[n]:
                        if f[0] == "dma":
                            if m0w and between == 0: A("s_nop 0")
                            A(f[1][1])
                    for f in fill[n]:
                        if f[0] == "raw":
                            for p in f[1]: A(p)
                        if f[0] == "call": f[1]()
                    n += 1
    def gen_main(tag, swap, w3):
        trk = LgkmTracker()
        for tg, ins in reads(0, 0, 0):
            A(ins); trk.issue(tg)
        A(f"s_mov_b32 s{S_CNT}, 0")
        nx_ = 14 if w3 else 6; nwarm = 2 if w3 else 0
        vm = nx_ if not w3 else (nwarm + nx_ + nwarm)
        stage(trk, 0, swap, True, True, True, nx_ + nwarm, False, w3, first=True)
        A(".p2align 6"); A.label(f".L{tag}_loop")
        stage(trk, 1, swap, True, True, True, vm, False, w3)
        stage(trk, 0, swap, True, True, True, vm, False, w3)
        A(f"s_add_u32 s{S_CNT}, s{S_CNT}, 1\ns_cmp_lt_u32 s{S_CNT}, 6\ns_cbranch_scc1 .L{tag}_loop")
        ex = None
        if w3 and OPT.get("cpf", 1):
            ex = lambda: code_prefetch(A, "late" + tag, ".Lph2_A", ".Lall_text_end", 10, V_DUM, True, n=5, sbase=20)
        vl = None
        if tag.startswith("B"):
            from k1b_gen import early_setup_B
            T = Asm(); early_setup_B(T)
            vl = [l.split(';')[0].strip() for l in T.lines if l.split(';')[0].strip()]
        stage(trk, 1, swap, False, True, False, vm, False, w3, ex, valu=vl)
        stage(trk, 0, swap, False, False, False, 0, False, w3, valu=vl)
        stage(trk, 1, swap, False, False, False, 0, True, w3, valu=vl)
        if vl:
            for l in vl:
                for p in l.split("|"): A(p)
    def stamp(i):
        if not stamps: return
        if OPT.get("fused") and i >= 3 and i != 5: return
        if i < 6: A(f"s_memrealtime s[{S_T0+2*i}:{S_T0+2*i+1}]")
        else: A(f"s_memrealtime s[{4+2*(i-6)}:{5+2*(i-6)}]")

    A(f".globl {name}\n.p2align 8\n.type {name},@function\n{name}:")
    stamp(0)
    A(f"""s_load_dwordx4 s[16:19], s[0:1], 0
s_load_dwordx4 s[20:23], s[0:1], 24
s_load_dwordx4 s[{S_D}:{S_D+3}], s[0:1], 56
s_cmp_ge_u32 s2, 256
s_cbranch_scc1 .L{name}_done
v_lshrrev_b32 v1, 6, v0
v_and_b32 v0, 63, v0
s_and_b32 s24, s2, 7
v_readfirstlane_b32 s{S_WAVE}, v1
s_lshr_b32 s25, s2, 3
s_and_b32 s{S_BR}, s24, 1
s_lshr_b32 s26, s24, 1               ; q = xcd>>1
s_and_b32 s27, s26, 1
s_lshr_b32 s28, s26, 1
s_lshl_b32 s27, s27, 2
s_and_b32 s29, s25, 3
s_add_u32 s{S_MB}, s27, s29
s_lshl_b32 s28, s28, 3
s_lshr_b32 s29, s25, 2
s_add_u32 s{S_HP}, s28, s29
s_mul_i32 s26, s26, {ROT}
s_and_b32 s{S_KX}, s26, 15
s_mov_b32 s{S_KW}, s{S_KX}
v_lshrrev_b32 v20, 3, v0            ; l>>3
v_lshrrev_b32 v21, 4, v0            ; g
v_and_b32 v22, 7, v0
v_xor_b32 v23, v22, v21
v_lshlrev_b32 v23, 4, v23
s_mul_i32 s24, s{S_WAVE}, 6
s_lshl_b32 s{S_M0X}, s24, 10
s_lshl_b32 s25, s24, 14
s_lshl_b32 s26, s{S_KX}, 7
s_add_u32 s25, s25, s26
v_lshlrev_b32 v24, 11, v20
v_add3_u32 v{V_XA}, v24, v23, s25
v_xor_b32 v{V_XB}, 64, v{V_XA}
v_and_b32 v23, 1, v21
v_lshlrev_b32 v23, 1, v23
v_xor_b32 v23, v22, v23
v_lshlrev_b32 v23, 4, v23
v_mul_u32_u24 v24, 6144, v20
s_lshl_b32 s{S_M0W}, s{S_WAVE}, 13
s_lshl_b32 s25, s{S_WAVE}, 11
s_mul_i32 s26, s{S_KW}, 393216
s_add_u32 s25, s25, s26
v_add3_u32 v{V_WA}, v24, v23, s25
v_xor_b32 v{V_WB}, 64, v{V_WA}
""")
    for m in range(1, 14): A(f"s_mov_b32 s{S_XC+m-1}, {m*16384 - (m%4)*1024}")
    for u in range(1, 8): A(f"s_mov_b32 s{S_WC+u-1}, {u*8*6144 - (u%4)*1024}")
    if OPT.get("cpf", 1):
        A(f"""s_getpc_b64 s[24:25]
.Lpc_early:
s_cmp_eq_u32 s{S_BR}, 0
s_cselect_b32 s26, .Lv_A0-.Lpc_early, 0
s_cselect_b32 s27, .Lv_A3-.Lpc_early, 0
s_cselect_b32 s28, 0, .Lv_B0-.Lpc_early
s_cselect_b32 s29, 0, .Lv_B3-.Lpc_early
s_add_u32 s26, s26, s28
s_add_u32 s27, s27, s29
s_cmp_eq_u32 s{S_WAVE}, 3
s_cselect_b32 s26, s27, s26
s_add_u32 s24, s24, s26
s_addc_u32 s25, s25, 0
v_lshlrev_b32 v13, 7, v0
global_load_dword v{V_DUM}, v13, s[24:25]
v_add_u32 v13, 0x2000, v13
v_min_u32 v13, 0x2400, v13
global_load_dword v{V_DUM}, v13, s[24:25]
""")
    A(f"""s_mov_b32 s100, -1920
s_mov_b32 s101, 128
s_mov_b32 s98, {-15*393216}
s_mov_b32 s99, 393216
s_cmp_eq_u32 s{S_BR}, 0
s_waitcnt lgkmcnt(0)
s_cselect_b32 s16, s16, s20
s_cselect_b32 s17, s17, s21
s_cselect_b32 s18, s18, s22
s_cselect_b32 s19, s19, s23
s_lshl_b32 s24, s{S_MB}, 19
s_add_u32 s{S_X}, s16, s24
s_addc_u32 s{S_X+1}, s17, 0
s_sub_u32 s{S_X+2}, 0x400000, s24
s_mov_b32 s{S_X+3}, 0x20000
s_lshl_b32 s24, s{S_HP}, 7
s_add_u32 s{S_W}, s18, s24
s_addc_u32 s{S_W+1}, s19, 0
s_sub_u32 s{S_W+2}, 0x600000, s24
s_mov_b32 s{S_W+3}, 0x20000
""")
    A(f"""s_mov_b32 s{S_O}, s{S_D+2}
s_mov_b32 s{S_O+1}, s{S_D+3}
s_mov_b32 s{S_O+2}, 0x10000000
s_mov_b32 s{S_O+3}, 0x20000
v_and_b32 v13, 7, v0
v_and_b32 v14, 1, v0
s_sub_u32 s24, s{S_MB}, 1
s_max_i32 s24, s24, 0
v_mov_b32 v15, s24
v_mov_b32 v16, s{S_MB}
v_cmp_eq_u32 vcc, 0, v14
s_cmp_eq_u32 s{S_BR}, 0
s_cselect_b32 s25, 0x4000, 0
v_cndmask_b32 v15, v15, v16, vcc
s_cselect_b64 vcc, -1, 0
s_lshl_b32 s26, s{S_HP}, 7
s_add_u32 s25, s25, s26
s_add_u32 s25, s25, {FLG}
v_cndmask_b32 v15, v15, v13, vcc
v_lshlrev_b32 v15, 11, v15
v_bfe_u32 v14, v0, 1, 1
v_lshlrev_b32 v14, 15, v14
v_cndmask_b32 v14, v14, 0, vcc
v_add3_u32 v{V_FL+1}, s25, v15, v14
buffer_load_dword v{V_FL}, v{V_FL+1}, s[{S_O}:{S_O+3}], 0 offen sc1
""")
    if OPT.get("fused"):
        A(f"""s_lshl_b32 s24, s{S_BR}, 3
s_add_u32 s24, s24, s{S_MB}
s_lshl_b32 s24, s24, 11
s_add_u32 s24, s24, {FLG + 0xC000}
v_and_b32 v61, 15, v0
v_lshlrev_b32 v61, 7, v61
v_add_u32 v61, s24, v61
buffer_load_dword v60, v61, s[{S_O}:{S_O+3}], 0 offen sc1
""")
    def issue(lst):
        for pre, ins in lst:
            for p in pre: A(p)
            if pre: A("s_nop 0")
            A(ins)
    def flag_extract():
        A(f"""s_cmp_eq_u32 s{S_BR}, 0
s_cselect_b32 s24, s{S_MB}, 0
s_cselect_b32 s25, 0x4000, 0
v_readlane_b32 s30, v{V_FL}, s24
v_readlane_b32 s31, v{V_FL}, 1
v_readlane_b32 s33, v{V_FL+1}, 1
v_readlane_b32 s3, v{V_FL}, 2
v_readlane_b32 s34, v{V_FL}, 3
s_lshl_b32 s24, s{S_MB}, 4
s_add_u32 s24, s24, s{S_HP}
s_lshl_b32 s24, s24, 7
s_add_u32 s32, s24, s25
s_add_u32 s32, s32, {FLG}
""")
        if OPT.get("fused"): A("v_accvgpr_write_b32 a252, v60\nv_accvgpr_write_b32 a253, v61")
    def late_setup():
        A(f"""s_mov_b32 s{S_D+2}, 256
s_mov_b32 s{S_D+3}, 0x20000
s_mov_b32 s97, {-2*XSLOT}
s_mov_b32 s96, {XSLOT}
s_mov_b32 s{S_XR}, 0
s_mov_b32 s47, 0
v_lshrrev_b32 v21, 4, v0
v_and_b32 v20, 15, v0
v_bfe_u32 v22, v0, 1, 3
v_xor_b32 v22, v22, v21
s_lshr_b32 s16, s{S_WAVE}, 1
s_lshl_b32 s16, s16, 7
v_add_u32 v23, s16, v20
v_lshlrev_b32 v23, 7, v23
""")
        for t in range(2):
            A(f"v_xor_b32 v24, {4*t}, v22\nv_lshlrev_b32 v24, 4, v24\nv_add_u32 v{V_RX[t]}, v23, v24")
        A(f"""v_bfe_u32 v20, v0, 2, 2
v_lshlrev_b32 v22, 3, v21
v_add_u32 v22, v22, v20
v_lshlrev_b32 v22, 7, v22
v_bfe_u32 v23, v0, 3, 1
v_and_b32 v24, 1, v21
v_lshlrev_b32 v24, 1, v24
v_or_b32 v23, v23, v24
s_and_b32 s16, s{S_WAVE}, 1
s_lshl_b32 s16, s16, 1
v_xor_b32 v23, s16, v23
v_lshlrev_b32 v23, 5, v23
v_add_u32 v22, v22, v23
v_and_b32 v23, 3, v0
v_lshlrev_b32 v23, 3, v23
v_add_u32 v22, v22, v23
v_add_u32 v{V_RW}, {WB}, v22
v_xor_b32 v{V_RW+1}, 32, v{V_RW}
""")
    A(f"s_cmp_eq_u32 s{S_WAVE}, 3\ns_cbranch_scc1 .Lp3")
    issue(xdma(False)); [A(p) for p in xadv()]
    issue(wdma(0)); [A(p) for p in wadv()]
    issue(wdma(1)); [A(p) for p in wadv()]
    issue(xdma(False)); [A(p) for p in xadv()]
    issue(xdma(False)); [A(p) for p in xadv()]
    late_setup()
    A(f"s_waitcnt vmcnt({8+6+6})")
    flag_extract()
    A("s_barrier")
    stamp(1)
    A(f"s_cmp_eq_u32 s{S_BR}, 0\ns_cbranch_scc1 .Lmain_A0")
    A.label(".Lv_B0"); gen_main("B0", [1, 1, 0], False); A("s_branch .Lph2_B")
    A.label(".Lmain_A0"); A.label(".Lv_A0"); gen_main("A0", [1, 0, 0], False); A("s_branch .Lph2_A")
    A.label(".Lp3")
    issue(xdma(True)); [A(p) for p in xadv()]
    issue(xdma(True)); [A(p) for p in xadv()]
    issue(xdma(True)); [A(p) for p in xadv()]
    A(f"""; warm voffsets
s_and_b32 s16, s{S_HP}, 7
s_lshl_b32 s16, s16, 5
v_and_b32 v20, 31, v0
v_add_u32 v20, s16, v20
v_lshlrev_b32 v20, 11, v20
s_add_u32 s90, s{S_KW}, {3 + DX}
s_mul_i32 s16, s2, 1
s_and_b32 s16, s2, 7
s_lshr_b32 s16, s16, 1
s_mul_i32 s16, s16, {ROT}
s_add_u32 s90, s16, {3 + DX}
s_and_b32 s90, s90, 15
s_lshl_b32 s17, s90, 7
v_add_u32 v{V_PX}, s17, v20
s_and_b32 s17, s{S_MB}, 3
s_lshl_b32 s17, s17, 4
v_and_b32 v20, 15, v0
v_add_u32 v20, s17, v20
v_mul_u32_u24 v20, 6144, v20
v_lshrrev_b32 v21, 4, v0
v_min_u32 v22, 2, v21
v_lshlrev_b32 v22, 11, v22
v_add_u32 v20, v20, v22
s_add_u32 s91, s16, {2 + DW}
s_and_b32 s91, s91, 15
s_mul_i32 s17, s91, 393216
v_add_u32 v{V_PW}, s17, v20
""")
    issue(warm()); [A(p) for p in padv()]
    late_setup()
    A(f"s_waitcnt vmcnt({28 + 2})")
    flag_extract()
    A("s_barrier")
    stamp(1)
    A(f"s_cmp_eq_u32 s{S_BR}, 0\ns_cbranch_scc1 .Lmain_A3")
    A.label(".Lv_B3"); gen_main("B3", [1, 1, 0], True); A("s_branch .Lph2_B")
    A.label(".Lmain_A3"); A.label(".Lv_A3"); gen_main("A3", [1, 0, 0], True)
    A.label(".Lph2_A")
    stamp(2)
    A("s_waitcnt vmcnt(0)\ns_barrier\ns_nop 7")
    phase2_A(A, OPT, stamp)
    A(f"s_branch .Lph3")
    A.label(".Lph2_B")
    stamp(2)
    A("s_waitcnt vmcnt(0)\ns_barrier\ns_nop 7")
    phase2_B(A, OPT, stamp)
    A.label(".Lph3")
    if OPT.get("fused"):
        import k3_gen
        k3_gen.gen_k3(A, OPT, name="p3", stamps=bool(stamps), fused=True)
    A.label(f".L{name}_fin")
    if stamps:
        A("s_waitcnt vmcnt(0)")
        stamp(5)
        A(f"""s_waitcnt lgkmcnt(0)
s_cmp_lg_u32 s{S_WAVE}, 0
s_cbranch_scc1 .L{name}_done
""")
        for q in range(12): A(f"v_mov_b32 v{20+q}, s{S_T0+q}")
        for q in range(4): A(f"v_mov_b32 v{32+q}, s{4+2*q}")
        A(f"""s_lshl_b32 s16, s2, 5
s_add_u32 s16, s16, {STAMP + 0x8000}
v_mov_b32 v41, s16
s_lshl_b32 s16, s2, 6
s_add_u32 s16, s16, {STAMP}
v_mov_b32 v40, s16
v_cmp_eq_u32 vcc, 0, v0
s_and_saveexec_b64 s[18:19], vcc
s_cbranch_execz .L{name}_done
buffer_store_dwordx4 v[20:23], v40, s[{S_O}:{S_O+3}], 0 offen
buffer_store_dwordx4 v[24:27], v40, s[{S_O}:{S_O+3}], 0 offen offset:16
buffer_store_dwordx4 v[28:31], v40, s[{S_O}:{S_O+3}], 0 offen offset:32
buffer_store_dwordx4 v[32:35], v41, s[{S_O}:{S_O+3}], 0 offen
buffer_store_dwordx2 v[36:37], v41, s[{S_O}:{S_O+3}], 0 offen offset:16
""")
    A.label(f".L{name}_done")
    A("s_endpgm")
    A.label(".Lk1_text_end")
    if OPT.get("fused"): A.label(".Lall_text_end")
    return kdesc(name, 512, 256, 102), LDS1

def code_prefetch(A, tag, start, end, voff, vdst, forward, n=1, sbase=20):
    A(f"s_getpc_b64 s[{sbase}:{sbase+1}]")
    A.label(f".Lpc_{tag}")
    if forward:
        A(f"s_add_u32 s{sbase}, s{sbase}, {start}-.Lpc_{tag}")
        A(f"s_addc_u32 s{sbase+1}, s{sbase+1}, 0")
    else:
        A(f"s_sub_u32 s{sbase}, s{sbase}, .Lpc_{tag}-{start}")
        A(f"s_subb_u32 s{sbase+1}, s{sbase+1}, 0")
    A(f"v_lshlrev_b32 v{voff}, 7, v0")
    for i in range(n):
        A(f"v_min_u32 v{voff+1}, {end}-{start}-4, v{voff}")
        A(f"global_load_dword v{vdst}, v{voff+1}, s[{sbase}:{sbase+1}]")
        if i < n-1: A(f"v_add_u32 v{voff}, 0x2000, v{voff}")

POLL_LIMIT = 200000
def signal2(A, tag, off_sreg, val_sreg, tv, oldreg=30, flagreg=32):
    A(f"""s_cmp_lg_u32 s{S_WAVE}, 0
s_cbranch_scc1 .Lsig_{tag}_end
s_add_u32 s{oldreg}, s{oldreg}, 1
v_mov_b32 v{tv}, s{oldreg}
v_mov_b32 v{tv+1}, s{val_sreg}
s_mov_b64 exec, 1
buffer_store_dword v{tv}, off, s[{S_O}:{S_O+3}], s{flagreg} sc1
buffer_atomic_add v{tv+1}, off, s[{S_D}:{S_D+3}], s{off_sreg}
s_mov_b64 exec, -1
.Lsig_{tag}_end:""")

def poll2(A, tag, isA, dbg_off_sreg, dbg_test, tv, seenreg=31, flagreg=33, allwaves=False, pre=None):
    if pre is not None:
        A(f"""s_waitcnt vmcnt(0)
v_readfirstlane_b32 s16, v{pre}
s_nop 0
s_cmp_lg_u32 s16, s{seenreg}
s_cbranch_scc1 .Lpoll_{tag}_end""")
    if not allwaves:
        A(f"""s_cmp_lg_u32 s{S_WAVE}, 0
s_cbranch_scc1 .Lpoll_{tag}_end""")
    A(f"""s_mov_b32 s17, 0
.Lpoll_{tag}:""")
    if isA:
        A(f"""buffer_load_dword v{tv}, v{V_FL+1}, s[{S_O}:{S_O+3}], 0 offen sc1
s_waitcnt vmcnt(0)
v_cmp_ne_u32 vcc, v{tv}, v{V_FL}
s_nop 1
s_and_b32 s16, vcc_lo, 0xff
s_cmp_eq_u32 s16, 0xff
s_cbranch_scc1 .Lpoll_{tag}_end""")
    else:
        A(f"""buffer_load_dword v{tv}, off, s[{S_O}:{S_O+3}], s{flagreg} sc1
s_waitcnt vmcnt(0)
v_readfirstlane_b32 s16, v{tv}
s_nop 0
s_cmp_lg_u32 s16, s{seenreg}
s_cbranch_scc1 .Lpoll_{tag}_end""")
    A(f"""s_add_u32 s17, s17, 1
s_and_b32 s16, s17, 15
s_cmp_lg_u32 s16, 0
s_cbranch_scc1 .Lpoll_{tag}
buffer_load_dword v{tv}, off, s[{S_D}:{S_D+3}], s{dbg_off_sreg} sc1
s_waitcnt vmcnt(0)
v_readfirstlane_b32 s16, v{tv}
s_nop 0
{dbg_test}
s_cbranch_scc1 .Lpoll_{tag}_end
s_cmp_lt_u32 s17, {POLL_LIMIT}
s_cbranch_scc1 .Lpoll_{tag}
.Lpoll_{tag}_end:""")

def phi_ops(regs, tmp):
    ops = []
    for k in range(0, len(regs), 2):
        r = regs[k]; t = tmp[(k//2) % len(tmp)]
        ops.append(f"v_pk_mul_f32 v[{t}:{t+1}], v[{r}:{r+1}], s[18:19]")
        ops.append(f"v_max_f32 v{r}, 0, v{r}")
        ops.append(f"v_exp_f32_e64 v{t}, v{t} clamp")
        ops.append(f"v_exp_f32_e64 v{t+1}, v{t+1} clamp")
        ops.append(f"v_max_f32 v{r+1}, 0, v{r+1}")
        ops.append(f"v_pk_add_f32 v[{r}:{r+1}], v[{r}:{r+1}], v[{t}:{t+1}]")
        ops.append(f"v_pk_add_f32 v[{r}:{r+1}], v[{r}:{r+1}], s[22:23]")
    return ops

def phase2_A(A, OPT, stamp):
    KV = 16
    Z = 32
    ONES = 40
    TMP = [44, 46, 48, 50]
    if OPT.get("wopf", 1):
        A(f"""s_lshl_b32 s16, s{S_MB}, 4
s_add_u32 s16, s16, s{S_HP}
s_lshl_b32 s16, s16, 2
s_add_u32 s16, s16, s{S_WAVE}
s_lshr_b32 s17, s16, 8
s_mul_i32 s17, s17, 24
s_add_u32 s17, s17, 16
s_load_dwordx2 s[20:21], s[0:1], s17
s_and_b32 s16, s16, 255
s_lshl_b32 s16, s16, 13
v_lshlrev_b32 v13, 7, v0
v_add_u32 v13, s16, v13
s_waitcnt lgkmcnt(0)
global_load_dword v12, v13, s[20:21]
""")
    A(f"""s_mov_b32 s18, {LOG2E}
s_mov_b32 s19, {LOG2E}
s_mov_b32 s22, {EPS}
s_mov_b32 s23, {EPS}
""")
    for r in range(4): A(f"v_mov_b32 v{ONES+r}, 0x3f803f80")
    for s in range(4):
        for b in range(2):
            t0 = acc(2*s, 2+b); t1 = acc(2*s+1, 2+b)
            for op in phi_ops([t0, t0+1, t0+2, t0+3, t1, t1+1, t1+2, t1+3], TMP): A(op)
            A(f"v_cvt_pk_bf16_f32 v{t0}, v{t0}, v{t0+1}")
            A(f"v_cvt_pk_bf16_f32 v{t0+1}, v{t0+2}, v{t0+3}")
            A(f"v_cvt_pk_bf16_f32 v{t0+2}, v{t1}, v{t1+1}")
            A(f"v_cvt_pk_bf16_f32 v{t0+3}, v{t1+2}, v{t1+3}")
        for b in range(2):
            t0 = acc(2*s, 4+b); t1 = acc(2*s+1, 4+b)
            A(f"v_cvt_pk_bf16_f32 v{t0}, v{t0}, v{t0+1}")
            A(f"v_cvt_pk_bf16_f32 v{t0+1}, v{t0+2}, v{t0+3}")
            A(f"v_cvt_pk_bf16_f32 v{t0+2}, v{t1}, v{t1+1}")
            A(f"v_cvt_pk_bf16_f32 v{t0+3}, v{t1+2}, v{t1+3}")
        A("s_nop 1")
        for b in range(2):
            pk = vr(acc(2*s, 2+b), 4)
            for bp in range(2):
                d = vr(KV + (b*2+bp)*4, 4)
                A(f"v_mfma_f32_16x16x32_bf16 {d}, {pk}, {vr(acc(2*s, 4+bp), 4)}, {'0' if s == 0 else d}")
            d = vr(Z + 4*b, 4)
            A(f"v_mfma_f32_16x16x32_bf16 {d}, {pk}, {vr(ONES,4)}, {'0' if s == 0 else d}")
    A(f"""v_lshlrev_b32 v44, 4, v0
s_and_b32 s16, s{S_WAVE}, 1
s_mul_i32 s16, s16, 6144
v_add_u32 v44, s16, v44
s_nop 7
s_cmp_lt_u32 s{S_WAVE}, 2
s_cbranch_scc1 .LA_skipw
""")
    for i in range(6): A(f"ds_write_b128 v44, {vr(KV+4*i,4)} offset:{i*1024}")
    A.label(".LA_skipw")
    A("s_waitcnt lgkmcnt(0)\ns_barrier")
    A(f"s_cmp_ge_u32 s{S_WAVE}, 2\ns_cbranch_scc1 .LA_skipr")
    for i in range(6): A(f"ds_read_b128 {ar(4*i,4)}, v44 offset:{i*1024}")
    A("s_waitcnt lgkmcnt(0)")
    for i in range(24):
        A(f"v_accvgpr_read_b32 v{46 + (i%2)}, a{i}")
        A(f"v_add_f32 v{KV+i}, v{KV+i}, v{46 + (i%2)}")
    A(f"""s_lshl_b32 s16, s{S_HP}, 1
s_and_b32 s17, s{S_WAVE}, 1
s_add_u32 s16, s16, s17              ; head
s_lshl_b32 s17, s{S_MB}, 5
s_add_u32 s16, s16, s17
s_lshl_b32 s16, s16, 13
s_add_u32 s16, s16, {PART}
v_lshlrev_b32 v45, 4, v0
""")
    for i in range(4): A(f"buffer_store_dwordx4 {vr(KV+4*i,4)}, v45, s[{S_O}:{S_O+3}], s16 offen offset:{i*1024} sc1")
    A(f"""v_lshrrev_b32 v46, 4, v0
v_lshlrev_b32 v46, 4, v46
v_and_b32 v47, 15, v0
v_cmp_eq_u32 vcc, 0, v47
s_add_u32 s16, s16, 4096
s_and_saveexec_b64 s[20:21], vcc
buffer_store_dwordx4 {vr(Z,4)}, v46, s[{S_O}:{S_O+3}], s16 offen sc1
buffer_store_dwordx4 {vr(Z+4,4)}, v46, s[{S_O}:{S_O+3}], s16 offen offset:64 sc1
s_mov_b64 exec, s[20:21]
""")
    A.label(".LA_skipr")
    for a in range(8):
        t0 = acc(a, 0); t1 = acc(a, 1)
        for op in phi_ops([t0, t0+1, t0+2, t0+3, t1, t1+1, t1+2, t1+3], TMP): A(op)
        A(f"v_cvt_pk_bf16_f32 v{t0}, v{t0}, v{t0+1}")
        A(f"v_cvt_pk_bf16_f32 v{t0+1}, v{t0+2}, v{t0+3}")
        A(f"v_cvt_pk_bf16_f32 v{t0+2}, v{t1}, v{t1+1}")
        A(f"v_cvt_pk_bf16_f32 v{t0+3}, v{t1+2}, v{t1+3}")
    stamp(3)
    A("s_waitcnt vmcnt(0)\ns_barrier")
    stamp(6)
    A(f"s_lshl_b32 s20, s{S_HP}, 2\ns_add_u32 s20, s20, 128\ns_mov_b32 s21, 1")
    signal2(A, "A", 20, 21, 60)
    poll2(A, "A", True, 20, "s_cmp_ge_u32 s16, 8", 60)
    A("s_barrier")
    stamp(7)
    A(f"""s_lshl_b32 s16, s{S_HP}, 1
s_and_b32 s17, s{S_WAVE}, 1
s_add_u32 s16, s16, s17              ; head
s_lshr_b32 s17, s{S_WAVE}, 1
s_lshl_b32 s17, s17, 7               ; 4wm*32
s_add_u32 s16, s16, s17
s_lshl_b32 s16, s16, 13
s_add_u32 s16, s16, {PART}
v_lshlrev_b32 v45, 4, v0
v_lshrrev_b32 v46, 4, v0
v_lshlrev_b32 v46, 4, v46
v_add_u32 v46, 4096, v46
""")
    for i in range(4):
        for q in range(4): A(f"buffer_load_dwordx4 {ar(i*24 + 4*q, 4)}, v45, s[{S_O}:{S_O+3}], s16 offen offset:{q*1024} sc1")
        for b in range(2): A(f"buffer_load_dwordx4 {ar(i*24 + 16 + 4*b, 4)}, v46, s[{S_O}:{S_O+3}], s16 offen offset:{b*64} sc1")
        if i < 3: A(f"s_add_u32 s16, s16, {32*8192}")
    A("s_waitcnt vmcnt(0)")
    stamp(8)
    for r in range(24):
        A(f"v_accvgpr_read_b32 v{KV+r}, a{r}")
        A(f"v_accvgpr_read_b32 v46, a{24+r}")
        A(f"v_accvgpr_read_b32 v47, a{48+r}")
        A(f"v_accvgpr_read_b32 v48, a{72+r}")
        A(f"v_add_f32 v{KV+r}, v{KV+r}, v46")
        A(f"v_add_f32 v47, v47, v48")
        A(f"v_add_f32 v{KV+r}, v{KV+r}, v47")
    A(f"""v_lshlrev_b32 v44, 4, v0
s_mul_i32 s16, s{S_WAVE}, 6144
v_add_u32 v45, s16, v44
s_xor_b32 s17, s{S_WAVE}, 2
s_mul_i32 s16, s17, 6144
v_add_u32 v44, s16, v44
""")
    for i in range(6): A(f"ds_write_b128 v45, {vr(KV+4*i,4)} offset:{16384 + i*1024}")
    A("s_waitcnt lgkmcnt(0)\ns_barrier")
    for i in range(6): A(f"ds_read_b128 {ar(4*i,4)}, v44 offset:{16384 + i*1024}")
    A("s_waitcnt lgkmcnt(0)")
    for i in range(24):
        A(f"v_accvgpr_read_b32 v{46 + (i%2)}, a{i}")
        A(f"v_add_f32 v{KV+i}, v{KV+i}, v{46 + (i%2)}")
    for bp in range(2):
        for b in range(2):
            s = KV + (b*2+bp)*4; d = 48 + 4*bp + 2*b
            A(f"v_cvt_pk_bf16_f32 v{d}, v{s}, v{s+1}")
            A(f"v_cvt_pk_bf16_f32 v{d+1}, v{s+2}, v{s+3}")
    for b in range(2):
        s = Z + 4*b; d = 56 + 2*b
        A(f"v_cvt_pk_bf16_f32 v{d}, v{s}, v{s+1}")
        A(f"v_cvt_pk_bf16_f32 v{d+1}, v{s+2}, v{s+3}")
    A("s_nop 1")
    for a in range(8):
        pq = vr(acc(a, 0), 4)
        A(f"v_mfma_f32_16x16x32_bf16 {vr(acc(a,2),4)}, v[48:51], {pq}, 0")
        A(f"v_mfma_f32_16x16x32_bf16 {vr(acc(a,3),4)}, v[52:55], {pq}, 0")
        A(f"v_mfma_f32_16x16x32_bf16 {vr(acc(a,4),4)}, v[56:59], {pq}, 0")
    A(f"""s_lshl_b32 s16, s{S_MB}, 4
s_lshr_b32 s17, s{S_WAVE}, 1
s_lshl_b32 s17, s17, 3
s_add_u32 s16, s16, s17
s_lshl_b32 s16, s16, 5
s_lshl_b32 s17, s{S_HP}, 1
s_add_u32 s16, s16, s17
s_and_b32 s17, s{S_WAVE}, 1
s_add_u32 s16, s16, s17
s_lshl_b32 s16, s16, 10
s_add_u32 s16, s16, {O_IMG}
v_lshlrev_b32 v45, 4, v0
""")
    for a in range(8):
        n0 = acc(a, 2); n1 = acc(a, 3); de = acc(a, 4); o = acc(a, 5)
        A(f"v_add_f32 v{de+1}, {EPS}, v{de}")
        A(f"v_rcp_f32 v{de+1}, v{de+1}")
        A("s_nop 0")
        for r in range(4): A(f"v_mul_f32 v{n0+r}, v{n0+r}, v{de+1}")
        for r in range(4): A(f"v_mul_f32 v{n1+r}, v{n1+r}, v{de+1}")
        A(f"v_cvt_pk_bf16_f32 v{o}, v{n0}, v{n0+1}")
        A(f"v_cvt_pk_bf16_f32 v{o+1}, v{n0+2}, v{n0+3}")
        A(f"v_cvt_pk_bf16_f32 v{o+2}, v{n1}, v{n1+1}")
        A(f"v_cvt_pk_bf16_f32 v{o+3}, v{n1+2}, v{n1+3}")
        A(f"buffer_store_dwordx4 {vr(o,4)}, v45, s[{S_O}:{S_O+3}], s16 offen sc1")
        if a < 7: A(f"s_add_u32 s16, s16, 32768")
    stamp(4)

def phase2_B(A, OPT, stamp):
    from k1b_gen import gen_B
    gen_B(A, OPT, stamp)
```

```python
from asmgen import *
O_IMG = 0x2000000

def gen_k3(A, OPT, name="k3_kernel", stamps=False, fused=False):
    NSLOT = 4
    SLOT = 32768
    ACC = 64
    def acc(a, c): return ACC + (a*4 + c)*4
    FX = [0, 32]; FW = [16, 48]
    V_O, V_WA, V_WB, V_RX, V_RW = 2, 3, 4, 5, 6
    S_X = 4; S_W = 8; S_OUT = 12
    S_M0 = 40; S_CNT = 41; S_WAVE = 42; S_BR = 43; S_RT = 44; S_CT = 45
    S_XC = 24
    S_WC = 28
    S_T0 = 48
    if fused:
        S_OUT = 24; S_M0 = 40; S_CNT = 41; S_WAVE = 46; S_BR = 43; S_RT = 36; S_CT = 37; S_XC = 28; S_WC = 32
    OSC = OPT.get("osc", "sc1") if fused else ""
    def dma_list(slot):
        g = []
        for i in range(4):
            pre = [f"s_add_u32 m0, s{S_M0}, {slot*SLOT}"] if i == 0 else []
            so = "0" if i == 0 else f"s{S_XC+i-1}"
            g.append((pre, f"buffer_load_dwordx4 v{V_O}, s[{S_X}:{S_X+3}], {so} offen " + (f"offset:{i*1024} " if i else "") + f"{OSC} lds"))
        for i in range(4):
            pre = [f"s_add_u32 m0, s{S_M0}, {slot*SLOT + 16384}"] if i == 0 else []
            so = "0" if i == 0 else f"s{S_WC+i-1}"
            v = V_WA if i % 2 == 0 else V_WB
            g.append((pre, f"buffer_load_dwordx4 v{v}, s[{S_W}:{S_W+3}], {so} offen " + (f"offset:{i*1024} " if i else "") + "lds"))
        return g
    def advance():
        return [f"s_add_u32 s{S_X}, s{S_X}, 2048", f"s_addc_u32 s{S_X+1}, s{S_X+1}, 0", f"s_sub_u32 s{S_X+2}, s{S_X+2}, 2048",
                f"s_add_u32 s{S_W}, s{S_W}, {64*2048}", f"s_addc_u32 s{S_W+1}, s{S_W+1}, 0", f"s_sub_u32 s{S_W+2}, s{S_W+2}, {64*2048}"]
    def advX(): return advance()[:3]
    def advW(): return advance()[3:]
    def reads(slot, t, fs):
        r = []
        hi = slot >= 2
        so = (slot & 1)*SLOT
        def X(a): return (("X", a, fs), f"ds_read_b128 {ar(FX[fs]+4*a,4)}, v{V_RX + (10 if hi else 0)} offset:{so + a*2048 + t*1024}")
        def W(c, u): return (("W", c, u, fs), f"ds_read_b64_tr_b16 {ar(FW[fs]+4*c+2*u,2)}, v{V_RW + c + (10 if hi else 0)} offset:{so + t*8192 + u*4096}")
        r += [W(0,0), W(0,1), X(0), X(1), X(2), X(3)]
        for c in range(1, 4): r += [W(c,0), W(c,1)]
        return r
    def mfma(a, c, fs):
        d = vr(acc(a,c), 4)
        return f"v_mfma_f32_16x16x32_bf16 {d}, {ar(FW[fs]+4*c,4)}, {ar(FX[fs]+4*a,4)}, {d}"
    carry = []
    def stage(trk, s, dma, last, vm):
        slot = s % NSLOT
        for t in range(2):
            fs = t
            fill = [[] for _ in range(16)]
            if t == 0:
                for pos, item in carry: fill[pos].append(item)
                carry.clear()
                for g, x in enumerate(reads(slot, 1, 1)): fill[g].append(("lds",) + x)
            else:
                if not last:
                    for g, x in enumerate(reads((slot+1) % NSLOT, 0, 0)): fill[g+1].append(("lds",) + x)
                if dma:
                    dl = dma_list((s + NSLOT) % NSLOT)
                    GS = OPT.get("k3step", 4)
                    for g, d in enumerate(dl):
                        pos = 1 + GS*g
                        if pos > 15: carry.append((pos - 16, ("dma", d)))
                        else: fill[pos].append(("dma", d))
                    lastpos = 1 + GS*7
                    if lastpos > 15: carry.append((min(lastpos - 16 + 1, 15), ("raw", advance())))
                    else: fill[15].append(("raw", advance()))
            n = 0
            for c in range(4):
                for a in range(4):
                    need = trk.need([("X", a, fs), ("W", c, 0, fs), ("W", c, 1, fs)])
                    if t == 1 and n == 0 and not last:
                        A("s_waitcnt lgkmcnt(0)"); trk.all_done()
                    elif need is not None:
                        A(f"s_waitcnt lgkmcnt({need})")
                    A(mfma(a, c, fs))
                    if t == 1 and n == 0 and not last:
                        A(f"s_waitcnt vmcnt({vm})")
                        A("s_barrier")
                    m0w = False; between = 0
                    for f in fill[n]:
                        if f[0] == "dma":
                            for p in f[1][0]:
                                A(p); m0w = True
                    for f in fill[n]:
                        if f[0] == "lds":
                            A(f[2]); between += 1
                            trk.issue(f[1])
                    for f in fill[n]:
                        if f[0] == "dma":
                            if m0w and between == 0: A("s_nop 0")
                            A(f[1][1])
                    for f in fill[n]:
                        if f[0] == "raw":
                            for p in f[1]: A(p)
                    n += 1
    if not fused:
        A(f".globl {name}\n.p2align 8\n.type {name},@function\n{name}:")
        if stamps: A(f"s_memrealtime s[{S_T0}:{S_T0+1}]")
        A(f"""s_cmp_ge_u32 s2, 256
s_cbranch_scc1 .L{name}_done
s_and_b32 s16, s2, 7
s_lshr_b32 s17, s2, 3
s_and_b32 s{S_BR}, s16, 1
s_lshr_b32 s16, s16, 1
s_lshl_b32 s16, s16, 2
s_and_b32 s18, s17, 3
s_add_u32 s{S_RT}, s16, s18
s_lshr_b32 s{S_CT}, s17, 2
s_mul_i32 s16, s{S_BR}, 24
s_add_u32 s16, s16, 16
s_load_dwordx2 s[20:21], s[0:1], s16
s_load_dwordx2 s[22:23], s[0:1], 64
s_load_dwordx2 s[{S_OUT}:{S_OUT+1}], s[0:1], 48
v_lshrrev_b32 v1, 6, v0
v_and_b32 v0, 63, v0
v_readfirstlane_b32 s{S_WAVE}, v1
s_mov_b32 s{S_OUT+2}, 0x800000
s_mov_b32 s{S_OUT+3}, 0x20000
""")
        if OPT.get("cpf", 1):
            import k1_gen
            k1_gen.code_prefetch(A, "k3", name, ".Lall_text_end", 30, 32, False, n=2, sbase=16)
    else:
        A(f"""s_mul_i32 s16, s{S_BR}, 24
s_add_u32 s16, s16, 16
s_load_dwordx2 s[20:21], s[0:1], s16
s_load_dwordx2 s[{S_OUT}:{S_OUT+1}], s[0:1], 48
s_mov_b32 s22, s12
s_mov_b32 s23, s13
s_lshl_b32 s{S_RT}, s44, 1
s_lshr_b32 s16, s45, 3
s_add_u32 s{S_RT}, s{S_RT}, s16
s_and_b32 s{S_CT}, s45, 7
s_mov_b32 s{S_OUT+2}, 0x800000
s_mov_b32 s{S_OUT+3}, 0x20000
v_accvgpr_read_b32 v40, a252
v_accvgpr_read_b32 v41, a253
s_waitcnt vmcnt(0)
s_barrier
""")
        if stamps: A("s_memrealtime s[54:55]")
        A(f"""s_cmp_lg_u32 s{S_WAVE}, 0
s_cbranch_scc1 .Lo_nosig
v_readlane_b32 s16, v40, s45
v_readlane_b32 s17, v41, s45
s_lshl_b32 s18, s{S_BR}, 3
s_add_u32 s18, s18, s44
s_lshl_b32 s18, s18, 2
s_add_u32 s18, s18, 192
s_add_u32 s16, s16, 1
v_mov_b32 v42, s16
v_mov_b32 v43, 1
s_mov_b64 exec, 1
buffer_store_dword v42, off, s[12:15], s17 sc1
buffer_atomic_add v43, off, s[60:63], s18
s_mov_b64 exec, -1
.Lo_nosig:
""")
    for i in range(1, 4):
        A(f"s_mov_b32 s{S_XC+i-1}, {(i>>1)*32768 + (i&1)*1024 - i*1024}")
        A(f"s_mov_b32 s{S_WC+i-1}, {i*4*2048 - i*1024}")
    A(f"""s_lshl_b32 s{S_M0}, s{S_WAVE}, 12
v_lshlrev_b32 v20, 4, v0
s_lshl_b32 s16, s{S_WAVE}, 16
v_add_u32 v{V_O}, s16, v20
v_lshrrev_b32 v21, 4, v0            ; g = l>>4
v_and_b32 v22, 15, v0
v_lshlrev_b32 v23, 1, v21
v_xor_b32 v23, v22, v23
v_lshlrev_b32 v23, 4, v23
s_lshl_b32 s16, s{S_WAVE}, 4
v_add_u32 v24, s16, v21
v_lshlrev_b32 v24, 11, v24
v_add_u32 v{V_WA}, v24, v23
v_xor_b32 v{V_WB}, 128, v{V_WA}
s_lshr_b32 s16, s{S_WAVE}, 1
s_lshl_b32 s16, s16, 13
v_add_u32 v{V_RX}, s16, v20
v_add_u32 v{V_RX+10}, 0x10000, v{V_RX}
v_bfe_u32 v22, v0, 2, 2             ; r
v_lshlrev_b32 v23, 2, v21           ; 4g
v_add_u32 v23, v23, v22             ; k (0..15)
v_and_b32 v24, 7, v23               ; k&7
v_lshlrev_b32 v23, 8, v23           ; k*256
v_and_b32 v25, 3, v0
v_lshlrev_b32 v25, 3, v25
v_add_u32 v23, v23, v25
v_add_u32 v23, 0x4000, v23
s_and_b32 s16, s{S_WAVE}, 1
s_lshl_b32 s16, s16, 2              ; 4wn
""")
    for c in range(4):
        A(f"s_add_u32 s17, s16, {c}\nv_xor_b32 v25, s17, v24\nv_lshlrev_b32 v25, 5, v25\nv_add_u32 v{V_RW+c}, v23, v25\nv_add_u32 v{V_RW+c+10}, 0x10000, v{V_RW+c}")
    A(f"""s_waitcnt lgkmcnt(0)
s_lshl_b32 s16, s{S_BR}, 22
s_lshl_b32 s17, s{S_RT}, 18
s_add_u32 s16, s16, s17
s_add_u32 s16, s16, {O_IMG}
s_add_u32 s{S_X}, s22, s16
s_addc_u32 s{S_X+1}, s23, 0
s_mov_b32 s{S_X+2}, 0x40000
s_mov_b32 s{S_X+3}, 0x20000
s_lshl_b32 s16, s{S_CT}, 8
s_add_u32 s{S_W}, s20, s16
s_addc_u32 s{S_W+1}, s21, 0
s_sub_u32 s{S_W+2}, 0x200000, s16
s_mov_b32 s{S_W+3}, 0x20000
""")
    def issue(lst):
        for pre, ins in lst:
            for p in pre: A(p)
            if pre: A("s_nop 0")
            A(ins)
    if not fused:
        for s in range(NSLOT):
            issue(dma_list(s))
            for p in advance(): A(p)
        for r in range(ACC, ACC+64): A(f"v_mov_b32 v{r}, 0")
        A(f"s_waitcnt vmcnt({8*(NSLOT-1)})\ns_barrier")
        if stamps:
            A(f"s_memrealtime s[{S_T0+2}:{S_T0+3}]\ns_memtime s[{S_T0+8}:{S_T0+9}]\ns_waitcnt lgkmcnt(0)")
    else:
        for s in range(NSLOT):
            issue(dma_list(s)[4:])
            for p in advW(): A(p)
        for r in range(ACC, ACC+64): A(f"v_mov_b32 v{r}, 0")
        A(f"""s_lshl_b32 s18, s{S_BR}, 3
s_add_u32 s18, s18, s44
s_lshl_b32 s18, s18, 2
s_add_u32 s18, s18, 192
s_mov_b32 s17, 0
.Lo_poll:
buffer_load_dword v42, v41, s[12:15], 0 offen sc1
s_waitcnt vmcnt(0)
v_cmp_ne_u32 vcc, v42, v40
s_nop 1
s_and_b32 s16, vcc_lo, 0xffff
s_cmp_eq_u32 s16, 0xffff
s_cbranch_scc1 .Lo_poll_end
s_add_u32 s17, s17, 1
s_and_b32 s16, s17, 15
s_cmp_lg_u32 s16, 0
s_cbranch_scc1 .Lo_poll
buffer_load_dword v42, off, s[60:63], s18 sc1
s_waitcnt vmcnt(0)
v_readfirstlane_b32 s16, v42
s_nop 0
s_cmp_ge_u32 s16, 16
s_cbranch_scc1 .Lo_poll_end
s_cmp_lt_u32 s17, 200000
s_cbranch_scc1 .Lo_poll
.Lo_poll_end:
""")
        for s in range(NSLOT):
            issue(dma_list(s)[:4])
            for p in advX(): A(p)
        A("s_waitcnt vmcnt(12)\ns_barrier")
        if stamps: A("s_memrealtime s[56:57]")
    trk = LgkmTracker()
    for tag, ins in reads(0, 0, 0):
        A(ins); trk.issue(tag)
    A(f"s_mov_b32 s{S_CNT}, 0")
    if not fused:
        stage(trk, 0, True, False, 8*(NSLOT-2))
        A(".p2align 6")
        A.label(f".L{name}_loop")
        for s in range(1, NSLOT+1): stage(trk, s, True, False, 8*(NSLOT-2))
        A(f"s_add_u32 s{S_CNT}, s{S_CNT}, 1\ns_cmp_lt_u32 s{S_CNT}, 2\ns_cbranch_scc1 .L{name}_loop")
        stage(trk, 9, True, False, 16)
        stage(trk, 10, True, False, 16)
        stage(trk, 11, True, False, 16)
    else:
        stage(trk, 0, True, False, 8)
        stage(trk, 1, True, False, 12)
        A(".p2align 6")
        A.label(f".L{name}_loop")
        for s in range(2, NSLOT+2): stage(trk, s, True, False, 16)
        A(f"s_add_u32 s{S_CNT}, s{S_CNT}, 1\ns_cmp_lt_u32 s{S_CNT}, 2\ns_cbranch_scc1 .L{name}_loop")
        stage(trk, 10, True, False, 16)
        stage(trk, 11, True, False, 16)
    stage(trk, 12, False, False, 16)
    stage(trk, 13, False, False, 8)
    stage(trk, 14, False, False, 0)
    stage(trk, 15, False, True, 0)
    if stamps and not fused:
        A(f"s_memrealtime s[{S_T0+4}:{S_T0+5}]\ns_memtime s[{S_T0+10}:{S_T0+11}]")
    A("s_nop 7\ns_nop 7")
    A(f"""v_and_b32 v20, 15, v0
s_lshl_b32 s16, s{S_RT}, 7
s_lshr_b32 s17, s{S_WAVE}, 1
s_lshl_b32 s17, s17, 6
s_add_u32 s16, s16, s17
v_add_u32 v20, s16, v20
v_lshlrev_b32 v20, 12, v20
v_lshrrev_b32 v21, 4, v0
v_and_b32 v22, 1, v21
v_lshlrev_b32 v22, 5, v22            ; 16 cols*2B
v_lshrrev_b32 v21, 1, v21
v_lshlrev_b32 v21, 4, v21            ; 8 cols*2B
v_add_u32 v20, v20, v22
v_add_u32 v20, v20, v21
s_lshl_b32 s16, s{S_BR}, 11
s_lshl_b32 s17, s{S_CT}, 8
s_add_u32 s16, s16, s17
s_and_b32 s17, s{S_WAVE}, 1
s_lshl_b32 s17, s17, 7
s_add_u32 s16, s16, s17
v_add_u32 v20, s16, v20
""")
    k = 0
    for a in range(4):
        A(f"s_mov_b32 s17, {a*16*4096}")
        for cp in range(2):
            tmp = 24 + 4*(k % 4); k += 1
            b0 = acc(a, 2*cp); b1 = acc(a, 2*cp+1)
            A(f"v_cvt_pk_bf16_f32 v{tmp}, v{b0}, v{b0+1}")
            A(f"v_cvt_pk_bf16_f32 v{tmp+1}, v{b0+2}, v{b0+3}")
            A(f"v_cvt_pk_bf16_f32 v{tmp+2}, v{b1}, v{b1+1}")
            A(f"v_cvt_pk_bf16_f32 v{tmp+3}, v{b1+2}, v{b1+3}")
            A("s_nop 1")
            A(f"v_permlane16_swap_b32 v{tmp}, v{tmp+2}")
            A(f"v_permlane16_swap_b32 v{tmp+1}, v{tmp+3}")
            A(f"buffer_store_dwordx4 v[{tmp}:{tmp+3}], v20, s[{S_OUT}:{S_OUT+3}], s17 offen offset:{cp*64} {OPT.get('ost', '')}")
    if fused: return None
    if stamps:
        A(f"""s_waitcnt vmcnt(0)
s_memrealtime s[{S_T0+6}:{S_T0+7}]
s_waitcnt lgkmcnt(0)
s_cmp_lg_u32 s{S_WAVE}, 0
s_cbranch_scc1 .L{name}_done
""")
        for q in range(12): A(f"v_mov_b32 v{20+q}, s{S_T0+q}")
        A(f"""s_mov_b32 s{S_OUT}, s22
s_mov_b32 s{S_OUT+1}, s23
s_mov_b32 s{S_OUT+2}, 0x10000000
s_lshl_b32 s16, s2, 6
s_add_u32 s16, s16, 0x8010000
v_mov_b32 v40, s16
v_cmp_eq_u32 vcc, 0, v0
s_and_saveexec_b64 s[18:19], vcc
s_cbranch_execz .L{name}_done
buffer_store_dwordx4 v[20:23], v40, s[{S_OUT}:{S_OUT+3}], 0 offen
buffer_store_dwordx4 v[24:27], v40, s[{S_OUT}:{S_OUT+3}], 0 offen offset:16
buffer_store_dwordx4 v[28:31], v40, s[{S_OUT}:{S_OUT+3}], 0 offen offset:32
""")
    A.label(f".L{name}_done")
    A("s_endpgm")
    A.label(".Lall_text_end")
    return kdesc(name, 192, 128, 64), NSLOT*SLOT

if __name__ == "__main__":
    import sys
    A = Asm()
    B = Asm()
    kd, lds = gen_k3(B, {}, stamps=True)
    A(f"; @launch kernel=k3_kernel grid=(256,1,1) block=(256,1,1) lds={lds}")
    A('.amdgcn_target "amdgcn-amd-amdhsa--gfx950"\n.text')
    A(B.text())
    A('.section .rodata,"a"')
    A(kd)
    open("k3.s", "w").write(A.text())
```

```python
import sys
from asmgen import *
import k1_gen, k3_gen, hazard
OPT = dict(stamps=0, out="full.s")
for a in sys.argv[1:]:
    k, v = a.split("="); OPT[k] = int(v) if v.lstrip('-').isdigit() else v
KN = "concat_heads__linear_attn_block__sliding_block__prompt_kernel"
if OPT.get("fused"):
    B1 = Asm(); kd1, lds1 = k1_gen.gen_k1(B1, OPT, name=KN)
    A = Asm()
    HDR = """; Fused linear-attention + sliding-window-attention blocks, one launch (gfx950).
"""
    A(HDR.rstrip("\n"))
    A(f"; @launch grid=(256,1,1) block=(256,1,1) lds={lds1}")
    A('.amdgcn_target "amdgcn-amd-amdhsa--gfx950"\n.text')
    A(B1.text())
    A('.section .rodata,"a"'); A(kd1)
    open(OPT["out"], "w").write(A.text())
    hazard.check(A.text())
    sys.exit(0)
B1 = Asm(); kd1, lds1 = k1_gen.gen_k1(B1, OPT)
B3 = Asm(); kd3, lds3 = k3_gen.gen_k3(B3, OPT, stamps=bool(OPT["stamps"]))
A = Asm()
A(f"; @launch kernel=k1_kernel grid=(256,1,1) block=(256,1,1) lds={lds1}")
A(f"; @launch kernel=k3_kernel grid=(256,1,1) block=(256,1,1) lds={lds3}")
A('.amdgcn_target "amdgcn-amd-amdhsa--gfx950"\n.text')
A(B1.text()); A(B3.text())
A('.section .rodata,"a"'); A(kd1); A(kd3)
open(OPT["out"], "w").write(A.text())
hazard.check(A.text())
```

```python
class Asm:
    def __init__(self):
        self.lines = []
    def __call__(self, s=""):
        for l in s.split("\n"):
            self.lines.append(l)
    def emit(self, *ls):
        for l in ls: self(l)
    def label(self, name):
        self.lines.append(name + ":")
    def text(self):
        return "\n".join(self.lines) + "\n"

def vr(base, n=1, p="v"):
    return f"{p}{base}" if n == 1 else f"{p}[{base}:{base+n-1}]"
def ar(base, n=1): return vr(base, n, "a")
def sr(base, n=1): return vr(base, n, "s")

def kdesc(name, vgpr=512, accum=256, sgpr=102, lds=0):
    return f""".p2align 6
.amdhsa_kernel {name}
  .amdhsa_next_free_vgpr {vgpr}
  .amdhsa_next_free_sgpr {sgpr}
  .amdhsa_accum_offset {accum}
  .amdhsa_group_segment_fixed_size 0
  .amdhsa_kernarg_size 72
  .amdhsa_user_sgpr_count 2
  .amdhsa_user_sgpr_kernarg_segment_ptr 1
  .amdhsa_system_sgpr_workgroup_id_x 1
  .amdhsa_float_denorm_mode_32 3
  .amdhsa_float_denorm_mode_16_64 3
.end_amdhsa_kernel
"""

class LgkmTracker:
    def __init__(self):
        self.issued = []
        self.done = 0
    def issue(self, tag, now=None):
        self.issued.append(tag)
        if not hasattr(self, "when"): self.when = []
        self.when.append(now)
    def need(self, tags, now=None, slack=None):
        idx = -1
        for t in tags:
            for i in range(len(self.issued)-1, -1, -1):
                if self.issued[i] == t:
                    idx = max(idx, i); break
        if idx < self.done: return None
        if now is not None and slack is not None:
            for i in range(len(self.issued)-1, idx, -1):
                if self.when[i] is not None and self.when[i] <= now - slack:
                    idx = i; break
        n = len(self.issued) - 1 - idx
        if n > 15: n = 15
        self.done = len(self.issued) - n
        return n
    def all_done(self):
        self.done = len(self.issued)
```

```python
from asmgen import *
O_IMG = 0x2000000
HALO  = 0x1000000
PART  = 0x1800000
STAMP = 0x8000000
FLG = 0x1C00000
V_FL = 62
LOG2E = 0x3fb8aa3b
QSCALE = 0x3e8293ee
EPS = 0x358637bd
NEGBIG = 0xf149f2ca

XSLOT = 32768
WB = 98304
WSL = [WB, WB+24576]
LDS1 = 163840
ACC = 64
def acc(a, c): return ACC + (a*6 + c)*4
FX = [0, 64]; FW = [32, 96]
V_XA, V_XB, V_WA, V_WB = 2, 3, 4, 5
V_RX = [6, 7]; V_RW = 8
V_PX = 10; V_PW = 11; V_DUM = 12
S_X = 4; S_W = 8; S_O = 12
S_XC = 64; S_WC = 80
S_M0X = 40; S_M0W = 41; S_CNT = 42; S_BR = 43; S_MB = 44; S_HP = 45; S_WAVE = 46
S_T0 = 48
S_D = 60
S_MASK = 64
S_FB = 96
S_KX = 37; S_KW = 38; S_XR = 39


def gen_k1(A, OPT, name="k1_kernel"):
    stamps = OPT.get("stamps", 0)
    ROT = 0 if OPT.get("fast", 1) else OPT.get("rot", 4); GSTEP = OPT.get("gstep", 4); GAP0 = OPT.get("gap0", 2)
    DX = OPT.get("dx", 2); DW = OPT.get("dw", 2)
    def xdma(w3):
        g = []
        n = 14 if w3 else 6
        for m in range(n):
            pre = [f"s_add_u32 m0, s{S_M0X}, {(m//4)*4096}"] if m % 4 == 0 else []
            so = "0" if m == 0 else f"s{S_XC + m - 1}"
            v = V_XA if m % 2 == 0 else V_XB
            off = (m % 4)*1024
            g.append((pre, f"buffer_load_dwordx4 v{v}, s[{S_X}:{S_X+3}], {so} offen " + (f"offset:{off} " if off else "") + "lds"))
        return g
    def wdma(slot):
        g = []
        for u in range(8):
            pre = [f"s_add_u32 m0, s{S_M0W}, {WSL[slot] + (u//4)*4096}"] if u % 4 == 0 else []
            so = "0" if u == 0 else f"s{S_WC + u - 1}"
            v = V_WA if u % 2 == 0 else V_WB
            off = (u % 4)*1024
            g.append((pre, f"buffer_load_dwordx4 v{v}, s[{S_W}:{S_W+3}], {so} offen " + (f"offset:{off} " if off else "") + "lds"))
        return g
    def warm():
        return [([], f"buffer_load_dword v{V_DUM}, v{V_PX}, s[{S_X}:{S_X+3}], 0 offen"),
                ([], f"buffer_load_dword v{V_DUM}, v{V_PW}, s[{S_W}:{S_W+3}], 0 offen")]
    def padv():
        return ["s_add_u32 s90, s90, 1", "s_cmp_eq_u32 s90, 16", "s_cselect_b32 s16, s100, s101", "s_and_b32 s90, s90, 15", f"v_add_u32 v{V_PX}, s16, v{V_PX}",
                "s_add_u32 s91, s91, 1", "s_cmp_eq_u32 s91, 16", "s_cselect_b32 s16, s98, s99", "s_and_b32 s91, s91, 15", f"v_add_u32 v{V_PW}, s16, v{V_PW}"]
    def xadv():
        return [f"s_add_u32 s{S_KX}, s{S_KX}, 1", f"s_cmp_eq_u32 s{S_KX}, 16", f"s_cselect_b32 s16, s100, s101", f"s_and_b32 s{S_KX}, s{S_KX}, 15",
                f"v_add_u32 v{V_XA}, s16, v{V_XA}", f"v_add_u32 v{V_XB}, s16, v{V_XB}",
                f"s_add_u32 s{S_M0X}, s{S_M0X}, {XSLOT}", f"s_cmp_ge_u32 s{S_M0X}, {3*XSLOT}", f"s_cselect_b32 s16, {3*XSLOT}, 0", f"s_sub_u32 s{S_M0X}, s{S_M0X}, s16"]
    def wadv():
        return [f"s_add_u32 s{S_KW}, s{S_KW}, 1", f"s_cmp_eq_u32 s{S_KW}, 16", f"s_cselect_b32 s16, s98, s99", f"s_and_b32 s{S_KW}, s{S_KW}, 15",
                f"v_add_u32 v{V_WA}, s16, v{V_WA}", f"v_add_u32 v{V_WB}, s16, v{V_WB}"]
    FAST = OPT.get("fast", 1)
    if FAST:
        def xadv():
            return [f"v_add_u32 v{V_XA}, 0x80, v{V_XA}", f"v_add_u32 v{V_XB}, 0x80, v{V_XB}",
                    "s_mov_b32 s16, s87", "s_mov_b32 s87, s88", "s_mov_b32 s88, s89", "s_mov_b32 s89, s16", f"s_mov_b32 s{S_M0X}, s87"]
        def wadv():
            return [f"s_add_u32 s{S_W}, s{S_W}, {64*6144}|s_addc_u32 s{S_W+1}, s{S_W+1}, 0", f"s_sub_u32 s{S_W+2}, s{S_W+2}, {64*6144}"]
        def padv():
            return [f"v_add_u32 v{V_PX}, 0x80, v{V_PX}", f"v_add_u32 v{V_PW}, s99, v{V_PW}"]
    def xradv_fast():
        return [f"v_add_u32 v{V_RX[1]}, s92, v{V_RX[1]}", f"v_add_u32 v{V_RX[0]}, s92, v{V_RX[0]}",
                "s_mov_b32 s17, s92", "s_mov_b32 s92, s93", "s_mov_b32 s93, s94", "s_mov_b32 s94, s17"]
    def xradv(t):
        c = S_XR if t == 0 else 47
        return [f"s_add_u32 s{c}, s{c}, 1", f"s_cmp_eq_u32 s{c}, 3", f"s_cselect_b32 s17, s97, s96", f"s_cselect_b32 s{c}, 0, s{c}",
                f"v_add_u32 v{V_RX[t]}, s17, v{V_RX[t]}"]
    def reads(wslot, t, fs):
        r = []
        def X(a): return (("X", a, fs), f"ds_read_b128 {ar(FX[fs]+4*a,4)}, v{V_RX[t]} offset:{a*2048}")
        def W(c, u):
            j, b = c//2, c % 2
            return (("W", c, u, fs), f"ds_read_b64_tr_b16 {ar(FW[fs]+4*c+2*u,2)}, v{V_RW + b} offset:{WSL[wslot]-WB + j*8192 + t*4096 + u*512}")
        r.append(X(0))
        for c in range(6): r += [W(c,0), W(c,1)]
        for a in range(1, 8): r.append(X(a))
        return r
    def mfma(a, c, fs, swap, zero=False):
        x = ar(FX[fs]+4*a, 4); w = ar(FW[fs]+4*c, 4); d = vr(acc(a,c), 4)
        if swap[c//2]: x, w = w, x
        return f"v_mfma_f32_16x16x32_bf16 {d}, {x}, {w}, {'0' if zero else d}"
    carry = []
    clock = [0]
    def stage(trk, par, swap, do_x, do_w, do_warm, vm_bar, last, w3, extra=None, first=False, valu=None):
        for t in range(2):
            fs = t
            fill = [[] for _ in range(48)]
            if t == 0:
                for pos, item in carry: fill[pos].append(item)
                carry.clear()
                for g, x in enumerate(reads(par, 1, 1)): fill[2*g].append(("lds",) + x)
                if FAST:
                    for q, ins in enumerate(xradv_fast()): fill[40 + q].append(("raw", [ins]))
                else:
                    fill[41].append(("raw", xradv(1)))
                    if not last: fill[43].append(("raw", xradv(0)))
            else:
                if not last:
                    for g, x in enumerate(reads(par ^ 1, 0, 0)): fill[2*g+2].append(("lds",) + x)
                vm = []
                if do_w and not w3:
                    vm += [(d, None) for d in wdma(par)]; vm[-1] = (vm[-1][0], wadv())
                if do_x:
                    vm += [(d, None) for d in xdma(w3)]; vm[-1] = (vm[-1][0], xadv())
                if w3 and do_warm:
                    vm += [(d, None) for d in warm()]; vm[-1] = (vm[-1][0], padv())
                def put(pos, item):
                    if pos > 47: carry.append((pos - 48, item))
                    else: fill[pos].append(item)
                for g, (d, adv) in enumerate(vm):
                    pos = GAP0 + GSTEP*g
                    put(pos, ("dma", d))
                    if adv:
                        if FAST:
                            p = pos + 1
                            for ins in adv:
                                while (p % 2 == 0 and p % 48 <= 40) or ((p - GAP0) % GSTEP == 0): p += 1
                                put(p, ("raw", ins.split("|"))); p += 1
                        else:
                            put(pos, ("raw", adv))
            if t == 1 and extra: fill[3].append(("call", extra))
            if valu is not None:
                for gp in range(1, 48):
                    k = 1 if (gp % 2 == 1 or gp >= 40) else 0
                    for _ in range(k):
                        if valu: fill[gp].append(("raw", valu.pop(0).split("|")))
            n = 0
            for a in range(8):
                for c in range(6):
                    clock[0] += 1
                    need = trk.need([("X", a, fs), ("W", c, 0, fs), ("W", c, 1, fs)], clock[0], OPT.get("slack", 7))
                    if t == 1 and n == 0 and not last:
                        A("s_waitcnt lgkmcnt(0)"); trk.all_done()
                    elif need is not None:
                        A(f"s_waitcnt lgkmcnt({need})")
                    A(mfma(a, c, fs, swap, first and t == 0))
                    if t == 1 and n == 0 and not last:
                        A(f"s_waitcnt vmcnt({vm_bar})")
                        A("s_barrier")
                    m0w = False; between = 0
                    for f in fill[n]:
                        if f[0] == "dma":
                            for p in f[1][0]:
                                A(p); m0w = True
                    for f in fill[n]:
                        if f[0] == "lds":
                            A(f[2]); between += 1
                            trk.issue(f[1], clock[0])
                    for f in fill[n]:
                        if f[0] == "dma":
                            if m0w and between == 0: A("s_nop 0")
                            A(f[1][1])
                    for f in fill[n]:
                        if f[0] == "raw":
                            for p in f[1]: A(p)
                        if f[0] == "call": f[1]()
                    n += 1
    def gen_main(tag, swap, w3):
        trk = LgkmTracker()
        for tg, ins in reads(0, 0, 0):
            A(ins); trk.issue(tg, clock[0] + 100)
        A(f"s_mov_b32 s{S_CNT}, 0")
        nx_ = 14 if w3 else 6; nwarm = 2 if w3 else 0
        vm = nx_ if not w3 else (nwarm + nx_ + nwarm)
        stage(trk, 0, swap, True, True, True, nx_ + nwarm, False, w3, first=True)
        A(".p2align 6"); A.label(f".L{tag}_loop")
        stage(trk, 1, swap, True, True, True, vm, False, w3)
        stage(trk, 0, swap, True, True, True, vm, False, w3)
        A(f"s_add_u32 s{S_CNT}, s{S_CNT}, 1\ns_cmp_lt_u32 s{S_CNT}, 6\ns_cbranch_scc1 .L{tag}_loop")
        ex = None
        if w3 and OPT.get("cpf", 1):
            ex = lambda: code_prefetch(A, "late" + tag, ".Lph2_A", ".Lall_text_end", 10, V_DUM, True, n=5, sbase=20)
        vl = None
        if tag.startswith("B"):
            from k1b_gen import early_setup_B
            T = Asm(); early_setup_B(T)
            vl = [l.split(';')[0].strip() for l in T.lines if l.split(';')[0].strip()]
        stage(trk, 1, swap, False, True, False, vm, False, w3, ex, valu=vl)
        stage(trk, 0, swap, False, False, False, 0, False, w3, valu=vl)
        stage(trk, 1, swap, False, False, False, 0, True, w3, valu=vl)
        if vl:
            for l in vl:
                for p in l.split("|"): A(p)
    def stamp(i):
        if not stamps: return
        if OPT.get("fused") and i >= 3 and i != 5: return
        if i < 6: A(f"s_memrealtime s[{S_T0+2*i}:{S_T0+2*i+1}]")
        else: A(f"s_memrealtime s[{4+2*(i-6)}:{5+2*(i-6)}]")

    A(f".globl {name}\n.p2align 8\n.type {name},@function\n{name}:")
    stamp(0)
    A(f"""s_load_dwordx4 s[16:19], s[0:1], 0
s_load_dwordx4 s[20:23], s[0:1], 24
s_load_dwordx4 s[{S_D}:{S_D+3}], s[0:1], 56
s_cmp_ge_u32 s2, 256
s_cbranch_scc1 .L{name}_done
v_lshrrev_b32 v1, 6, v0
v_and_b32 v0, 63, v0
s_and_b32 s24, s2, 7
v_readfirstlane_b32 s{S_WAVE}, v1
s_lshr_b32 s25, s2, 3
s_and_b32 s{S_BR}, s24, 1
s_lshr_b32 s26, s24, 1               ; q = xcd>>1
s_and_b32 s27, s26, 1
s_lshr_b32 s28, s26, 1
s_lshl_b32 s27, s27, 2
s_and_b32 s29, s25, 3
s_add_u32 s{S_MB}, s27, s29
s_lshl_b32 s28, s28, 3
s_lshr_b32 s29, s25, 2
s_add_u32 s{S_HP}, s28, s29
s_mul_i32 s26, s26, {ROT}
s_and_b32 s{S_KX}, s26, 15
s_mov_b32 s{S_KW}, s{S_KX}
v_lshrrev_b32 v20, 3, v0            ; l>>3
v_lshrrev_b32 v21, 4, v0            ; g
v_and_b32 v22, 7, v0
v_xor_b32 v23, v22, v21
v_lshlrev_b32 v23, 4, v23
s_mul_i32 s24, s{S_WAVE}, 6
s_lshl_b32 s{S_M0X}, s24, 10
s_lshl_b32 s25, s24, 14
s_lshl_b32 s26, s{S_KX}, 7
s_add_u32 s25, s25, s26
v_lshlrev_b32 v24, 11, v20
v_add3_u32 v{V_XA}, v24, v23, s25
v_xor_b32 v{V_XB}, 64, v{V_XA}
v_and_b32 v23, 1, v21
v_lshlrev_b32 v23, 1, v23
v_xor_b32 v23, v22, v23
v_lshlrev_b32 v23, 4, v23
v_mul_u32_u24 v24, 6144, v20
s_lshl_b32 s{S_M0W}, s{S_WAVE}, 13
s_lshl_b32 s25, s{S_WAVE}, 11
s_mul_i32 s26, s{S_KW}, 393216
s_add_u32 s25, s25, s26
v_add3_u32 v{V_WA}, v24, v23, s25
v_xor_b32 v{V_WB}, 64, v{V_WA}
""")
    for m in range(1, 14): A(f"s_mov_b32 s{S_XC+m-1}, {m*16384 - (m%4)*1024}")
    for u in range(1, 8): A(f"s_mov_b32 s{S_WC+u-1}, {u*8*6144 - (u%4)*1024}")
    if OPT.get("cpf", 1):
        A(f"""s_getpc_b64 s[24:25]
.Lpc_early:
s_cmp_eq_u32 s{S_BR}, 0
s_cselect_b32 s26, .Lv_A0-.Lpc_early, 0
s_cselect_b32 s27, .Lv_A3-.Lpc_early, 0
s_cselect_b32 s28, 0, .Lv_B0-.Lpc_early
s_cselect_b32 s29, 0, .Lv_B3-.Lpc_early
s_add_u32 s26, s26, s28
s_add_u32 s27, s27, s29
s_cmp_eq_u32 s{S_WAVE}, 3
s_cselect_b32 s26, s27, s26
s_add_u32 s24, s24, s26
s_addc_u32 s25, s25, 0
v_lshlrev_b32 v13, 7, v0
global_load_dword v{V_DUM}, v13, s[24:25]
v_add_u32 v13, 0x2000, v13
v_min_u32 v13, 0x2400, v13
global_load_dword v{V_DUM}, v13, s[24:25]
""")
    A(f"""s_mov_b32 s87, s{S_M0X}
s_add_u32 s88, s{S_M0X}, {XSLOT}
s_add_u32 s89, s{S_M0X}, {2*XSLOT}
s_mov_b32 s92, {XSLOT}
s_mov_b32 s93, {XSLOT}
s_mov_b32 s94, {-2*XSLOT}
s_mov_b32 s100, -1920
s_mov_b32 s101, 128
s_mov_b32 s98, {-15*393216}
s_mov_b32 s99, 393216
s_cmp_eq_u32 s{S_BR}, 0
s_waitcnt lgkmcnt(0)
s_cselect_b32 s16, s16, s20
s_cselect_b32 s17, s17, s21
s_cselect_b32 s18, s18, s22
s_cselect_b32 s19, s19, s23
s_lshl_b32 s24, s{S_MB}, 19
s_add_u32 s{S_X}, s16, s24
s_addc_u32 s{S_X+1}, s17, 0
s_sub_u32 s{S_X+2}, 0x400000, s24
s_mov_b32 s{S_X+3}, 0x20000
s_lshl_b32 s24, s{S_HP}, 7
s_add_u32 s{S_W}, s18, s24
s_addc_u32 s{S_W+1}, s19, 0
s_sub_u32 s{S_W+2}, 0x600000, s24
s_mov_b32 s{S_W+3}, 0x20000
""")
    A(f"""s_mov_b32 s{S_O}, s{S_D+2}
s_mov_b32 s{S_O+1}, s{S_D+3}
s_mov_b32 s{S_O+2}, 0x10000000
s_mov_b32 s{S_O+3}, 0x20000
v_and_b32 v13, 7, v0
v_and_b32 v14, 1, v0
s_sub_u32 s24, s{S_MB}, 1
s_max_i32 s24, s24, 0
v_mov_b32 v15, s24
v_mov_b32 v16, s{S_MB}
v_cmp_eq_u32 vcc, 0, v14
s_cmp_eq_u32 s{S_BR}, 0
s_cselect_b32 s25, 0x4000, 0
v_cndmask_b32 v15, v15, v16, vcc
s_cselect_b64 vcc, -1, 0
s_lshl_b32 s26, s{S_HP}, 7
s_add_u32 s25, s25, s26
s_add_u32 s25, s25, {FLG}
v_cndmask_b32 v15, v15, v13, vcc
v_lshlrev_b32 v15, 11, v15
v_bfe_u32 v14, v0, 1, 1
v_lshlrev_b32 v14, 15, v14
v_cndmask_b32 v14, v14, 0, vcc
v_add3_u32 v{V_FL+1}, s25, v15, v14
buffer_load_dword v{V_FL}, v{V_FL+1}, s[{S_O}:{S_O+3}], 0 offen sc1
""")
    if OPT.get("fused"):
        A(f"""s_lshl_b32 s24, s{S_BR}, 3
s_add_u32 s24, s24, s{S_MB}
s_lshl_b32 s24, s24, 11
s_add_u32 s24, s24, {FLG + 0xC000}
v_and_b32 v61, 15, v0
v_lshlrev_b32 v61, 7, v61
v_add_u32 v61, s24, v61
buffer_load_dword v60, v61, s[{S_O}:{S_O+3}], 0 offen sc1
""")
    def issue(lst):
        for pre, ins in lst:
            for p in pre: A(p)
            if pre: A("s_nop 0")
            A(ins)
    def gc0():
        if OPT.get("gcyc"): A("s_memtime s[20:21]\ns_waitcnt lgkmcnt(0)\nv_accvgpr_write_b32 a254, v0\nv_mov_b32 v1, s20\nv_accvgpr_write_b32 a254, v1")
    def gc1():
        if OPT.get("gcyc"):
            A(f"""s_memtime s[20:21]
s_waitcnt lgkmcnt(0)
v_accvgpr_read_b32 v1, a254
v_sub_u32 v1, s20, v1
s_lshl_b32 s20, s2, 2
s_add_u32 s20, s20, {STAMP + 0x60000}
v_cmp_eq_u32 vcc, 0, v0
s_and_saveexec_b64 s[22:23], vcc
buffer_store_dword v1, off, s[{S_O}:{S_O+3}], s20
s_mov_b64 exec, s[22:23]
v_mov_b32 v1, s[20:21]
""".replace("v_mov_b32 v1, s[20:21]\n", ""))
            A("s_memtime s[20:21]\ns_waitcnt lgkmcnt(0)\nv_mov_b32 v1, s20\nv_accvgpr_write_b32 a254, v1")
    def gc2():
        if OPT.get("gcyc"):
            A(f"""s_memtime s[20:21]
s_waitcnt lgkmcnt(0)
v_accvgpr_read_b32 v1, a254
v_sub_u32 v1, s20, v1
s_lshl_b32 s20, s2, 2
s_add_u32 s20, s20, {STAMP + 0x61000}
v_cmp_eq_u32 vcc, 0, v0
s_and_saveexec_b64 s[22:23], vcc
buffer_store_dword v1, off, s[{S_O}:{S_O+3}], s20
s_mov_b64 exec, s[22:23]
""")
    def flag_extract():
        A(f"""s_cmp_eq_u32 s{S_BR}, 0
s_cselect_b32 s24, s{S_MB}, 0
s_cselect_b32 s25, 0x4000, 0
v_readlane_b32 s30, v{V_FL}, s24
v_readlane_b32 s31, v{V_FL}, 1
v_readlane_b32 s33, v{V_FL+1}, 1
v_readlane_b32 s3, v{V_FL}, 2
v_readlane_b32 s34, v{V_FL}, 3
s_lshl_b32 s24, s{S_MB}, 4
s_add_u32 s24, s24, s{S_HP}
s_lshl_b32 s24, s24, 7
s_add_u32 s32, s24, s25
s_add_u32 s32, s32, {FLG}
""")
        if OPT.get("fused"): A("v_accvgpr_write_b32 a252, v60\nv_accvgpr_write_b32 a253, v61")
    def late_setup():
        A(f"""s_mov_b32 s{S_D+2}, 256
s_mov_b32 s{S_D+3}, 0x20000
s_mov_b32 s97, {-2*XSLOT}
s_mov_b32 s96, {XSLOT}
s_mov_b32 s{S_XR}, 0
s_mov_b32 s47, 0
v_lshrrev_b32 v21, 4, v0
v_and_b32 v20, 15, v0
v_bfe_u32 v22, v0, 1, 3
v_xor_b32 v22, v22, v21
s_lshr_b32 s16, s{S_WAVE}, 1
s_lshl_b32 s16, s16, 7
v_add_u32 v23, s16, v20
v_lshlrev_b32 v23, 7, v23
""")
        for t in range(2):
            A(f"v_xor_b32 v24, {4*t}, v22\nv_lshlrev_b32 v24, 4, v24\nv_add_u32 v{V_RX[t]}, v23, v24")
        A(f"""v_bfe_u32 v20, v0, 2, 2
v_lshlrev_b32 v22, 3, v21
v_add_u32 v22, v22, v20
v_lshlrev_b32 v22, 7, v22
v_bfe_u32 v23, v0, 3, 1
v_and_b32 v24, 1, v21
v_lshlrev_b32 v24, 1, v24
v_or_b32 v23, v23, v24
s_and_b32 s16, s{S_WAVE}, 1
s_lshl_b32 s16, s16, 1
v_xor_b32 v23, s16, v23
v_lshlrev_b32 v23, 5, v23
v_add_u32 v22, v22, v23
v_and_b32 v23, 3, v0
v_lshlrev_b32 v23, 3, v23
v_add_u32 v22, v22, v23
v_add_u32 v{V_RW}, {WB}, v22
v_xor_b32 v{V_RW+1}, 32, v{V_RW}
""")
    A(f"s_cmp_eq_u32 s{S_WAVE}, 3\ns_cbranch_scc1 .Lp3")
    issue(xdma(False)); [A(q) for p in xadv() for q in p.split('|')]
    issue(wdma(0)); [A(q) for p in wadv() for q in p.split('|')]
    issue(wdma(1)); [A(q) for p in wadv() for q in p.split('|')]
    issue(xdma(False)); [A(q) for p in xadv() for q in p.split('|')]
    issue(xdma(False)); [A(q) for p in xadv() for q in p.split('|')]
    late_setup()
    A(f"s_waitcnt vmcnt({8+6+6})")
    flag_extract()
    A("s_barrier")
    stamp(1)
    gc0()
    A(f"s_cmp_eq_u32 s{S_BR}, 0\ns_cbranch_scc1 .Lmain_A0")
    A.label(".Lv_B0"); gen_main("B0", [1, 1, 0], False); A("s_branch .Lph2_B")
    A.label(".Lmain_A0"); A.label(".Lv_A0"); gen_main("A0", [1, 0, 0], False); A("s_branch .Lph2_A")
    A.label(".Lp3")
    issue(xdma(True)); [A(q) for p in xadv() for q in p.split('|')]
    issue(xdma(True)); [A(q) for p in xadv() for q in p.split('|')]
    issue(xdma(True)); [A(q) for p in xadv() for q in p.split('|')]
    A(f"""; warm voffsets
s_and_b32 s16, s{S_HP}, 7
s_lshl_b32 s16, s16, 5
v_and_b32 v20, 31, v0
v_add_u32 v20, s16, v20
v_lshlrev_b32 v20, 11, v20
s_add_u32 s90, s{S_KW}, {3 + DX}
s_mul_i32 s16, s2, 1
s_and_b32 s16, s2, 7
s_lshr_b32 s16, s16, 1
s_mul_i32 s16, s16, {ROT}
s_add_u32 s90, s16, {3 + DX}
s_and_b32 s90, s90, 15
s_lshl_b32 s17, s90, 7
v_add_u32 v{V_PX}, s17, v20
s_and_b32 s17, s{S_MB}, 3
s_lshl_b32 s17, s17, 4
v_and_b32 v20, 15, v0
v_add_u32 v20, s17, v20
v_mul_u32_u24 v20, 6144, v20
v_lshrrev_b32 v21, 4, v0
v_min_u32 v22, 2, v21
v_lshlrev_b32 v22, 11, v22
v_add_u32 v20, v20, v22
s_add_u32 s91, s16, {2 + DW}
s_and_b32 s91, s91, 15
s_mul_i32 s17, s91, 393216
v_add_u32 v{V_PW}, s17, v20
""")
    issue(warm()); [A(q) for p in padv() for q in p.split('|')]
    late_setup()
    A(f"s_waitcnt vmcnt({28 + 2})")
    flag_extract()
    A("s_barrier")
    stamp(1)
    gc0()
    A(f"s_cmp_eq_u32 s{S_BR}, 0\ns_cbranch_scc1 .Lmain_A3")
    A.label(".Lv_B3"); gen_main("B3", [1, 1, 0], True); A("s_branch .Lph2_B")
    A.label(".Lmain_A3"); A.label(".Lv_A3"); gen_main("A3", [1, 0, 0], True)
    A.label(".Lph2_A")
    stamp(2)
    gc1()
    A("s_waitcnt vmcnt(0)\ns_barrier\ns_nop 7")
    phase2_A(A, OPT, stamp)
    A(f"s_branch .Lph3")
    A.label(".Lph2_B")
    stamp(2)
    gc1()
    A("s_waitcnt vmcnt(0)\ns_barrier\ns_nop 7")
    b_tail = phase2_B(A, OPT, stamp) or (lambda A2: None)
    A.label(".Lph3")
    gc2()
    if OPT.get("fused"):
        import k3_gen
        k3_gen.gen_k3(A, OPT, name="p3", stamps=bool(stamps), fused=True)
    A.label(f".L{name}_fin")
    if stamps:
        A("s_waitcnt vmcnt(0)")
        stamp(5)
        A(f"""s_waitcnt lgkmcnt(0)
s_cmp_lg_u32 s{S_WAVE}, 0
s_cbranch_scc1 .L{name}_done
""")
        for q in range(12): A(f"v_mov_b32 v{20+q}, s{S_T0+q}")
        for q in range(4): A(f"v_mov_b32 v{32+q}, s{4+2*q}")
        A(f"""s_lshl_b32 s16, s2, 5
s_add_u32 s16, s16, {STAMP + 0x8000}
v_mov_b32 v41, s16
s_lshl_b32 s16, s2, 6
s_add_u32 s16, s16, {STAMP}
v_mov_b32 v40, s16
v_cmp_eq_u32 vcc, 0, v0
s_and_saveexec_b64 s[18:19], vcc
s_cbranch_execz .L{name}_done
buffer_store_dwordx4 v[20:23], v40, s[{S_O}:{S_O+3}], 0 offen
buffer_store_dwordx4 v[24:27], v40, s[{S_O}:{S_O+3}], 0 offen offset:16
buffer_store_dwordx4 v[28:31], v40, s[{S_O}:{S_O+3}], 0 offen offset:32
buffer_store_dwordx4 v[32:35], v41, s[{S_O}:{S_O+3}], 0 offen
buffer_store_dwordx2 v[36:37], v41, s[{S_O}:{S_O+3}], 0 offen offset:16
""")
    A.label(f".L{name}_done")
    A("s_endpgm")
    b_tail(A)
    A.label(".Lk1_text_end")
    if OPT.get("fused"): A.label(".Lall_text_end")
    return kdesc(name, 512, 256, 102), LDS1

def code_prefetch(A, tag, start, end, voff, vdst, forward, n=1, sbase=20):
    A(f"s_getpc_b64 s[{sbase}:{sbase+1}]")
    A.label(f".Lpc_{tag}")
    if forward:
        A(f"s_add_u32 s{sbase}, s{sbase}, {start}-.Lpc_{tag}")
        A(f"s_addc_u32 s{sbase+1}, s{sbase+1}, 0")
    else:
        A(f"s_sub_u32 s{sbase}, s{sbase}, .Lpc_{tag}-{start}")
        A(f"s_subb_u32 s{sbase+1}, s{sbase+1}, 0")
    A(f"v_lshlrev_b32 v{voff}, 7, v0")
    for i in range(n):
        A(f"v_min_u32 v{voff+1}, {end}-{start}-4, v{voff}")
        A(f"global_load_dword v{vdst}, v{voff+1}, s[{sbase}:{sbase+1}]")
        if i < n-1: A(f"v_add_u32 v{voff}, 0x2000, v{voff}")

POLL_LIMIT = 200000
def signal2(A, tag, off_sreg, val_sreg, tv, oldreg=30, flagreg=32, sigwave=0):
    A(f"""s_cmp_lg_u32 s{S_WAVE}, {sigwave}
s_cbranch_scc1 .Lsig_{tag}_end
s_add_u32 s{oldreg}, s{oldreg}, 1
v_mov_b32 v{tv}, s{oldreg}
v_mov_b32 v{tv+1}, s{val_sreg}
s_mov_b64 exec, 1
buffer_store_dword v{tv}, off, s[{S_O}:{S_O+3}], s{flagreg} sc1
buffer_atomic_add v{tv+1}, off, s[{S_D}:{S_D+3}], s{off_sreg}
s_mov_b64 exec, -1
.Lsig_{tag}_end:""")

def poll2(A, tag, isA, dbg_off_sreg, dbg_test, tv, seenreg=31, flagreg=33, allwaves=False, pre=None):
    if pre is not None:
        A(f"""s_waitcnt vmcnt(0)
v_readfirstlane_b32 s16, v{pre}
s_nop 0
s_cmp_lg_u32 s16, s{seenreg}
s_cbranch_scc1 .Lpoll_{tag}_end""")
    if not allwaves:
        A(f"""s_cmp_lg_u32 s{S_WAVE}, 0
s_cbranch_scc1 .Lpoll_{tag}_end""")
    A(f"""s_mov_b32 s17, 0
.Lpoll_{tag}:""")
    if isA:
        A(f"""buffer_load_dword v{tv}, v{V_FL+1}, s[{S_O}:{S_O+3}], 0 offen sc1
s_waitcnt vmcnt(0)
v_cmp_ne_u32 vcc, v{tv}, v{V_FL}
s_nop 1
s_and_b32 s16, vcc_lo, 0xff
s_cmp_eq_u32 s16, 0xff
s_cbranch_scc1 .Lpoll_{tag}_end""")
    else:
        A(f"""buffer_load_dword v{tv}, off, s[{S_O}:{S_O+3}], s{flagreg} sc1
s_waitcnt vmcnt(0)
v_readfirstlane_b32 s16, v{tv}
s_nop 0
s_cmp_lg_u32 s16, s{seenreg}
s_cbranch_scc1 .Lpoll_{tag}_end""")
    A(f"""s_add_u32 s17, s17, 1
s_and_b32 s16, s17, 15
s_cmp_lg_u32 s16, 0
s_cbranch_scc1 .Lpoll_{tag}
buffer_load_dword v{tv}, off, s[{S_D}:{S_D+3}], s{dbg_off_sreg} sc1
s_waitcnt vmcnt(0)
v_readfirstlane_b32 s16, v{tv}
s_nop 0
{dbg_test}
s_cbranch_scc1 .Lpoll_{tag}_end
s_cmp_lt_u32 s17, {POLL_LIMIT}
s_cbranch_scc1 .Lpoll_{tag}
.Lpoll_{tag}_end:""")

def phi_ops(regs, tmp):
    ops = []
    for k in range(0, len(regs), 2):
        r = regs[k]; t = tmp[(k//2) % len(tmp)]
        ops.append(f"v_pk_mul_f32 v[{t}:{t+1}], v[{r}:{r+1}], s[18:19]")
        ops.append(f"v_max_f32 v{r}, 0, v{r}")
        ops.append(f"v_exp_f32_e64 v{t}, v{t} clamp")
        ops.append(f"v_exp_f32_e64 v{t+1}, v{t+1} clamp")
        ops.append(f"v_max_f32 v{r+1}, 0, v{r+1}")
        ops.append(f"v_pk_add_f32 v[{r}:{r+1}], v[{r}:{r+1}], v[{t}:{t+1}]")
        ops.append(f"v_pk_add_f32 v[{r}:{r+1}], v[{r}:{r+1}], s[22:23]")
    return ops

def phase2_A(A, OPT, stamp):
    KV = 16
    Z = 32
    ONES = 40
    TMP = [44, 46, 48, 50]
    if OPT.get("wopf", 1):
        A(f"""s_lshl_b32 s16, s{S_MB}, 4
s_add_u32 s16, s16, s{S_HP}
s_lshl_b32 s16, s16, 2
s_add_u32 s16, s16, s{S_WAVE}
s_lshr_b32 s17, s16, 8
s_mul_i32 s17, s17, 24
s_add_u32 s17, s17, 16
s_load_dwordx2 s[20:21], s[0:1], s17
s_and_b32 s16, s16, 255
s_lshl_b32 s16, s16, 13
v_lshlrev_b32 v13, 7, v0
v_add_u32 v13, s16, v13
s_waitcnt lgkmcnt(0)
global_load_dword v12, v13, s[20:21]
""")
    A(f"""s_mov_b32 s18, {LOG2E}
s_mov_b32 s19, {LOG2E}
s_mov_b32 s22, {EPS}
s_mov_b32 s23, {EPS}
""")
    for r in range(4): A(f"v_mov_b32 v{ONES+r}, 0x3f803f80")
    for s in range(4):
        for b in range(2):
            t0 = acc(2*s, 2+b); t1 = acc(2*s+1, 2+b)
            for op in phi_ops([t0, t0+1, t0+2, t0+3, t1, t1+1, t1+2, t1+3], TMP): A(op)
            A(f"v_cvt_pk_bf16_f32 v{t0}, v{t0}, v{t0+1}")
            A(f"v_cvt_pk_bf16_f32 v{t0+1}, v{t0+2}, v{t0+3}")
            A(f"v_cvt_pk_bf16_f32 v{t0+2}, v{t1}, v{t1+1}")
            A(f"v_cvt_pk_bf16_f32 v{t0+3}, v{t1+2}, v{t1+3}")
        for b in range(2):
            t0 = acc(2*s, 4+b); t1 = acc(2*s+1, 4+b)
            A(f"v_cvt_pk_bf16_f32 v{t0}, v{t0}, v{t0+1}")
            A(f"v_cvt_pk_bf16_f32 v{t0+1}, v{t0+2}, v{t0+3}")
            A(f"v_cvt_pk_bf16_f32 v{t0+2}, v{t1}, v{t1+1}")
            A(f"v_cvt_pk_bf16_f32 v{t0+3}, v{t1+2}, v{t1+3}")
        A("s_nop 1")
        for b in range(2):
            pk = vr(acc(2*s, 2+b), 4)
            for bp in range(2):
                d = vr(KV + (b*2+bp)*4, 4)
                A(f"v_mfma_f32_16x16x32_bf16 {d}, {pk}, {vr(acc(2*s, 4+bp), 4)}, {'0' if s == 0 else d}")
            d = vr(Z + 4*b, 4)
            A(f"v_mfma_f32_16x16x32_bf16 {d}, {pk}, {vr(ONES,4)}, {'0' if s == 0 else d}")
    A(f"""v_lshlrev_b32 v44, 4, v0
s_and_b32 s16, s{S_WAVE}, 1
s_mul_i32 s16, s16, 6144
v_add_u32 v44, s16, v44
s_nop 7
s_cmp_lt_u32 s{S_WAVE}, 2
s_cbranch_scc1 .LA_skipw
""")
    for i in range(6): A(f"ds_write_b128 v44, {vr(KV+4*i,4)} offset:{i*1024}")
    A.label(".LA_skipw")
    A("s_waitcnt lgkmcnt(0)\ns_barrier")
    A(f"s_cmp_ge_u32 s{S_WAVE}, 2\ns_cbranch_scc1 .LA_skipr")
    for i in range(6): A(f"ds_read_b128 {ar(4*i,4)}, v44 offset:{i*1024}")
    A("s_waitcnt lgkmcnt(0)")
    for i in range(24):
        A(f"v_accvgpr_read_b32 v{46 + (i%2)}, a{i}")
        A(f"v_add_f32 v{KV+i}, v{KV+i}, v{46 + (i%2)}")
    A(f"""s_lshl_b32 s16, s{S_HP}, 1
s_and_b32 s17, s{S_WAVE}, 1
s_add_u32 s16, s16, s17              ; head
s_lshl_b32 s17, s{S_MB}, 5
s_add_u32 s16, s16, s17
s_lshl_b32 s16, s16, 13
s_add_u32 s16, s16, {PART}
v_lshlrev_b32 v45, 4, v0
""")
    for i in range(4): A(f"buffer_store_dwordx4 {vr(KV+4*i,4)}, v45, s[{S_O}:{S_O+3}], s16 offen offset:{i*1024} sc1")
    A(f"""v_lshrrev_b32 v46, 4, v0
v_lshlrev_b32 v46, 4, v46
v_and_b32 v47, 15, v0
v_cmp_eq_u32 vcc, 0, v47
s_add_u32 s16, s16, 4096
s_and_saveexec_b64 s[20:21], vcc
buffer_store_dwordx4 {vr(Z,4)}, v46, s[{S_O}:{S_O+3}], s16 offen sc1
buffer_store_dwordx4 {vr(Z+4,4)}, v46, s[{S_O}:{S_O+3}], s16 offen offset:64 sc1
s_mov_b64 exec, s[20:21]
""")
    A.label(".LA_skipr")
    for a in range(8):
        t0 = acc(a, 0); t1 = acc(a, 1)
        for op in phi_ops([t0, t0+1, t0+2, t0+3, t1, t1+1, t1+2, t1+3], TMP): A(op)
        A(f"v_cvt_pk_bf16_f32 v{t0}, v{t0}, v{t0+1}")
        A(f"v_cvt_pk_bf16_f32 v{t0+1}, v{t0+2}, v{t0+3}")
        A(f"v_cvt_pk_bf16_f32 v{t0+2}, v{t1}, v{t1+1}")
        A(f"v_cvt_pk_bf16_f32 v{t0+3}, v{t1+2}, v{t1+3}")
    stamp(3)
    A("s_waitcnt vmcnt(0)\ns_barrier")
    stamp(6)
    A(f"s_lshl_b32 s20, s{S_HP}, 2\ns_add_u32 s20, s20, 128\ns_mov_b32 s21, 1")
    signal2(A, "A", 20, 21, 60)
    poll2(A, "A", True, 20, "s_cmp_ge_u32 s16, 8", 60)
    A("s_barrier")
    stamp(7)
    A(f"""s_lshl_b32 s16, s{S_HP}, 1
s_and_b32 s17, s{S_WAVE}, 1
s_add_u32 s16, s16, s17              ; head
s_lshr_b32 s17, s{S_WAVE}, 1
s_lshl_b32 s17, s17, 7               ; 4wm*32
s_add_u32 s16, s16, s17
s_lshl_b32 s16, s16, 13
s_add_u32 s16, s16, {PART}
v_lshlrev_b32 v45, 4, v0
v_lshrrev_b32 v46, 4, v0
v_lshlrev_b32 v46, 4, v46
v_add_u32 v46, 4096, v46
""")
    for i in range(4):
        for q in range(4): A(f"buffer_load_dwordx4 {ar(i*24 + 4*q, 4)}, v45, s[{S_O}:{S_O+3}], s16 offen offset:{q*1024} sc1")
        for b in range(2): A(f"buffer_load_dwordx4 {ar(i*24 + 16 + 4*b, 4)}, v46, s[{S_O}:{S_O+3}], s16 offen offset:{b*64} sc1")
        if i < 3: A(f"s_add_u32 s16, s16, {32*8192}")
    A("s_waitcnt vmcnt(0)")
    stamp(8)
    for r in range(24):
        A(f"v_accvgpr_read_b32 v{KV+r}, a{r}")
        A(f"v_accvgpr_read_b32 v46, a{24+r}")
        A(f"v_accvgpr_read_b32 v47, a{48+r}")
        A(f"v_accvgpr_read_b32 v48, a{72+r}")
        A(f"v_add_f32 v{KV+r}, v{KV+r}, v46")
        A(f"v_add_f32 v47, v47, v48")
        A(f"v_add_f32 v{KV+r}, v{KV+r}, v47")
    A(f"""v_lshlrev_b32 v44, 4, v0
s_mul_i32 s16, s{S_WAVE}, 6144
v_add_u32 v45, s16, v44
s_xor_b32 s17, s{S_WAVE}, 2
s_mul_i32 s16, s17, 6144
v_add_u32 v44, s16, v44
""")
    for i in range(6): A(f"ds_write_b128 v45, {vr(KV+4*i,4)} offset:{16384 + i*1024}")
    A("s_waitcnt lgkmcnt(0)\ns_barrier")
    for i in range(6): A(f"ds_read_b128 {ar(4*i,4)}, v44 offset:{16384 + i*1024}")
    A("s_waitcnt lgkmcnt(0)")
    for i in range(24):
        A(f"v_accvgpr_read_b32 v{46 + (i%2)}, a{i}")
        A(f"v_add_f32 v{KV+i}, v{KV+i}, v{46 + (i%2)}")
    for bp in range(2):
        for b in range(2):
            s = KV + (b*2+bp)*4; d = 48 + 4*bp + 2*b
            A(f"v_cvt_pk_bf16_f32 v{d}, v{s}, v{s+1}")
            A(f"v_cvt_pk_bf16_f32 v{d+1}, v{s+2}, v{s+3}")
    for b in range(2):
        s = Z + 4*b; d = 56 + 2*b
        A(f"v_cvt_pk_bf16_f32 v{d}, v{s}, v{s+1}")
        A(f"v_cvt_pk_bf16_f32 v{d+1}, v{s+2}, v{s+3}")
    A("s_nop 1")
    for a in range(8):
        pq = vr(acc(a, 0), 4)
        A(f"v_mfma_f32_16x16x32_bf16 {vr(acc(a,2),4)}, v[48:51], {pq}, 0")
        A(f"v_mfma_f32_16x16x32_bf16 {vr(acc(a,3),4)}, v[52:55], {pq}, 0")
        A(f"v_mfma_f32_16x16x32_bf16 {vr(acc(a,4),4)}, v[56:59], {pq}, 0")
    A(f"""s_lshl_b32 s16, s{S_MB}, 4
s_lshr_b32 s17, s{S_WAVE}, 1
s_lshl_b32 s17, s17, 3
s_add_u32 s16, s16, s17
s_lshl_b32 s16, s16, 5
s_lshl_b32 s17, s{S_HP}, 1
s_add_u32 s16, s16, s17
s_and_b32 s17, s{S_WAVE}, 1
s_add_u32 s16, s16, s17
s_lshl_b32 s16, s16, 10
s_add_u32 s16, s16, {O_IMG}
v_lshlrev_b32 v45, 4, v0
""")
    for a in range(8):
        n0 = acc(a, 2); n1 = acc(a, 3); de = acc(a, 4); o = acc(a, 5)
        A(f"v_add_f32 v{de+1}, {EPS}, v{de}")
        A(f"v_rcp_f32 v{de+1}, v{de+1}")
        A("s_nop 0")
        for r in range(4): A(f"v_mul_f32 v{n0+r}, v{n0+r}, v{de+1}")
        for r in range(4): A(f"v_mul_f32 v{n1+r}, v{n1+r}, v{de+1}")
        A(f"v_cvt_pk_bf16_f32 v{o}, v{n0}, v{n0+1}")
        A(f"v_cvt_pk_bf16_f32 v{o+1}, v{n0+2}, v{n0+3}")
        A(f"v_cvt_pk_bf16_f32 v{o+2}, v{n1}, v{n1+1}")
        A(f"v_cvt_pk_bf16_f32 v{o+3}, v{n1+2}, v{n1+3}")
        A(f"buffer_store_dwordx4 {vr(o,4)}, v45, s[{S_O}:{S_O+3}], s16 offen sc1")
        if a < 7: A(f"s_add_u32 s16, s16, 32768")
    stamp(4)

def phase2_B(A, OPT, stamp):
    from k1b_gen import gen_B
    return gen_B(A, OPT, stamp)
```

```python
from asmgen import *
import k1_gen as K
from k1_gen import *

KBASE, VBASE, QBASE = 0, 65536, 131072
V_KW, V_VW, V_QW, V_HL, V_KR, V_VR, V_OS, V_QR = 24, 25, 26, 27, 28, 29, 30, 31
V_T = 15
V_GK, V_GV = 12, 13
V_HS = 14
PM = 16
CMA, CMB = 32, 48
SA = [64, 80]; SB = 96
PB = [112, 120]
O_ = lambda i: 128 + 16*i
L_ = lambda i: 64 + 16*i
FT = 200
QF = lambda i, t: 128 + 8*i + 4*t
KF = [160, 168]; KF2 = 176
VF = [184, 192]; VF2 = 200
ONES = 208
HS = 0

def gen_B(A, OPT, stamp):
    PR = [4, 6, 8, 10, 48, 50, 52, 54, 56, 58]
    def P(i):
        if OPT.get("prof2"): A(f"s_memtime s[{PR[i]}:{PR[i]+1}]")
    P(0)
    PXr = 216
    PYr = 192
    def kq_off(a, b): return (a >> 1)*2048 + b*1024 + (a & 1)*256
    def v_off(a, b): return (a >> 1)*2048 + (a & 1)*1024 + b*256
    A(f"""; halo store base (this WG): HALO + ((mb*16+hp)*4 + wave)*16384
s_lshl_b32 s36, s{S_MB}, 4
s_add_u32 s36, s36, s{S_HP}
s_lshl_b32 s36, s36, 16
s_add_u32 s36, s36, {HALO}
s_lshr_b32 s16, s{S_WAVE}, 1
s_lshl_b32 s16, s16, 16
s_and_b32 s17, s{S_WAVE}, 1
s_lshl_b32 s17, s17, 15
s_add_u32 s16, s16, s17
s_add_u32 s16, s16, 16384
v_add_u32 v{V_HS}, s16, v{V_HL}
v_accvgpr_read_b32 v{V_GK}, a250
v_accvgpr_read_b32 v{V_GV}, a251
s_mov_b32 s22, {QSCALE}
s_mov_b32 s23, {QSCALE}
""")
    def kq_o(a): return (a >> 1)*2048 + (a & 1)*256
    def v_o(a): return (a >> 1)*2048 + (a & 1)*1024
    A(f"""s_mov_b32 s24, s{S_O}
s_mov_b32 s25, s{S_O+1}
s_mov_b32 s27, 0x20000
s_cmp_ge_u32 s{S_WAVE}, 2
s_cselect_b32 s26, 0x10000000, 0
""")
    free = []
    UNIT = {}
    units = []
    def kv_unit(a):
        for (nm, cc, vw, off, vg, swp) in (("K", 2, V_KW, kq_o(a), V_GK, "v_permlane16_swap_b32"), ("V", 4, V_VW, v_o(a), V_GV, "v_permlane32_swap_b32")):
            t0 = acc(a, cc); t1 = acc(a, cc+1)
            d = t0 if a >= 5 else free.pop(0)
            UNIT[(nm, a)] = d
            cv = [f"v_cvt_pk_bf16_f32 v{d}, v{t0}, v{t0+1}", f"v_cvt_pk_bf16_f32 v{d+1}, v{t0+2}, v{t0+3}",
                  f"v_cvt_pk_bf16_f32 v{d+2}, v{t1}, v{t1+1}", f"v_cvt_pk_bf16_f32 v{d+3}, v{t1+2}, v{t1+3}"]
            post = [f"{swp} v{d}, v{d+2}", f"{swp} v{d+1}, v{d+3}",
                    f"buffer_store_dwordx4 {vr(d,4)}, v{vg}, s[24:27], s{16 + off//2048} offen offset:{off % 2048} sc1",
                    f"ds_write_b128 v{vw}, {vr(d,4)} offset:{off}"]
            units.append((cv, post))
    def q_unit(a):
        t0 = acc(a, 0); t1 = acc(a, 1)
        cv = [f"v_pk_mul_f32 v[{t}:{t+1}], v[{t}:{t+1}], s[22:23]" for t in (t0, t0+2, t1, t1+2)]
        cv += [f"v_cvt_pk_bf16_f32 v{t0}, v{t0}, v{t0+1}", f"v_cvt_pk_bf16_f32 v{t0+1}, v{t0+2}, v{t0+3}",
               f"v_cvt_pk_bf16_f32 v{t0+2}, v{t1}, v{t1+1}", f"v_cvt_pk_bf16_f32 v{t0+3}, v{t1+2}, v{t1+3}"]
        post = [f"v_permlane16_swap_b32 v{t0}, v{t0+2}", f"v_permlane16_swap_b32 v{t0+1}, v{t0+3}", f"ds_write_b128 v{V_QW}, {vr(t0,4)} offset:{kq_o(a)}"]
        units.append((cv, post))
    for a in (7, 6, 5):
        kv_unit(a); q_unit(a)
        free += [c for c in (acc(a, 3), acc(a, 5), acc(a, 1), acc(a, 0)) if c >= 192]
    for a in (4, 3, 2, 1, 0): kv_unit(a)
    for a in (4, 3, 2, 1, 0): q_unit(a)
    for q in range(4): A(f"s_add_u32 s{16+q}, s36, {q*2048}")
    for l in units[0][0]: A(l)
    for u in range(len(units)):
        if u + 1 < len(units):
            for l in units[u+1][0]: A(l)
        else:
            A("s_nop 1")
        for l in units[u][1]: A(l)
    assert all(v >= 192 for v in UNIT.values()), UNIT
    if not OPT.get("cyc"): stamp(6)
    P(1)
    for rho in range(16):
        key = 8*(rho//4) + rho % 4
        A(f"v_cmp_le_i32 s[{S_MASK+2*rho}:{S_MASK+2*rho+1}], {key}, v{V_T}")
    A("v_mov_b32 v10, 0x3f803f80")
    for r in range(4): A(f"v_accvgpr_write_b32 a{ONES+r}, v10")

    A(f"""s_lshl_b32 s16, s{S_MB}, 3
s_lshr_b32 s17, s{S_WAVE}, 1
s_add_u32 s16, s16, s17
s_lshl_b32 s16, s16, 16
s_lshl_b32 s17, s{S_HP}, 1
s_and_b32 s18, s{S_WAVE}, 1
s_add_u32 s17, s17, s18
s_lshl_b32 s17, s17, 10
s_add_u32 s16, s16, s17
s_add_u32 s97, s16, {O_IMG + 0x400000}
s_mov_b32 s{S_FB}, 0
s_mov_b32 s98, 0x33800000
s_mov_b32 s99, 0x53800000
s_waitcnt lgkmcnt(0)
s_barrier
""")
    if not OPT.get("cyc"): stamp(7)
    P(2)
    A(f"""s_sub_u32 s20, s{S_MB}, 1
s_max_i32 s20, s20, 0
s_lshl_b32 s20, s20, 4
s_add_u32 s20, s20, s{S_HP}
s_lshl_b32 s20, s20, 16
s_add_u32 s20, s20, {HALO}
s_and_b32 s17, s{S_WAVE}, 1          ; wn
s_lshl_b32 s16, s17, 14
s_add_u32 s35, s20, s16
s_add_u32 s37, s35, 32768            ; V quarter
s_lshl_b32 s29, s17, 15
s_add_u32 s38, s29, 65536
s_lshl_b32 s16, s{S_WAVE}, 14
s_add_u32 s39, s20, s16
s_lshr_b32 s16, s{S_WAVE}, 1
s_lshl_b32 s16, s16, 16
s_add_u32 s47, s16, s29
s_cmp_eq_u32 s{S_MB}, 0
s_cselect_b32 s26, 0, 0x10000000
""")
    for i in range(4):
        for t in range(2): A(f"ds_read_b128 {ar(QF(i,t),4)}, v{V_QR} offset:{i*4096 + t*1024}")
    A("s_waitcnt lgkmcnt(0)")
    stamp(3)

    def full(i, d): return dict(slot=i, kind="full", bk=8+2*i-d, cm=(None if d <= 2*i else (CMA if d == 2*i+1 else CMB)))
    def merged(i): return dict(slot=i, kind="merged", bk=8+2*i, bk2=2*i, cm=None)
    P1 = [full(3,1), full(3,2), full(2,1), full(3,3), full(2,2), full(3,4), full(1,1), full(2,3), full(3,5), full(1,2), full(2,4), full(3,6)]
    HJ = [full(0,1), full(1,3), full(2,5), full(3,7), full(0,2), full(1,4), full(2,6), merged(3), full(0,3), full(1,5), full(2,7), full(0,4), full(1,6), merged(2)]
    LJ = [full(0,5), full(1,7), full(0,6), merged(1), full(0,7), merged(0)]
    JOBS = P1 + HJ + LJ
    kb = -1; prev = None
    for j in JOBS:
        if j["bk"] != prev: kb += 1; j["new"] = True
        else: j["new"] = False
        j["buf"] = kb % 2; j["tagid"] = kb; prev = j["bk"]
    touched = set()
    def run_pipeline(jobs, hooks, final, xl={}, xv={}):
        trk = LgkmTracker()
        N = len(jobs)
        def loadK(n):
            j = jobs[n]; r = []
            if j["new"]:
                for t in range(2): r.append((("K", j["tagid"], t), f"ds_read_b128 {ar(KF[j['buf']]+4*t,4)}, v{V_KR} offset:{j['bk']*2048 + t*1024}"))
            if j["kind"] == "merged":
                for t in range(2): r.append((("K2", n, t), f"ds_read_b128 {ar(KF2+4*t,4)}, v{V_KR} offset:{j['bk2']*2048 + t*1024}"))
            return r
        def loadV(n):
            j = jobs[n]; r = []
            if j["new"]:
                for t in range(2): r.append((("V", j["tagid"], t), f"ds_read_b128 {ar(VF[j['buf']]+4*t,4)}, v{V_VR} offset:{j['bk']*2048 + t*1024}"))
            if j["kind"] == "merged":
                for t in range(2): r.append((("V2", n, t), f"ds_read_b128 {ar(VF2+4*t,4)}, v{V_VR} offset:{j['bk2']*2048 + t*1024}"))
            return r
        def partA(n):
            j = jobs[n]; i = j["slot"]; S = SA[n % 2]; m = []
            c0 = "0" if j["cm"] is None else vr(j["cm"], 16)
            kf = KF[j["buf"]]; tg = j["tagid"]
            m.append(([("K", tg, 0)], f"v_mfma_f32_32x32x16_bf16 {vr(S,16)}, {ar(kf,4)}, {ar(QF(i,0),4)}, {c0}"))
            m.append(([("K", tg, 1)], f"v_mfma_f32_32x32x16_bf16 {vr(S,16)}, {ar(kf+4,4)}, {ar(QF(i,1),4)}, {vr(S,16)}"))
            if j["kind"] == "merged":
                m.append(([("K2", n, 0)], f"v_mfma_f32_32x32x16_bf16 {vr(SB,16)}, {ar(KF2,4)}, {ar(QF(i,0),4)}, {vr(CMB,16)}"))
                m.append(([("K2", n, 1)], f"v_mfma_f32_32x32x16_bf16 {vr(SB,16)}, {ar(KF2+4,4)}, {ar(QF(i,1),4)}, {vr(SB,16)}"))
            return m
        def partV(n):
            j = jobs[n]; S = SA[n % 2]; P = PB[n % 2]; v = []
            if j["kind"] == "merged":
                v.append((8, "s_nop 1"))
                for r in range(16): v.append((4, f"v_cndmask_b32 v{S+r}, v{SB+r}, v{S+r}, s[{S_MASK+2*r}:{S_MASK+2*r+1}]"))
            seq = []
            for r in range(16):
                v.append((8, f"v_exp_f32 v{S+r}, v{S+r}"))
                if r >= 2 and r % 2 == 0 and r < 14: v.append((4, f"v_cvt_pk_bf16_f32 v{P+(r-2)//2}, v{S+r-2}, v{S+r-1}"))
            v.append((4, f"v_cvt_pk_bf16_f32 v{P+6}, v{S+12}, v{S+13}"))
            v.append((4, f"v_cvt_pk_bf16_f32 v{P+7}, v{S+14}, v{S+15}"))
            if j["kind"] == "merged":
                for k in range(8):
                    v.append((4, f"v_and_b32 v{PXr+k}, v{PM+k}, v{P+k}"))
                    v.append((4, f"v_bfi_b32 v{PYr+k}, v{PM+k}, 0, v{P+k}"))
            return v
        def partB(n):
            j = jobs[n]; i = j["slot"]; P = PB[n % 2]; m = []
            first = i not in touched
            touched.add(i)
            O = vr(O_(i), 16); L = ar(L_(i), 16)
            vf = VF[j["buf"]]; tg = j["tagid"]
            if j["kind"] == "full":
                m.append(([("V", tg, 0)], f"v_mfma_f32_32x32x16_bf16 {O}, {ar(vf,4)}, {vr(P,4)}, {'0' if first else O}"))
                m.append(([], f"v_mfma_f32_32x32x16_bf16 {L}, {ar(ONES,4)}, {vr(P,4)}, {'0' if first else L}"))
                m.append(([("V", tg, 1)], f"v_mfma_f32_32x32x16_bf16 {O}, {ar(vf+4,4)}, {vr(P+4,4)}, {O}"))
                m.append(([], f"v_mfma_f32_32x32x16_bf16 {L}, {ar(ONES,4)}, {vr(P+4,4)}, {L}"))
            else:
                m.append(([("V", tg, 0)], f"v_mfma_f32_32x32x16_bf16 {O}, {ar(vf,4)}, {vr(PXr,4)}, {'0' if first else O}"))
                m.append(([], f"v_mfma_f32_32x32x16_bf16 {L}, {ar(ONES,4)}, {vr(P,4)}, {'0' if first else L}"))
                m.append(([("V", tg, 1)], f"v_mfma_f32_32x32x16_bf16 {O}, {ar(vf+4,4)}, {vr(PXr+4,4)}, {O}"))
                m.append(([], f"v_mfma_f32_32x32x16_bf16 {L}, {ar(ONES,4)}, {vr(P+4,4)}, {L}"))
                m.append(([("V2", n, 0)], f"v_mfma_f32_32x32x16_bf16 {O}, {ar(VF2,4)}, {vr(PYr,4)}, {O}"))
                m.append(([("V2", n, 1)], f"v_mfma_f32_32x32x16_bf16 {O}, {ar(VF2+4,4)}, {vr(PYr+4,4)}, {O}"))
            return m
        def emit_iter(mf, va, lds):
            total = sum(it[0] for it in va)
            m = len(mf)
            vi = 0; cum = 0
            ldsq = list(lds)
            if m == 0:
                for tag, ins in ldsq:
                    A(ins); trk.issue(tag)
                if va: A("s_nop 7\ns_nop 3")
                for it in va:
                    if len(it) > 2:
                        nd = trk.need(it[2])
                        if nd is not None: A(f"s_waitcnt lgkmcnt({nd})")
                    A(it[1])
                return
            for k, (tags, ins) in enumerate(mf):
                need = trk.need(tags) if tags else None
                if need is not None: A(f"s_waitcnt lgkmcnt({need})")
                A(ins)
                nl = (len(ldsq) + (m - k) - 1)//(m - k) if ldsq else 0
                for _ in range(min(nl, len(ldsq))):
                    tag, li = ldsq.pop(0); A(li); trk.issue(tag)
                target = total*(k+1)/m
                while vi < len(va) and (cum < target - 2 or k == m-1):
                    if len(va[vi]) > 2:
                        nd = trk.need(va[vi][2])
                        if nd is not None: A(f"s_waitcnt lgkmcnt({nd})")
                    A(va[vi][1]); cum += va[vi][0]; vi += 1
        pendfin = []
        for n in range(-2, N+2):
            mfA = partA(n+1) if 0 <= n+1 < N else []
            mfB = partB(n-1) if 0 <= n-1 < N else []
            mf = []
            ia = ib = 0
            while ia < len(mfA) or ib < len(mfB):
                if ia < len(mfA): mf.append(mfA[ia]); ia += 1
                if ib < len(mfB): mf.append(mfB[ib]); ib += 1
                if ib < len(mfB) and ia >= len(mfA):
                    pass
            va = partV(n) if 0 <= n < N else []
            if pendfin and pendfin[0][0] <= n:
                va = va + pendfin.pop(0)[1]
            if n in xv:
                L0 = len(va); ex = xv[n]; nv = []
                posl = [(q+1)*L0//(len(ex)+1) for q in range(len(ex))]
                qi = 0
                for p in range(L0+1):
                    while qi < len(ex) and posl[qi] == p:
                        nv.append(ex[qi]); qi += 1
                    if p < L0: nv.append(va[p])
                va = nv
            lds = []
            if n in xl: lds += xl[n]
            if 0 <= n+2 < N: lds += loadK(n+2)
            if 0 <= n < N: lds += loadV(n)
            if n == 0 or (n == -1): pass
            if va and n == 0: A("s_nop 7\ns_nop 3")
            emit_iter(mf, va, lds)
            if 0 <= n-1 < N and final and jobs[n-1]["kind"] == "merged":
                pendfin.append((n+1, fin_ops(jobs[n-1]["slot"])))
            if OPT.get("itprof"):
                A("s_memtime s[4:5]\ns_waitcnt lgkmcnt(0)")
                A(f"v_cmp_eq_u32 vcc, {2*(n+2)}, v0\nv_mov_b32 v2, s4\ns_nop 0\nv_cndmask_b32 v1, v1, v2, vcc")
            for h in hooks.get(n, []): h()
            if OPT.get("itprof") and 2*(n+2)+1 < 64:
                A("s_memtime s[4:5]\ns_waitcnt lgkmcnt(0)")
                A(f"v_cmp_eq_u32 vcc, {2*(n+2)+1}, v0\nv_mov_b32 v2, s4\ns_nop 0\nv_cndmask_b32 v1, v1, v2, vcc")
        while pendfin:
            A("s_nop 7\ns_nop 3")
            for it in pendfin.pop(0)[1]: A(it[1])
    def fin_ops(i):
        O = O_(i); L = FT; v = []
        v.append((4, f"v_accvgpr_read_b32 v{L}, a{L_(i)}"))
        v.append((4, f"v_mov_b32 v{L+3}, 0x7f7fffff"))
        v.append((4, f"v_cmp_nle_f32 vcc, s98, v{L}"))
        v.append((8, f"v_rcp_f32 v{L+1}, v{L}"))
        v.append((4, f"v_cmp_nge_f32 s[20:21], s99, v{L}"))
        v.append((4, f"s_or_b64 s[100:101], s[20:21], vcc"))
        for r in range(16): v.append((4, f"v_mul_f32 v{O+r}, v{O+r}, v{L+1}"))
        v.append((4, f"v_max3_f32 v{L+2}, abs(v{O}), abs(v{O+1}), abs(v{O+2})"))
        for r in range(3, 15, 2): v.append((4, f"v_max3_f32 v{L+2}, v{L+2}, abs(v{O+r}), abs(v{O+r+1})"))
        v.append((4, f"v_max_f32 v{L+2}, v{L+2}, abs(v{O+15})"))
        for p in range(2):
            for q, a in enumerate((p, p+2)):
                v.append((4, f"v_cvt_pk_bf16_f32 v{L+4+4*p+2*q}, v{O+4*a}, v{O+4*a+1}"))
                v.append((4, f"v_cvt_pk_bf16_f32 v{L+4+4*p+2*q+1}, v{O+4*a+2}, v{O+4*a+3}"))
        v.append((4, f"v_cmp_nle_f32 vcc, v{L+2}, v{L+3}"))
        v.append((4, f"s_add_u32 s21, s97, {i*131072}"))
        v.append((4, f"s_or_b64 s[100:101], s[100:101], vcc"))
        v.append((4, f"buffer_store_dwordx4 {vr(L+4,4)}, v{V_OS}, s[{S_O}:{S_O+3}], s21 offen sc1"))
        v.append((4, f"buffer_store_dwordx4 {vr(L+8,4)}, v{V_OS}, s[{S_O}:{S_O+3}], s21 offen offset:512 sc1"))
        v.append((8, f"s_cmp_lg_u64 s[100:101], 0\ns_cselect_b32 s{S_FB}, 1, s{S_FB}"))
        return v

    def sig(tag, bitoff, flagoff, oldreg):
        A("s_waitcnt vmcnt(0)\ns_barrier")
        A(f"s_cmp_eq_u32 s{S_MB}, 7\ns_cbranch_scc1 .LB_nosig{tag}")
        A(f"s_lshl_b32 s20, s{S_HP}, 2\ns_add_u32 s22, s{S_MB}, {bitoff}\ns_lshl_b32 s21, 1, s22\ns_add_u32 s23, s32, {flagoff}")
        signal2(A, "B" + tag, 20, 21, 10, oldreg, 23)
        A.label(f".LB_nosig{tag}")
    def pol(tag, bitoff, flagoff, seenreg):
        A(f"s_cmp_eq_u32 s{S_MB}, 0\ns_cbranch_scc1 .LB_nopoll{tag}")
        A(f"s_lshl_b32 s20, s{S_HP}, 2\ns_add_u32 s22, s{S_MB}, {bitoff - 1}\ns_add_u32 s23, s33, {flagoff}")
        poll2(A, "B" + tag, False, 20, "s_bitcmp1_b32 s16, s22", 10, seenreg, 23, allwaves=True, pre=8)
        A.label(f".LB_nopoll{tag}")
    uid = [0]
    def cond(wave_test, body):
        uid[0] += 1
        lab = f".LBc{uid[0]}"
        return (4, "\n".join([wave_test, f"s_cbranch_scc1 {lab}"] + body + [f"{lab}:"]))
    def dma(gofs, lofs, k):
        return f"buffer_load_dwordx4 v{V_HL}, s[24:27], s19 offen offset:{(k%4)*1024} sc1 lds"
    def dma_group(gbase, lbase, k0):
        return [f"s_add_u32 s19, {gbase}, {(k0//4)*4096}", f"s_add_u32 m0, {lbase}, {(k0//4)*4096}", "s_nop 0"] + [dma(0, 0, k) for k in range(k0, k0+4)]
    def hookPollH():
        A(f"s_cmp_lt_u32 s{S_WAVE}, 2\ns_cbranch_scc1 .LB_skipH")
        pol("H", 0, 0, 31)
        A.label(".LB_skipH")
        stamp(9)
        P(3)
    def hookPollL():
        pol("L", 8, 0x8000, 34)
        P(6)
    def wr(tag):
        def f():
            if tag == "H": P(4)
            else: P(7)
            A("s_waitcnt vmcnt(0)\ns_barrier")
            if tag == "L": P(8)
            if tag == "H": P(5)
            if tag == "H":
                stamp(4)
                if OPT.get("cyc"): A("s_memtime s[4:5]")
        return f
    def hookSigL():
        A(f"s_cmp_ge_u32 s{S_WAVE}, 2\ns_cbranch_scc1 .LB_sl1\ns_waitcnt vmcnt(0)\n.LB_sl1:\ns_barrier")
        A(f"s_cmp_eq_u32 s{S_MB}, 7\ns_cbranch_scc1 .LB_nosigL")
        A(f"s_lshl_b32 s20, s{S_HP}, 2\ns_add_u32 s22, s{S_MB}, 8\ns_lshl_b32 s21, 1, s22\ns_add_u32 s23, s32, 0x8000")
        signal2(A, "BL", 20, 21, 10, 3, 23, 3)
        A.label(".LB_nosigL")
    def hookSigH():
        A(f"s_cmp_lt_u32 s{S_WAVE}, 2\ns_cbranch_scc1 .LB_sh1\ns_waitcnt vmcnt(0)\n.LB_sh1:\ns_barrier")
        A(f"s_cmp_eq_u32 s{S_MB}, 7\ns_cbranch_scc1 .LB_nosigH")
        A(f"s_lshl_b32 s20, s{S_HP}, 2\ns_lshl_b32 s21, 1, s{S_MB}\ns_mov_b32 s23, s32")
        signal2(A, "BH", 20, 21, 10, 30, 23, 2)
        A.label(".LB_nosigH")
    xv = {}
    def add(n, it): xv.setdefault(n, []).append(it)
    STLN = OPT.get("stln", 6); PH = OPT.get("pollh", 4); PL = OPT.get("polll", 12); SL = OPT.get("sigl", 7); PRE = OPT.get("pre", 2)
    ul = [x for a in range(7, -1, -1) for x in (("K", a), ("V", a))]
    grp = {}
    for q, (nm, a) in enumerate(ul):
        n = q*STLN//16
        off = kq_o(a) if nm == "K" else v_o(a)
        grp.setdefault(n, []).extend([f"s_add_u32 s19, s36, {(off//2048)*2048}",
            f"buffer_store_dwordx4 {vr(UNIT[(nm,a)],4)}, v{V_GK if nm == 'K' else V_GV}, s[{S_O}:{S_O+3}], s19 offen offset:{off % 2048} sc1"])
    for n, body in grp.items():
        if OPT.get("nostl"): continue
        add(n, cond(f"s_cmp_ge_u32 s{S_WAVE}, 2", body))
    for q, (gb, lb) in enumerate((("s35", "s29"), ("s37", "s38"))):
        add(PH + 1 + q, cond(f"s_cmp_lt_u32 s{S_WAVE}, 2", dma_group(gb, lb, 8) + dma_group(gb, lb, 12)))
    for w in range(4):
        add(PL + 1 + w, cond(f"s_cmp_lg_u32 s{S_WAVE}, {w}", dma_group("s39", "s47", 0) + dma_group("s39", "s47", 4)))
    add(PH - PRE + 1, cond(f"s_cmp_lt_u32 s{S_WAVE}, 2", ["s_add_u32 s18, s33, 0", f"buffer_load_dword v8, off, s[{S_O}:{S_O+3}], s18 sc1"]))
    add(PL - PRE + 1, (4, "s_add_u32 s18, s33, 0x8000"))
    add(PL - PRE + 1, (4, f"buffer_load_dword v8, off, s[{S_O}:{S_O+3}], s18 sc1"))
    if OPT.get("p3pf", 0):
        T = Asm(); code_prefetch(T, "p3b", ".Lph3", ".Lall_text_end", 2, 4, True, n=2, sbase=16)
        add(18, (40, T.text().rstrip("\n")))
    WL = OPT.get("wrl", 23)
    SH = OPT.get("sigh", 0)
    hooks = {SH: [hookSigH], PH: [hookPollH], SL: [hookSigL], 9: [wr("H")], PL: [hookPollL], WL: [wr("L")]}
    run_pipeline(JOBS, hooks, True, {}, xv)
    P(9)
    if OPT.get("prof2"):
        A("s_waitcnt lgkmcnt(0)")
        for i in range(10): A(f"v_mov_b32 v{64+i}, s{PR[i]}")
        A(f"""s_lshl_b32 s16, s2, 8
s_lshl_b32 s17, s{S_WAVE}, 6
s_add_u32 s16, s16, s17
s_add_u32 s16, s16, {STAMP + 0x70000}
s_mov_b64 exec, 1
buffer_store_dwordx4 v[64:67], off, s[{S_O}:{S_O+3}], s16
buffer_store_dwordx4 v[68:71], off, s[{S_O}:{S_O+3}], s16 offset:16
buffer_store_dwordx2 v[72:73], off, s[{S_O}:{S_O+3}], s16 offset:32
s_mov_b64 exec, -1""")
    stamp(8)
    if OPT.get("cyc"): A("s_memtime s[6:7]")
    if OPT.get("itprof"):
        A(f"""s_lshl_b32 s16, s2, 10
s_lshl_b32 s17, s{S_WAVE}, 8
s_add_u32 s16, s16, s17
s_add_u32 s16, s16, {STAMP + 0x40000}
v_lshlrev_b32 v2, 2, v0
buffer_store_dword v1, v2, s[{S_O}:{S_O+3}], s16 offen
""")
    A(f"s_cmp_eq_u32 s{S_FB}, 0\ns_cbranch_scc1 .LB_end")
    gen_fallback(A)
    A.label(".LB_end")

def gen_fallback(A):
    S = 64; O = 128; L = 208; P = 112
    A(f"""s_waitcnt vmcnt(0)
s_mov_b32 s16, 0                     ; slot
v_and_b32 v2, 31, v0                ; q
v_lshrrev_b32 v3, 5, v0
v_lshlrev_b32 v3, 2, v3            ; 4h
.LFB_slot:
s_lshr_b32 s17, s{S_WAVE}, 1
s_lshl_b32 s18, s16, 1
s_add_u32 s17, s17, s18              ; qt
s_lshl_b32 s18, s16, 12
v_add_u32 v4, s18, v{V_QR}
ds_read_b128 a[128:131], v4
ds_read_b128 a[132:135], v4 offset:1024
s_lshl_b32 s18, s17, 5
s_add_u32 s18, s18, 256
v_add_u32 v5, s18, v2              ; qp
v_mov_b32 v6, {NEGBIG}
s_mov_b32 s19, 0                     ; pass
.LFB_pass:
s_mov_b32 s18, 0                     ; delta 0..8
.LFB_blk:
s_add_u32 s20, s17, 8
s_sub_u32 s20, s20, s18
s_cmp_lg_u32 s{S_MB}, 0
s_cbranch_scc1 .LFB_ok
s_cmp_lt_u32 s20, 8
s_cbranch_scc1 .LFB_next
.LFB_ok:
s_lshr_b32 s21, s{S_WAVE}, 1
s_sub_u32 s21, s20, s21
s_lshl_b32 s21, s21, 11
v_add_u32 v7, s21, v{V_KR}
v_add_u32 v8, s21, v{V_VR}
ds_read_b128 a[160:163], v7
ds_read_b128 a[164:167], v7 offset:1024
ds_read_b128 a[184:187], v8
ds_read_b128 a[188:191], v8 offset:1024
s_waitcnt lgkmcnt(0)
v_mfma_f32_32x32x16_bf16 {vr(S,16)}, a[160:163], a[128:131], 0
v_mfma_f32_32x32x16_bf16 {vr(S,16)}, a[164:167], a[132:135], {vr(S,16)}
s_lshl_b32 s21, s20, 5
v_add_u32 v9, s21, v3
v_sub_u32 v9, v5, v9
s_nop 7
s_nop 3
""")
    for r in range(16):
        key = 8*(r//4) + r % 4
        A(f"v_subrev_u32 v10, {key}, v9")
        A(f"v_cmp_gt_u32 vcc, 0x100, v10")
        A(f"v_mov_b32 v11, {NEGBIG}")
        A("s_nop 0")
        A(f"v_cndmask_b32 v{S+r}, v11, v{S+r}, vcc")
    A("s_cmp_eq_u32 s19, 1\ns_cbranch_scc1 .LFB_p2")
    for r in range(16): A(f"v_max_f32 v6, v6, v{S+r}")
    A("s_branch .LFB_next")
    A.label(".LFB_p2")
    for r in range(16):
        A(f"v_sub_f32 v{S+r}, v{S+r}, v6")
    for r in range(16): A(f"v_exp_f32 v{S+r}, v{S+r}")
    A("s_nop 0")
    for k in range(8): A(f"v_cvt_pk_bf16_f32 v{P+k}, v{S+2*k}, v{S+2*k+1}")
    A("s_nop 1")
    A(f"v_mfma_f32_32x32x16_bf16 {vr(O,16)}, a[184:187], {vr(P,4)}, {vr(O,16)}")
    A(f"v_mfma_f32_32x32x16_bf16 {vr(L,16)}, {ar(ONES,4)}, {vr(P,4)}, {vr(L,16)}")
    A(f"v_mfma_f32_32x32x16_bf16 {vr(O,16)}, a[188:191], {vr(P+4,4)}, {vr(O,16)}")
    A(f"v_mfma_f32_32x32x16_bf16 {vr(L,16)}, {ar(ONES,4)}, {vr(P+4,4)}, {vr(L,16)}")
    A("s_nop 7\ns_nop 7")
    A.label(".LFB_next")
    A("s_add_u32 s18, s18, 1\ns_cmp_le_u32 s18, 8\ns_cbranch_scc1 .LFB_blk")
    A("s_cmp_eq_u32 s19, 1\ns_cbranch_scc1 .LFB_fin")
    A("v_mov_b32 v7, v6\ns_nop 1\nv_permlane32_swap_b32 v6, v7\ns_nop 1\nv_max_f32 v6, v6, v7")
    for r in range(16): A(f"v_mov_b32 v{O+r}, 0\nv_mov_b32 v{L+r}, 0")
    A("s_mov_b32 s19, 1\ns_branch .LFB_pass")
    A.label(".LFB_fin")
    A(f"v_rcp_f32 v{L+1}, v{L}\ns_nop 0")
    for r in range(16): A(f"v_mul_f32 v{O+r}, v{O+r}, v{L+1}")
    for p in range(2):
        for q, a in enumerate((p, p+2)):
            A(f"v_cvt_pk_bf16_f32 v{L+4+4*p+2*q}, v{O+4*a}, v{O+4*a+1}")
            A(f"v_cvt_pk_bf16_f32 v{L+4+4*p+2*q+1}, v{O+4*a+2}, v{O+4*a+3}")
    A(f"""s_lshl_b32 s21, s16, 17
s_add_u32 s21, s21, s97
buffer_store_dwordx4 {vr(L+4,4)}, v{V_OS}, s[{S_O}:{S_O+3}], s21 offen sc1
buffer_store_dwordx4 {vr(L+8,4)}, v{V_OS}, s[{S_O}:{S_O+3}], s21 offen offset:512 sc1
s_add_u32 s16, s16, 1
s_cmp_lt_u32 s16, 4
s_cbranch_scc1 .LFB_slot
""")


def early_setup_B(A):
    A(f"""; ---- B phase2 constants
v_and_b32 v13, 15, v0               ; r / c16
v_lshrrev_b32 v14, 4, v0            ; g
s_and_b32 s24, s{S_WAVE}, 1         ; wn
s_lshr_b32 s25, s{S_WAVE}, 1
s_lshl_b32 s26, s24, 15
s_lshl_b32 s27, s25, 13
s_add_u32 s26, s26, s27
s_add_u32 s26, s26, 16384
v_lshrrev_b32 v16, 1, v14
v_lshlrev_b32 v16, 9, v16
v_lshlrev_b32 v17, 4, v13
v_add_u32 v16, v16, v17
v_and_b32 v18, 1, v14
v_lshlrev_b32 v18, 10, v18
v_add_u32 v16, v16, v18
v_add_u32 v{V_KW}, s26, v16
s_lshl_b32 s28, s24, 14
s_add_u32 s28, s28, s27
v_add_u32 v19, s28, v16
s_add_u32 s28, s28, {QBASE}
v_add_u32 v{V_QW}, s28, v16
v_and_b32 v16, 1, v14
v_lshlrev_b32 v16, 9, v16
v_add_u32 v16, v16, v17
v_lshrrev_b32 v18, 1, v14
v_lshlrev_b32 v18, 8, v18
v_add_u32 v16, v16, v18
s_add_u32 s26, s26, {VBASE}
v_add_u32 v{V_VW}, s26, v16
s_sub_u32 s28, s28, {QBASE - 32768}
v_add_u32 v1, s28, v16
v_accvgpr_write_b32 a250, v19
v_accvgpr_write_b32 a251, v1
v_lshlrev_b32 v{V_HL}, 4, v0
s_lshl_b32 s26, s24, 15
s_lshl_b32 s27, s25, 11
s_add_u32 s26, s26, s27
v_add_u32 v{V_KR}, s26, v{V_HL}
v_add_u32 v{V_VR}, {VBASE}, v{V_KR}
s_lshl_b32 s26, s24, 14
s_add_u32 s26, s26, s27
s_add_u32 s26, s26, {QBASE}
v_add_u32 v{V_QR}, s26, v{V_HL}
v_bfe_u32 v16, v0, 4, 1
v_lshlrev_b32 v16, 15, v16
v_lshrrev_b32 v17, 5, v0
v_lshlrev_b32 v18, 8, v17
v_add_u32 v16, v16, v18
v_and_b32 v18, 15, v0
v_lshlrev_b32 v18, 4, v18
v_add_u32 v{V_OS}, v16, v18
; t = q - 4h
v_and_b32 v16, 31, v0
v_lshlrev_b32 v17, 2, v17
v_sub_u32 v{V_T}, v16, v17
v_mov_b32 v13, 0xffff
v_mov_b32 v14, 0xffff0000
""")
    for k in range(8):
        k0 = 8*((2*k)//4) + (2*k) % 4; k1 = 8*((2*k+1)//4) + (2*k+1) % 4
        A(f"v_cmp_le_i32 vcc, {k0}, v{V_T}")
        A(f"v_cmp_le_i32 s[28:29], {k1}, v{V_T}")
        A("s_nop 0")
        A(f"v_cndmask_b32 v1, 0, v13, vcc")
        A(f"v_cndmask_b32 v{PM+k}, 0, v14, s[28:29]")
        A(f"v_or_b32 v{PM+k}, v{PM+k}, v1")
    A(f"""s_cmp_eq_u32 s{S_MB}, 0|s_cselect_b32 s24, {NEGBIG}, 0
s_cmp_lt_u32 s{S_WAVE}, 2|s_cselect_b32 s25, s24, 0
""")
    for r in range(16):
        A(f"v_mov_b32 v{CMA+r}, s25")
        A(f"v_mov_b32 v{CMB+r}, s24")
```

```python
from asmgen import *
O_IMG = 0x2000000

def gen_k3(A, OPT, name="k3_kernel", stamps=False, fused=False):
    NSLOT = 4
    SLOT = 32768
    ACC = 64
    def acc(a, c): return ACC + (a*4 + c)*4
    FX = [0, 32]; FW = [16, 48]
    V_O, V_WA, V_WB, V_RX, V_RW = 2, 3, 4, 5, 6
    S_X = 4; S_W = 8; S_OUT = 12
    S_M0 = 40; S_CNT = 41; S_WAVE = 42; S_BR = 43; S_RT = 44; S_CT = 45
    S_XC = 24
    S_WC = 28
    S_T0 = 48
    if fused:
        S_OUT = 24; S_M0 = 40; S_CNT = 41; S_WAVE = 46; S_BR = 43; S_RT = 36; S_CT = 37; S_XC = 28; S_WC = 32
    OSC = OPT.get("osc", "sc1") if fused else ""
    def dma_list(slot):
        g = []
        for i in range(4):
            pre = [f"s_add_u32 m0, s{S_M0}, {slot*SLOT}"] if i == 0 else []
            so = "0" if i == 0 else f"s{S_XC+i-1}"
            g.append((pre, f"buffer_load_dwordx4 v{V_O}, s[{S_X}:{S_X+3}], {so} offen " + (f"offset:{i*1024} " if i else "") + f"{OSC} lds"))
        for i in range(4):
            pre = [f"s_add_u32 m0, s{S_M0}, {slot*SLOT + 16384}"] if i == 0 else []
            so = "0" if i == 0 else f"s{S_WC+i-1}"
            v = V_WA if i % 2 == 0 else V_WB
            g.append((pre, f"buffer_load_dwordx4 v{v}, s[{S_W}:{S_W+3}], {so} offen " + (f"offset:{i*1024} " if i else "") + "lds"))
        return g
    def advance():
        return [f"s_add_u32 s{S_X}, s{S_X}, 2048", f"s_addc_u32 s{S_X+1}, s{S_X+1}, 0", f"s_sub_u32 s{S_X+2}, s{S_X+2}, 2048",
                f"s_add_u32 s{S_W}, s{S_W}, {64*2048}", f"s_addc_u32 s{S_W+1}, s{S_W+1}, 0", f"s_sub_u32 s{S_W+2}, s{S_W+2}, {64*2048}"]
    def advX(): return advance()[:3]
    def advW(): return advance()[3:]
    def reads(slot, t, fs):
        r = []
        hi = slot >= 2
        so = (slot & 1)*SLOT
        def X(a): return (("X", a, fs), f"ds_read_b128 {ar(FX[fs]+4*a,4)}, v{V_RX + (10 if hi else 0)} offset:{so + a*2048 + t*1024}")
        def W(c, u): return (("W", c, u, fs), f"ds_read_b64_tr_b16 {ar(FW[fs]+4*c+2*u,2)}, v{V_RW + c + (10 if hi else 0)} offset:{so + t*8192 + u*4096}")
        r += [W(0,0), W(0,1), X(0), X(1), X(2), X(3)]
        for c in range(1, 4): r += [W(c,0), W(c,1)]
        return r
    def mfma(a, c, fs):
        d = vr(acc(a,c), 4)
        return f"v_mfma_f32_16x16x32_bf16 {d}, {ar(FW[fs]+4*c,4)}, {ar(FX[fs]+4*a,4)}, {d}"
    carry = []
    clock = [0]
    def stage(trk, s, dma, last, vm):
        slot = s % NSLOT
        for t in range(2):
            fs = t
            fill = [[] for _ in range(16)]
            if t == 0:
                for pos, item in carry: fill[pos].append(item)
                carry.clear()
                for g, x in enumerate(reads(slot, 1, 1)): fill[g].append(("lds",) + x)
            else:
                if not last:
                    for g, x in enumerate(reads((slot+1) % NSLOT, 0, 0)): fill[g+1].append(("lds",) + x)
                if dma:
                    dl = dma_list((s + NSLOT) % NSLOT)
                    GS = OPT.get("k3step", 4)
                    for g, d in enumerate(dl):
                        pos = 1 + GS*g
                        if pos > 15: carry.append((pos - 16, ("dma", d)))
                        else: fill[pos].append(("dma", d))
                    lastpos = 1 + GS*7
                    adv = advance()
                    groups = [(adv[0:2], 14), (adv[2:3], 15), (adv[3:5], lastpos + 1), (adv[5:6], lastpos + 2)]
                    for g2, pos in groups:
                        if pos > 15: carry.append((min(pos - 16, 15), ("raw", g2)))
                        else: fill[pos].append(("raw", g2))
            n = 0
            for c in range(4):
                for a in range(4):
                    clock[0] += 1
                    need = trk.need([("X", a, fs), ("W", c, 0, fs), ("W", c, 1, fs)], clock[0], OPT.get("slack3", 1000))
                    if t == 1 and n == 0 and not last:
                        A("s_waitcnt lgkmcnt(0)"); trk.all_done()
                    elif need is not None:
                        A(f"s_waitcnt lgkmcnt({need})")
                    A(mfma(a, c, fs))
                    if t == 1 and n == 0 and not last:
                        A(f"s_waitcnt vmcnt({vm})")
                        A("s_barrier")
                    m0w = False; between = 0
                    for f in fill[n]:
                        if f[0] == "dma":
                            for p in f[1][0]:
                                A(p); m0w = True
                    for f in fill[n]:
                        if f[0] == "lds":
                            A(f[2]); between += 1
                            trk.issue(f[1], clock[0])
                    for f in fill[n]:
                        if f[0] == "dma":
                            if m0w and between == 0: A("s_nop 0")
                            A(f[1][1])
                    for f in fill[n]:
                        if f[0] == "raw":
                            for p in f[1]: A(p)
                    n += 1
    if not fused:
        A(f".globl {name}\n.p2align 8\n.type {name},@function\n{name}:")
        if stamps: A(f"s_memrealtime s[{S_T0}:{S_T0+1}]")
        A(f"""s_cmp_ge_u32 s2, 256
s_cbranch_scc1 .L{name}_done
s_and_b32 s16, s2, 7
s_lshr_b32 s17, s2, 3
s_and_b32 s{S_BR}, s16, 1
s_lshr_b32 s16, s16, 1
s_lshl_b32 s16, s16, 2
s_and_b32 s18, s17, 3
s_add_u32 s{S_RT}, s16, s18
s_lshr_b32 s{S_CT}, s17, 2
s_mul_i32 s16, s{S_BR}, 24
s_add_u32 s16, s16, 16
s_load_dwordx2 s[20:21], s[0:1], s16
s_load_dwordx2 s[22:23], s[0:1], 64
s_load_dwordx2 s[{S_OUT}:{S_OUT+1}], s[0:1], 48
v_lshrrev_b32 v1, 6, v0
v_and_b32 v0, 63, v0
v_readfirstlane_b32 s{S_WAVE}, v1
s_mov_b32 s{S_OUT+2}, 0x800000
s_mov_b32 s{S_OUT+3}, 0x20000
""")
        if OPT.get("cpf", 1):
            import k1_gen
            k1_gen.code_prefetch(A, "k3", name, ".Lall_text_end", 30, 32, False, n=2, sbase=16)
    else:
        A(f"""s_mul_i32 s16, s{S_BR}, 24
s_add_u32 s16, s16, 16
s_load_dwordx2 s[20:21], s[0:1], s16
s_load_dwordx2 s[{S_OUT}:{S_OUT+1}], s[0:1], 48
s_mov_b32 s22, s12
s_mov_b32 s23, s13
s_lshl_b32 s{S_RT}, s44, 1
s_lshr_b32 s16, s45, 3
s_add_u32 s{S_RT}, s{S_RT}, s16
s_and_b32 s{S_CT}, s45, 7
s_mov_b32 s{S_OUT+2}, 0x800000
s_mov_b32 s{S_OUT+3}, 0x20000
v_accvgpr_read_b32 v40, a252
v_accvgpr_read_b32 v41, a253
s_waitcnt vmcnt(0)
s_barrier
""")
        if stamps: A("s_memrealtime s[54:55]")
        A(f"""s_cmp_lg_u32 s{S_WAVE}, 0
s_cbranch_scc1 .Lo_nosig
v_readlane_b32 s16, v40, s45
v_readlane_b32 s17, v41, s45
s_lshl_b32 s18, s{S_BR}, 3
s_add_u32 s18, s18, s44
s_lshl_b32 s18, s18, 2
s_add_u32 s18, s18, 192
s_add_u32 s16, s16, 1
v_mov_b32 v42, s16
v_mov_b32 v43, 1
s_mov_b64 exec, 1
buffer_store_dword v42, off, s[12:15], s17 sc1
buffer_atomic_add v43, off, s[60:63], s18
s_mov_b64 exec, -1
.Lo_nosig:
""")
    for i in range(1, 4):
        A(f"s_mov_b32 s{S_XC+i-1}, {(i>>1)*32768 + (i&1)*1024 - i*1024}")
        A(f"s_mov_b32 s{S_WC+i-1}, {i*4*2048 - i*1024}")
    A(f"""s_lshl_b32 s{S_M0}, s{S_WAVE}, 12
v_lshlrev_b32 v20, 4, v0
s_lshl_b32 s16, s{S_WAVE}, 16
v_add_u32 v{V_O}, s16, v20
v_lshrrev_b32 v21, 4, v0            ; g = l>>4
v_and_b32 v22, 15, v0
v_lshlrev_b32 v23, 1, v21
v_xor_b32 v23, v22, v23
v_lshlrev_b32 v23, 4, v23
s_lshl_b32 s16, s{S_WAVE}, 4
v_add_u32 v24, s16, v21
v_lshlrev_b32 v24, 11, v24
v_add_u32 v{V_WA}, v24, v23
v_xor_b32 v{V_WB}, 128, v{V_WA}
s_lshr_b32 s16, s{S_WAVE}, 1
s_lshl_b32 s16, s16, 13
v_add_u32 v{V_RX}, s16, v20
v_add_u32 v{V_RX+10}, 0x10000, v{V_RX}
v_bfe_u32 v22, v0, 2, 2             ; r
v_lshlrev_b32 v23, 2, v21           ; 4g
v_add_u32 v23, v23, v22             ; k (0..15)
v_and_b32 v24, 7, v23               ; k&7
v_lshlrev_b32 v23, 8, v23           ; k*256
v_and_b32 v25, 3, v0
v_lshlrev_b32 v25, 3, v25
v_add_u32 v23, v23, v25
v_add_u32 v23, 0x4000, v23
s_and_b32 s16, s{S_WAVE}, 1
s_lshl_b32 s16, s16, 2              ; 4wn
""")
    for c in range(4):
        A(f"s_add_u32 s17, s16, {c}\nv_xor_b32 v25, s17, v24\nv_lshlrev_b32 v25, 5, v25\nv_add_u32 v{V_RW+c}, v23, v25\nv_add_u32 v{V_RW+c+10}, 0x10000, v{V_RW+c}")
    A(f"""s_waitcnt lgkmcnt(0)
s_lshl_b32 s16, s{S_BR}, 22
s_lshl_b32 s17, s{S_RT}, 18
s_add_u32 s16, s16, s17
s_add_u32 s16, s16, {O_IMG}
s_add_u32 s{S_X}, s22, s16
s_addc_u32 s{S_X+1}, s23, 0
s_mov_b32 s{S_X+2}, 0x40000
s_mov_b32 s{S_X+3}, 0x20000
s_lshl_b32 s16, s{S_CT}, 8
s_add_u32 s{S_W}, s20, s16
s_addc_u32 s{S_W+1}, s21, 0
s_sub_u32 s{S_W+2}, 0x200000, s16
s_mov_b32 s{S_W+3}, 0x20000
""")
    def issue(lst):
        for pre, ins in lst:
            for p in pre: A(p)
            if pre: A("s_nop 0")
            A(ins)
    if not fused:
        for s in range(NSLOT):
            issue(dma_list(s))
            for p in advance(): A(p)
        for r in range(ACC, ACC+64): A(f"v_mov_b32 v{r}, 0")
        A(f"s_waitcnt vmcnt({8*(NSLOT-1)})\ns_barrier")
        if stamps:
            A(f"s_memrealtime s[{S_T0+2}:{S_T0+3}]\ns_memtime s[{S_T0+8}:{S_T0+9}]\ns_waitcnt lgkmcnt(0)")
    else:
        for s in range(NSLOT):
            issue(dma_list(s)[4:])
            for p in advW(): A(p)
        for r in range(ACC, ACC+64): A(f"v_mov_b32 v{r}, 0")
        A(f"""s_lshl_b32 s18, s{S_BR}, 3
s_add_u32 s18, s18, s44
s_lshl_b32 s18, s18, 2
s_add_u32 s18, s18, 192
s_mov_b32 s17, 0
.Lo_poll:
buffer_load_dword v42, v41, s[12:15], 0 offen sc1
s_waitcnt vmcnt(0)
v_cmp_ne_u32 vcc, v42, v40
s_nop 1
s_and_b32 s16, vcc_lo, 0xffff
s_cmp_eq_u32 s16, 0xffff
s_cbranch_scc1 .Lo_poll_end
s_add_u32 s17, s17, 1
s_and_b32 s16, s17, 15
s_cmp_lg_u32 s16, 0
s_cbranch_scc1 .Lo_poll
buffer_load_dword v42, off, s[60:63], s18 sc1
s_waitcnt vmcnt(0)
v_readfirstlane_b32 s16, v42
s_nop 0
s_cmp_ge_u32 s16, 16
s_cbranch_scc1 .Lo_poll_end
s_cmp_lt_u32 s17, 200000
s_cbranch_scc1 .Lo_poll
.Lo_poll_end:
""")
        for s in range(NSLOT):
            issue(dma_list(s)[:4])
            for p in advX(): A(p)
        A("s_waitcnt vmcnt(12)\ns_barrier")
        if stamps: A("s_memrealtime s[56:57]")
    trk = LgkmTracker()
    for tag, ins in reads(0, 0, 0):
        A(ins); trk.issue(tag, clock[0] + 100)
    A(f"s_mov_b32 s{S_CNT}, 0")
    if not fused:
        stage(trk, 0, True, False, 8*(NSLOT-2))
        A(".p2align 6")
        A.label(f".L{name}_loop")
        for s in range(1, NSLOT+1): stage(trk, s, True, False, 8*(NSLOT-2))
        A(f"s_add_u32 s{S_CNT}, s{S_CNT}, 1\ns_cmp_lt_u32 s{S_CNT}, 2\ns_cbranch_scc1 .L{name}_loop")
        stage(trk, 9, True, False, 16)
        stage(trk, 10, True, False, 16)
        stage(trk, 11, True, False, 16)
    else:
        stage(trk, 0, True, False, 8)
        stage(trk, 1, True, False, 12)
        A(".p2align 6")
        A.label(f".L{name}_loop")
        for s in range(2, NSLOT+2): stage(trk, s, True, False, 16)
        A(f"s_add_u32 s{S_CNT}, s{S_CNT}, 1\ns_cmp_lt_u32 s{S_CNT}, 2\ns_cbranch_scc1 .L{name}_loop")
        stage(trk, 10, True, False, 16)
        stage(trk, 11, True, False, 16)
    stage(trk, 12, False, False, 16)
    stage(trk, 13, False, False, 8)
    stage(trk, 14, False, False, 0)
    stage(trk, 15, False, True, 0)
    if stamps and not fused:
        A(f"s_memrealtime s[{S_T0+4}:{S_T0+5}]\ns_memtime s[{S_T0+10}:{S_T0+11}]")
    A("s_nop 7\ns_nop 7")
    A(f"""v_and_b32 v20, 15, v0
s_lshl_b32 s16, s{S_RT}, 7
s_lshr_b32 s17, s{S_WAVE}, 1
s_lshl_b32 s17, s17, 6
s_add_u32 s16, s16, s17
v_add_u32 v20, s16, v20
v_lshlrev_b32 v20, 12, v20
v_lshrrev_b32 v21, 4, v0
v_and_b32 v22, 1, v21
v_lshlrev_b32 v22, 5, v22            ; 16 cols*2B
v_lshrrev_b32 v21, 1, v21
v_lshlrev_b32 v21, 4, v21            ; 8 cols*2B
v_add_u32 v20, v20, v22
v_add_u32 v20, v20, v21
s_lshl_b32 s16, s{S_BR}, 11
s_lshl_b32 s17, s{S_CT}, 8
s_add_u32 s16, s16, s17
s_and_b32 s17, s{S_WAVE}, 1
s_lshl_b32 s17, s17, 7
s_add_u32 s16, s16, s17
v_add_u32 v20, s16, v20
""")
    if not OPT.get("fullline", 1):
        k = 0
        for a in range(4):
            A(f"s_mov_b32 s17, {a*16*4096}")
            for cp in range(2):
                tmp = 24 + 4*(k % 4); k += 1
                b0 = acc(a, 2*cp); b1 = acc(a, 2*cp+1)
                A(f"v_cvt_pk_bf16_f32 v{tmp}, v{b0}, v{b0+1}")
                A(f"v_cvt_pk_bf16_f32 v{tmp+1}, v{b0+2}, v{b0+3}")
                A(f"v_cvt_pk_bf16_f32 v{tmp+2}, v{b1}, v{b1+1}")
                A(f"v_cvt_pk_bf16_f32 v{tmp+3}, v{b1+2}, v{b1+3}")
                A("s_nop 1")
                A(f"v_permlane16_swap_b32 v{tmp}, v{tmp+2}")
                A(f"v_permlane16_swap_b32 v{tmp+1}, v{tmp+3}")
                A(f"buffer_store_dwordx4 v[{tmp}:{tmp+3}], v20, s[{S_OUT}:{S_OUT+3}], s17 offen offset:{cp*64} {OPT.get('ost', '')}")
    else:
        A("""v_and_b32 v21, 8, v0
v_lshlrev_b32 v22, 12, v21           ; (r&8)*4096
v_sub_u32 v20, v20, v22              ; row -> r&7
v_lshlrev_b32 v21, 3, v21            ; (r&8)*8 = 64 for r>=8
v_add_u32 v20, v20, v21              ; vX
v_add_u32 v21, 0x8000, v20
s_mov_b32 s18, 0x00ff00ff
s_mov_b32 s19, 0x00ff00ff
s_mov_b32 s20, 0xff00ff00
s_mov_b32 s21, 0xff00ff00
""")
        for a in range(4):
            U = [24 + 16*(a % 2), 28 + 16*(a % 2)]; X = 32 + 16*(a % 2); Y = 36 + 16*(a % 2)
            for cp in range(2):
                tmp = U[cp]
                b0 = acc(a, 2*cp); b1 = acc(a, 2*cp+1)
                A(f"v_cvt_pk_bf16_f32 v{tmp}, v{b0}, v{b0+1}")
                A(f"v_cvt_pk_bf16_f32 v{tmp+1}, v{b0+2}, v{b0+3}")
                A(f"v_cvt_pk_bf16_f32 v{tmp+2}, v{b1}, v{b1+1}")
                A(f"v_cvt_pk_bf16_f32 v{tmp+3}, v{b1+2}, v{b1+3}")
            A(f"s_mov_b32 s17, {a*16*4096}")
            A("s_mov_b64 vcc, s[18:19]")
            for cp in range(2):
                tmp = U[cp]
                A(f"v_permlane16_swap_b32 v{tmp}, v{tmp+2}")
                A(f"v_permlane16_swap_b32 v{tmp+1}, v{tmp+3}")
            A("s_nop 1")
            for k in range(4): A(f"v_cndmask_b32_dpp v{X+k}, v{U[1]+k}, v{U[0]+k}, vcc row_ror:8 row_mask:0xf bank_mask:0xf")
            A("s_mov_b64 vcc, s[20:21]")
            A(f"buffer_store_dwordx4 v[{X}:{X+3}], v20, s[{S_OUT}:{S_OUT+3}], s17 offen {OPT.get('ost', '')}")
            for k in range(4): A(f"v_cndmask_b32_dpp v{Y+k}, v{U[0]+k}, v{U[1]+k}, vcc row_ror:8 row_mask:0xf bank_mask:0xf")
            A(f"buffer_store_dwordx4 v[{Y}:{Y+3}], v21, s[{S_OUT}:{S_OUT+3}], s17 offen {OPT.get('ost', '')}")
    if fused: return None
    if stamps:
        A(f"""s_waitcnt vmcnt(0)
s_memrealtime s[{S_T0+6}:{S_T0+7}]
s_waitcnt lgkmcnt(0)
s_cmp_lg_u32 s{S_WAVE}, 0
s_cbranch_scc1 .L{name}_done
""")
        for q in range(12): A(f"v_mov_b32 v{20+q}, s{S_T0+q}")
        A(f"""s_mov_b32 s{S_OUT}, s22
s_mov_b32 s{S_OUT+1}, s23
s_mov_b32 s{S_OUT+2}, 0x10000000
s_lshl_b32 s16, s2, 6
s_add_u32 s16, s16, 0x8010000
v_mov_b32 v40, s16
v_cmp_eq_u32 vcc, 0, v0
s_and_saveexec_b64 s[18:19], vcc
s_cbranch_execz .L{name}_done
buffer_store_dwordx4 v[20:23], v40, s[{S_OUT}:{S_OUT+3}], 0 offen
buffer_store_dwordx4 v[24:27], v40, s[{S_OUT}:{S_OUT+3}], 0 offen offset:16
buffer_store_dwordx4 v[28:31], v40, s[{S_OUT}:{S_OUT+3}], 0 offen offset:32
""")
    A.label(f".L{name}_done")
    A("s_endpgm")
    A.label(".Lall_text_end")
    return kdesc(name, 192, 128, 64), NSLOT*SLOT

if __name__ == "__main__":
    import sys
    A = Asm()
    B = Asm()
    kd, lds = gen_k3(B, {}, stamps=True)
    A(f"; @launch kernel=k3_kernel grid=(256,1,1) block=(256,1,1) lds={lds}")
    A('.amdgcn_target "amdgcn-amd-amdhsa--gfx950"\n.text')
    A(B.text())
    A('.section .rodata,"a"')
    A(kd)
    open("k3.s", "w").write(A.text())
```

```python
from asmgen import *
O_IMG = 0x2000000
HALO  = 0x1000000
PART  = 0x1800000
STAMP = 0x8000000
FLG = 0x1C00000
V_FL = 62
LOG2E = 0x3fb8aa3b
QSCALE = 0x3e8293ee
EPS = 0x358637bd
NEGBIG = 0xf149f2ca

XSLOT = 32768
WB = 98304
WSL = [WB, WB+24576]
LDS1 = 163840
ACC = 64
def acc(a, c): return ACC + (a*6 + c)*4
FX = [0, 64]; FW = [32, 96]
V_XA, V_XB, V_WA, V_WB = 2, 3, 4, 5
V_RX = [6, 7]; V_RW = 8
V_PX = 10; V_PW = 11; V_DUM = 12
S_X = 4; S_W = 8; S_O = 12
S_XC = 64; S_WC = 80
S_M0X = 40; S_M0W = 41; S_CNT = 42; S_BR = 43; S_MB = 44; S_HP = 45; S_WAVE = 46
S_T0 = 48
S_D = 60
S_MASK = 64
S_FB = 96
S_KX = 37; S_KW = 38; S_XR = 39


def gen_k1(A, OPT, name="k1_kernel"):
    stamps = OPT.get("stamps", 0)
    ROT = 0 if OPT.get("fast", 1) else OPT.get("rot", 4); GSTEP = OPT.get("gstep", 4); GAP0 = OPT.get("gap0", 2)
    DX = OPT.get("dx", 2); DW = OPT.get("dw", 2)
    def xdma(w3):
        g = []
        n = 14 if w3 else 6
        for m in range(n):
            pre = [f"s_add_u32 m0, s{S_M0X}, {(m//4)*4096}"] if m % 4 == 0 else []
            so = "0" if m == 0 else f"s{S_XC + m - 1}"
            v = V_XA if m % 2 == 0 else V_XB
            off = (m % 4)*1024
            g.append((pre, f"buffer_load_dwordx4 v{v}, s[{S_X}:{S_X+3}], {so} offen " + (f"offset:{off} " if off else "") + "lds"))
        return g
    def wdma(slot):
        g = []
        for u in range(8):
            pre = [f"s_add_u32 m0, s{S_M0W}, {WSL[slot] + (u//4)*4096}"] if u % 4 == 0 else []
            so = "0" if u == 0 else f"s{S_WC + u - 1}"
            v = V_WA if u % 2 == 0 else V_WB
            off = (u % 4)*1024
            g.append((pre, f"buffer_load_dwordx4 v{v}, s[{S_W}:{S_W+3}], {so} offen " + (f"offset:{off} " if off else "") + "lds"))
        return g
    TPF = OPT.get("tpf", 0)
    def warm():
        w = [([], f"buffer_load_dword v{V_DUM}, v{V_PX}, s[{S_X}:{S_X+3}], 0 offen"),
             ([], f"buffer_load_dword v{V_DUM}, v{V_PW}, s[{S_W}:{S_W+3}], 0 offen")]
        if TPF: w.append(([], f"global_load_dword v{V_DUM}, v59, s[22:23]"))
        WM = OPT.get("warm", 3)
        if WM == 0: w = []
        elif WM == 1: w = w[:1]
        elif WM == 2: w = w[1:2]
        return w
    def padv():
        return ["s_add_u32 s90, s90, 1", "s_cmp_eq_u32 s90, 16", "s_cselect_b32 s16, s100, s101", "s_and_b32 s90, s90, 15", f"v_add_u32 v{V_PX}, s16, v{V_PX}",
                "s_add_u32 s91, s91, 1", "s_cmp_eq_u32 s91, 16", "s_cselect_b32 s16, s98, s99", "s_and_b32 s91, s91, 15", f"v_add_u32 v{V_PW}, s16, v{V_PW}"]
    def xadv():
        return [f"s_add_u32 s{S_KX}, s{S_KX}, 1", f"s_cmp_eq_u32 s{S_KX}, 16", f"s_cselect_b32 s16, s100, s101", f"s_and_b32 s{S_KX}, s{S_KX}, 15",
                f"v_add_u32 v{V_XA}, s16, v{V_XA}", f"v_add_u32 v{V_XB}, s16, v{V_XB}",
                f"s_add_u32 s{S_M0X}, s{S_M0X}, {XSLOT}", f"s_cmp_ge_u32 s{S_M0X}, {3*XSLOT}", f"s_cselect_b32 s16, {3*XSLOT}, 0", f"s_sub_u32 s{S_M0X}, s{S_M0X}, s16"]
    def wadv():
        return [f"s_add_u32 s{S_KW}, s{S_KW}, 1", f"s_cmp_eq_u32 s{S_KW}, 16", f"s_cselect_b32 s16, s98, s99", f"s_and_b32 s{S_KW}, s{S_KW}, 15",
                f"v_add_u32 v{V_WA}, s16, v{V_WA}", f"v_add_u32 v{V_WB}, s16, v{V_WB}"]
    FAST = OPT.get("fast", 1)
    if FAST:
        def xadv():
            return [f"v_add_u32 v{V_XA}, 0x80, v{V_XA}", f"v_add_u32 v{V_XB}, 0x80, v{V_XB}",
                    "s_mov_b32 s16, s87", "s_mov_b32 s87, s88", "s_mov_b32 s88, s89", "s_mov_b32 s89, s16", f"s_mov_b32 s{S_M0X}, s87"]
        def wadv():
            return [f"s_add_u32 s{S_W}, s{S_W}, {64*6144}|s_addc_u32 s{S_W+1}, s{S_W+1}, 0", f"s_sub_u32 s{S_W+2}, s{S_W+2}, {64*6144}"]
        def padv():
            return [f"v_add_u32 v{V_PX}, 0x80, v{V_PX}", f"v_add_u32 v{V_PW}, s99, v{V_PW}"]
    def xradv_fast():
        return [f"v_add_u32 v{V_RX[1]}, s92, v{V_RX[1]}", f"v_add_u32 v{V_RX[0]}, s92, v{V_RX[0]}",
                "s_mov_b32 s17, s92", "s_mov_b32 s92, s93", "s_mov_b32 s93, s94", "s_mov_b32 s94, s17"]
    def xradv(t):
        c = S_XR if t == 0 else 47
        return [f"s_add_u32 s{c}, s{c}, 1", f"s_cmp_eq_u32 s{c}, 3", f"s_cselect_b32 s17, s97, s96", f"s_cselect_b32 s{c}, 0, s{c}",
                f"v_add_u32 v{V_RX[t]}, s17, v{V_RX[t]}"]
    def reads(wslot, t, fs):
        r = []
        def X(a): return (("X", a, fs), f"ds_read_b128 {ar(FX[fs]+4*a,4)}, v{V_RX[t]} offset:{a*2048}")
        def W(c, u):
            j, b = c//2, c % 2
            return (("W", c, u, fs), f"ds_read_b64_tr_b16 {ar(FW[fs]+4*c+2*u,2)}, v{V_RW + b} offset:{WSL[wslot]-WB + j*8192 + t*4096 + u*512}")
        r.append(X(0))
        for c in range(6): r += [W(c,0), W(c,1)]
        for a in range(1, 8): r.append(X(a))
        return r
    def mfma(a, c, fs, swap, zero=False):
        x = ar(FX[fs]+4*a, 4); w = ar(FW[fs]+4*c, 4); d = vr(acc(a,c), 4)
        if swap[c//2]: x, w = w, x
        return f"v_mfma_f32_16x16x32_bf16 {d}, {x}, {w}, {'0' if zero else d}"
    carry = []
    clock = [0]
    def stage(trk, par, swap, do_x, do_w, do_warm, vm_bar, last, w3, extra=None, first=False, valu=None):
        for t in range(2):
            fs = t
            fill = [[] for _ in range(48)]
            if t == 0:
                for pos, item in carry: fill[pos].append(item)
                carry.clear()
                for g, x in enumerate(reads(par, 1, 1)): fill[2*g].append(("lds",) + x)
                if FAST:
                    for q, ins in enumerate(xradv_fast()): fill[40 + q].append(("raw", [ins]))
                else:
                    fill[41].append(("raw", xradv(1)))
                    if not last: fill[43].append(("raw", xradv(0)))
            else:
                if not last:
                    for g, x in enumerate(reads(par ^ 1, 0, 0)): fill[2*g+2].append(("lds",) + x)
                vm = []
                if do_w and not w3:
                    vm += [(d, None) for d in wdma(par)]; vm[-1] = (vm[-1][0], wadv())
                if do_x:
                    vm += [(d, None) for d in xdma(w3)]; vm[-1] = (vm[-1][0], xadv())
                if w3 and do_warm and warm():
                    vm += [(d, None) for d in warm()]; vm[-1] = (vm[-1][0], padv())
                def put(pos, item):
                    if pos > 47: carry.append((pos - 48, item))
                    else: fill[pos].append(item)
                for g, (d, adv) in enumerate(vm):
                    pos = GAP0 + GSTEP*g
                    put(pos, ("dma", d))
                    if adv:
                        if FAST:
                            p = pos + 1
                            for ins in adv:
                                while (p % 2 == 0 and p % 48 <= 40) or ((p - GAP0) % GSTEP == 0): p += 1
                                put(p, ("raw", ins.split("|"))); p += 1
                        else:
                            put(pos, ("raw", adv))
            if t == 1 and extra: fill[3].append(("call", extra))
            if valu is not None:
                for gp in range(1, 48):
                    k = 1 if (gp % 2 == 1 or gp >= 40) else 0
                    for _ in range(k):
                        if valu: fill[gp].append(("raw", valu.pop(0).split("|")))
            n = 0
            for a in range(8):
                for c in range(6):
                    clock[0] += 1
                    need = trk.need([("X", a, fs), ("W", c, 0, fs), ("W", c, 1, fs)], clock[0], OPT.get("slack", 7))
                    if t == 1 and n == 0 and not last:
                        A("s_waitcnt lgkmcnt(0)"); trk.all_done()
                    elif need is not None:
                        A(f"s_waitcnt lgkmcnt({need})")
                    A(mfma(a, c, fs, swap, first and t == 0))
                    if t == 1 and n == 0 and not last:
                        A(f"s_waitcnt vmcnt({vm_bar})")
                        A("s_barrier")
                    m0w = False; between = 0
                    for f in fill[n]:
                        if f[0] == "dma":
                            for p in f[1][0]:
                                A(p); m0w = True
                    for f in fill[n]:
                        if f[0] == "lds":
                            A(f[2]); between += 1
                            trk.issue(f[1], clock[0])
                    for f in fill[n]:
                        if f[0] == "dma":
                            if m0w and between == 0: A("s_nop 0")
                            A(f[1][1])
                    for f in fill[n]:
                        if f[0] == "raw":
                            for p in f[1]: A(p)
                        if f[0] == "call": f[1]()
                    n += 1
    def gen_main(tag, swap, w3):
        trk = LgkmTracker()
        for tg, ins in reads(0, 0, 0):
            A(ins); trk.issue(tg, clock[0] + 100)
        A(f"s_mov_b32 s{S_CNT}, 0")
        nx_ = 14 if w3 else 6; nwarm = len(warm()) if w3 else 0
        vm = nx_ if not w3 else (nwarm + nx_ + nwarm)
        if OPT.get("defer", 1):
            items = [(d, None) for d in xdma(w3)]; items[-1] = (items[-1][0], xadv())
            if w3 and warm():
                items += [(d, None) for d in warm()]; items[-1] = (items[-1][0], padv())
            step = 2 if w3 else 4
            used = set()
            for g, (d, adv) in enumerate(items):
                pos = 1 + step*g
                carry.append((pos, ("dma", d))); used.add(pos)
            for g, (d, adv) in enumerate(items):
                if adv:
                    p = 1 + step*g + 1
                    for ins in adv:
                        while p in used: p += 1
                        carry.append((min(p, 47), ("raw", ins.split("|")))); used.add(p); p += 1
        stage(trk, 0, swap, True, True, True, nx_ + nwarm, False, w3, extra=flag_extract, first=True)
        A(".p2align 6"); A.label(f".L{tag}_loop")
        stage(trk, 1, swap, True, True, True, vm, False, w3)
        stage(trk, 0, swap, True, True, True, vm, False, w3)
        A(f"s_add_u32 s{S_CNT}, s{S_CNT}, 1\ns_cmp_lt_u32 s{S_CNT}, 6\ns_cbranch_scc1 .L{tag}_loop")
        A.label(f".Ltail_{tag}")
        ex = None
        if w3:
            def ex():
                if OPT.get("cpf", 1): code_prefetch(A, "late" + tag, ".Lph2_A", ".Lall_text_end", 10, V_DUM, True, n=5, sbase=20)
                if OPT.get("tlbw", 0): tlb_warm()
        vl = None
        if tag.startswith("B"):
            from k1b_gen import early_setup_B
            T = Asm(); early_setup_B(T)
            vl = [l.split(';')[0].strip() for l in T.lines if l.split(';')[0].strip()]
        stage(trk, 1, swap, False, True, False, vm, False, w3, ex, valu=vl)
        stage(trk, 0, swap, False, False, False, 0, False, w3, valu=vl)
        stage(trk, 1, swap, False, False, False, 0, True, w3, valu=vl)
        if vl:
            for l in vl:
                for p in l.split("|"): A(p)
    def stamp(i):
        if not stamps: return
        if OPT.get("fused") and i >= 3 and i != 5: return
        if i < 6: A(f"s_memrealtime s[{S_T0+2*i}:{S_T0+2*i+1}]")
        else: A(f"s_memrealtime s[{4+2*(i-6)}:{5+2*(i-6)}]")

    MAP = OPT.get("map", 0)
    if MAP == 0:
        MAPCODE = f"""s_and_b32 s{S_BR}, s24, 1
s_bfe_u32 s27, s24, 0x10001          ; rh
s_lshr_b32 s28, s24, 2               ; ch
s_lshl_b32 s27, s27, 2
s_and_b32 s29, s25, 3
s_add_u32 s{S_MB}, s27, s29
s_lshl_b32 s28, s28, 3
s_lshr_b32 s29, s25, 2
s_add_u32 s{S_HP}, s28, s29"""
    else:
        brx = f"s_lshr_b32 s{S_BR}, s25, 4\ns_and_b32 s25, s25, 15" if MAP == 1 else f"s_and_b32 s{S_BR}, s25, 1\ns_lshr_b32 s25, s25, 1"
        MAPCODE = f"""{brx}
s_and_b32 s27, s24, 1
s_lshl_b32 s27, s27, 2
s_and_b32 s29, s25, 3
s_add_u32 s{S_MB}, s27, s29
s_lshr_b32 s28, s24, 1
s_lshl_b32 s28, s28, 2
s_lshr_b32 s29, s25, 2
s_add_u32 s{S_HP}, s28, s29"""
    A(f".globl {name}\n.p2align 8\n.type {name},@function\n{name}:")
    stamp(0)
    A(f"""s_load_dwordx4 s[16:19], s[0:1], 0
s_load_dwordx4 s[20:23], s[0:1], 24
s_load_dwordx4 s[{S_D}:{S_D+3}], s[0:1], 56
s_cmp_ge_u32 s2, 256
s_cbranch_scc1 .L{name}_done
v_lshrrev_b32 v1, 6, v0
v_and_b32 v0, 63, v0
s_and_b32 s24, s2, 7
v_readfirstlane_b32 s{S_WAVE}, v1
s_lshr_b32 s25, s2, 3
{MAPCODE}
v_lshrrev_b32 v20, 3, v0            ; l>>3
v_lshrrev_b32 v21, 4, v0            ; g
v_and_b32 v22, 7, v0
v_xor_b32 v23, v22, v21
v_lshlrev_b32 v23, 4, v23
v_lshl_add_u32 v24, v20, 11, v23
s_lshl_b32 s25, s{S_WAVE}, 17       ; 8w pieces * 16384
v_add_u32 v13, s25, v24
v_xor_b32 v14, 64, v13
s_lshl_b32 s26, s{S_WAVE}, 13
s_movk_i32 s{S_XC}, 15360
s_add_u32 s{S_XC+1}, s{S_XC}, s{S_XC}
s_add_u32 s{S_XC+2}, s{S_XC+1}, s{S_XC}
s_lshl_b32 s{S_XC+3}, 1, 16
s_add_u32 s{S_XC+4}, s{S_XC+3}, s{S_XC}
s_add_u32 s{S_XC+5}, s{S_XC+3}, s{S_XC+1}
s_add_u32 s{S_XC+6}, s{S_XC+3}, s{S_XC+2}
""")
    if OPT.get("cpf", 1):
        A(f"""s_getpc_b64 s[28:29]
.Lpc_early:
v_lshlrev_b32 v15, 7, v0
global_load_dword v{V_DUM}, v15, s[28:29]
s_cmp_eq_u32 s{S_BR}, 0
s_cselect_b32 s30, .Lv_A0-.Lpc_early, 0
s_cselect_b32 s31, .Lv_A3-.Lpc_early, 0
s_cselect_b32 s32, 0, .Lv_B0-.Lpc_early
s_cselect_b32 s33, 0, .Lv_B3-.Lpc_early
s_add_u32 s30, s30, s32
s_add_u32 s31, s31, s33
s_cmp_eq_u32 s{S_WAVE}, 3
s_cselect_b32 s30, s31, s30
s_add_u32 s28, s28, s30
s_addc_u32 s29, s29, 0
global_load_dword v{V_DUM}, v15, s[28:29]
v_add_u32 v15, 0x2000, v15
v_min_u32 v15, 0x2400, v15
global_load_dword v{V_DUM}, v15, s[28:29]
""")
    A(f"""s_cmp_eq_u32 s{S_BR}, 0
s_waitcnt lgkmcnt(0)
s_cselect_b32 s16, s16, s20
s_cselect_b32 s17, s17, s21
s_cselect_b32 s18, s18, s22
""")
    if OPT.get("pp"): A("s_memrealtime s[52:53]")
    A(f"""s_cselect_b32 s19, s19, s23
s_lshl_b32 s27, s{S_MB}, 19
s_add_u32 s{S_X}, s16, s27
s_addc_u32 s{S_X+1}, s17, 0
s_sub_u32 s{S_X+2}, 0x400000, s27
s_mov_b32 s{S_X+3}, 0x20000
s_mov_b32 m0, s26
""")
    for m in range(8):
        if m == 4: A("s_add_u32 m0, s26, 4096\ns_nop 0")
        so = "0" if m == 0 else f"s{S_XC + m - 1}"
        v = 13 if m % 2 == 0 else 14
        off = (m % 4)*1024
        if m == 0: A("s_nop 0")
        A(f"buffer_load_dwordx4 v{v}, s[{S_X}:{S_X+3}], {so} offen " + (f"offset:{off} " if off else "") + "lds")
    if OPT.get("pp"): A("s_memrealtime s[54:55]")
    A(f"""s_mul_i32 s24, s{S_WAVE}, 6
s_lshl_b32 s{S_M0X}, s24, 10
s_lshl_b32 s25, s24, 14
s_add_u32 s25, s25, 128
v_add_u32 v{V_XA}, s25, v24
v_xor_b32 v{V_XB}, 64, v{V_XA}
v_and_b32 v23, 1, v21
v_lshlrev_b32 v23, 1, v23
v_xor_b32 v23, v22, v23
v_lshlrev_b32 v23, 4, v23
v_mul_u32_u24 v24, 6144, v20
s_lshl_b32 s{S_M0W}, s{S_WAVE}, 13
s_lshl_b32 s25, s{S_WAVE}, 11
v_add3_u32 v{V_WA}, v24, v23, s25
v_xor_b32 v{V_WB}, 64, v{V_WA}
s_lshl_b32 s24, s{S_HP}, 7
s_add_u32 s{S_W}, s18, s24
s_addc_u32 s{S_W+1}, s19, 0
s_sub_u32 s{S_W+2}, 0x600000, s24
s_mov_b32 s{S_W+3}, 0x20000
s_mov_b32 s{S_WC}, 48128
s_add_u32 s{S_WC+1}, s{S_WC}, s{S_WC}
s_add_u32 s{S_WC+2}, s{S_WC+1}, s{S_WC}
s_lshl_b32 s{S_WC+3}, 3, 16
s_add_u32 s{S_WC+4}, s{S_WC+3}, s{S_WC}
s_add_u32 s{S_WC+5}, s{S_WC+3}, s{S_WC+1}
s_add_u32 s{S_WC+6}, s{S_WC+3}, s{S_WC+2}
s_add_u32 s88, s{S_M0X}, {2*XSLOT}
s_mov_b32 s89, s{S_M0X}
s_add_u32 s{S_M0X}, s{S_M0X}, {XSLOT}
s_mov_b32 s87, s{S_M0X}
""")
    def extras():
        for m in range(8, 14): A(f"s_mov_b32 s{S_XC+m-1}, {m*16384 - (m%4)*1024}")
        A(f"""s_mov_b32 s92, {XSLOT}
s_mov_b32 s93, {XSLOT}
s_mov_b32 s94, {-2*XSLOT}
s_mov_b32 s99, 393216
""")
        nload = 0
        A(f"""s_mov_b32 s{S_O}, s{S_D+2}
s_mov_b32 s{S_O+1}, s{S_D+3}
s_mov_b32 s{S_O+2}, 0x10000000
s_mov_b32 s{S_O+3}, 0x20000
v_and_b32 v13, 7, v0
v_and_b32 v14, 1, v0
s_sub_u32 s24, s{S_MB}, 1
s_max_i32 s24, s24, 0
v_mov_b32 v15, s24
v_mov_b32 v16, s{S_MB}
v_cmp_eq_u32 vcc, 0, v14
s_cmp_eq_u32 s{S_BR}, 0
s_cselect_b32 s25, 0x4000, 0
v_cndmask_b32 v15, v15, v16, vcc
s_cselect_b64 vcc, -1, 0
s_lshl_b32 s26, s{S_HP}, 7
s_add_u32 s25, s25, s26
s_add_u32 s25, s25, {FLG}
v_cndmask_b32 v15, v15, v13, vcc
v_lshlrev_b32 v15, 11, v15
v_bfe_u32 v14, v0, 1, 1
v_lshlrev_b32 v14, 15, v14
v_cndmask_b32 v14, v14, 0, vcc
v_add3_u32 v{V_FL+1}, s25, v15, v14
buffer_load_dword v{V_FL}, v{V_FL+1}, s[{S_O}:{S_O+3}], 0 offen sc1
""")
        nload += 1
        if OPT.get("fused"):
            A(f"""s_lshl_b32 s24, s{S_BR}, 3
s_add_u32 s24, s24, s{S_MB}
s_lshl_b32 s24, s24, 11
s_add_u32 s24, s24, {FLG + 0xC000}
v_and_b32 v61, 15, v0
v_lshlrev_b32 v61, 7, v61
v_add_u32 v61, s24, v61
buffer_load_dword v60, v61, s[{S_O}:{S_O+3}], 0 offen sc1
""")
            nload += 1
        return nload
    extras.n = 0
    def issue(lst):
        for pre, ins in lst:
            for p in pre: A(p)
            if pre: A("s_nop 0")
            A(ins)
    def gc0():
        if OPT.get("gcyc"): A("s_memtime s[20:21]\ns_waitcnt lgkmcnt(0)\nv_accvgpr_write_b32 a254, v0\nv_mov_b32 v1, s20\nv_accvgpr_write_b32 a254, v1")
    def gc1():
        if OPT.get("gcyc"):
            A(f"""s_memtime s[20:21]
s_waitcnt lgkmcnt(0)
v_accvgpr_read_b32 v1, a254
v_sub_u32 v1, s20, v1
s_lshl_b32 s20, s2, 2
s_add_u32 s20, s20, {STAMP + 0x60000}
v_cmp_eq_u32 vcc, 0, v0
s_and_saveexec_b64 s[22:23], vcc
buffer_store_dword v1, off, s[{S_O}:{S_O+3}], s20
s_mov_b64 exec, s[22:23]
v_mov_b32 v1, s[20:21]
""".replace("v_mov_b32 v1, s[20:21]\n", ""))
            A("s_memtime s[20:21]\ns_waitcnt lgkmcnt(0)\nv_mov_b32 v1, s20\nv_accvgpr_write_b32 a254, v1")
    def gc2():
        if OPT.get("gcyc"):
            A(f"""s_memtime s[20:21]
s_waitcnt lgkmcnt(0)
v_accvgpr_read_b32 v1, a254
v_sub_u32 v1, s20, v1
s_lshl_b32 s20, s2, 2
s_add_u32 s20, s20, {STAMP + 0x61000}
v_cmp_eq_u32 vcc, 0, v0
s_and_saveexec_b64 s[22:23], vcc
buffer_store_dword v1, off, s[{S_O}:{S_O+3}], s20
s_mov_b64 exec, s[22:23]
""")
    def tlb_warm():
        T = OPT.get("tlbw", 0)
        A(f"""s_mul_i32 s16, s{S_BR}, 24
s_add_u32 s16, s16, 16
s_load_dwordx2 s[20:21], s[0:1], s16
s_load_dwordx2 s[18:19], s[0:1], 48
s_lshl_b32 s16, s{S_MB}, 1
s_lshr_b32 s17, s{S_HP}, 3
s_add_u32 s16, s16, s17              ; RT
""")
        if T & 2:
            A(f"""s_lshl_b32 s17, s16, 18
s_lshl_b32 s22, s{S_BR}, 22
s_add_u32 s17, s17, s22
s_add_u32 s17, s17, {O_IMG}
v_lshlrev_b32 v10, 12, v0
buffer_load_dword v{V_DUM}, v10, s[{S_O}:{S_O+3}], s17 offen
s_lshl_b32 s17, s{S_MB}, 19
s_add_u32 s17, s17, s22
s_add_u32 s17, s17, {O_IMG}
v_lshlrev_b32 v10, 13, v0
buffer_load_dword v{V_DUM}, v10, s[{S_O}:{S_O+3}], s17 offen
""")
        if T & 4:
            A(f"""s_lshl_b32 s17, s{S_MB}, 4
s_add_u32 s17, s17, s{S_HP}
s_lshl_b32 s17, s17, 16
s_add_u32 s17, s17, {HALO}
v_and_b32 v10, 31, v0
v_lshlrev_b32 v10, 11, v10
v_lshrrev_b32 v11, 5, v0
v_lshlrev_b32 v11, 20, v11
v_sub_u32 v10, v10, v11
v_add_u32 v10, 0x100000, v10
s_sub_u32 s17, s17, 0x100000
buffer_load_dword v{V_DUM}, v10, s[{S_O}:{S_O+3}], s17 offen
""")
        A("s_waitcnt lgkmcnt(0)")
        if T & 1:
            A(f"""s_and_b32 s17, s{S_HP}, 7
s_lshl_b32 s17, s17, 8
v_lshlrev_b32 v10, 15, v0
v_add_u32 v10, s17, v10
global_load_dword v{V_DUM}, v10, s[20:21]
""")
        if T & 8:
            A(f"""s_lshl_b32 s16, s16, 19
s_lshl_b32 s17, s{S_BR}, 11
s_add_u32 s16, s16, s17
s_and_b32 s17, s{S_HP}, 7
s_lshl_b32 s17, s17, 8
s_add_u32 s16, s16, s17
v_lshlrev_b32 v10, 13, v0
v_add_u32 v10, s16, v10
global_load_dword v{V_DUM}, v10, s[18:19]
""")
    def flag_extract():
        A(f"""s_cmp_eq_u32 s{S_BR}, 0
s_cselect_b32 s24, s{S_MB}, 0
s_cselect_b32 s25, 0x4000, 0
v_readlane_b32 s30, v{V_FL}, s24
v_readlane_b32 s31, v{V_FL}, 1
v_readlane_b32 s33, v{V_FL+1}, 1
v_readlane_b32 s3, v{V_FL}, 2
v_readlane_b32 s34, v{V_FL}, 3
s_lshl_b32 s24, s{S_MB}, 4
s_add_u32 s24, s24, s{S_HP}
s_lshl_b32 s24, s24, 7
s_add_u32 s32, s24, s25
s_add_u32 s32, s32, {FLG}
""")
        if OPT.get("fused"): A("v_accvgpr_write_b32 a252, v60\nv_accvgpr_write_b32 a253, v61")
    def late_setup():
        A(f"""s_mov_b32 s{S_D+2}, 256
s_mov_b32 s{S_D+3}, 0x20000
s_mov_b32 s97, {-2*XSLOT}
s_mov_b32 s96, {XSLOT}
s_mov_b32 s{S_XR}, 0
s_mov_b32 s47, 0
v_lshrrev_b32 v21, 4, v0
v_and_b32 v20, 15, v0
v_bfe_u32 v22, v0, 1, 3
v_xor_b32 v22, v22, v21
s_lshr_b32 s16, s{S_WAVE}, 1
s_lshl_b32 s16, s16, 7
v_add_u32 v23, s16, v20
v_lshlrev_b32 v23, 7, v23
""")
        for t in range(2):
            A(f"v_xor_b32 v24, {4*t}, v22\nv_lshlrev_b32 v24, 4, v24\nv_add_u32 v{V_RX[t]}, v23, v24")
        A(f"""v_bfe_u32 v20, v0, 2, 2
v_lshlrev_b32 v22, 3, v21
v_add_u32 v22, v22, v20
v_lshlrev_b32 v22, 7, v22
v_bfe_u32 v23, v0, 3, 1
v_and_b32 v24, 1, v21
v_lshlrev_b32 v24, 1, v24
v_or_b32 v23, v23, v24
s_and_b32 s16, s{S_WAVE}, 1
s_lshl_b32 s16, s16, 1
v_xor_b32 v23, s16, v23
v_lshlrev_b32 v23, 5, v23
v_add_u32 v22, v22, v23
v_and_b32 v23, 3, v0
v_lshlrev_b32 v23, 3, v23
v_add_u32 v22, v22, v23
v_add_u32 v{V_RW}, {WB}, v22
v_xor_b32 v{V_RW+1}, 32, v{V_RW}
""")
    A(f"s_cmp_eq_u32 s{S_WAVE}, 3\ns_cbranch_scc1 .Lp3")
    issue(wdma(0)); [A(q) for p in wadv() for q in p.split('|')]
    ne = extras()
    issue(wdma(1)); [A(q) for p in wadv() for q in p.split('|')]
    issue(xdma(False)); [A(q) for p in xadv() for q in p.split('|')]
    DEFER = OPT.get("defer", 1)
    if not DEFER:
        issue(xdma(False)); [A(q) for p in xadv() for q in p.split('|')]
    if OPT.get("pp"): A("s_memrealtime s[56:57]")
    late_setup()
    if OPT.get("pp"): A("s_memrealtime s[58:59]")
    A(f"s_waitcnt vmcnt({ne + 8+6+(0 if DEFER else 6)})")
    A("s_barrier")
    stamp(1)
    if OPT.get("pp"): A(f"s_branch .L{name}_fin2")
    gc0()
    A(f"s_cmp_eq_u32 s{S_BR}, 0\ns_cbranch_scc1 .Lmain_A0")
    A.label(".Lv_B0"); gen_main("B0", [1, 1, 0], False); A("s_branch .Lph2_B")
    A.label(".Lmain_A0"); A.label(".Lv_A0"); gen_main("A0", [1, 0, 0], False); A("s_branch .Lph2_A")
    A.label(".Lp3")
    kinit = 0
    if OPT.get("winit", 1):
        A(f"""s_and_b32 s17, s{S_MB}, 3
s_lshl_b32 s17, s17, 4
v_and_b32 v20, 15, v0
v_add_u32 v20, s17, v20
v_mul_u32_u24 v20, 6144, v20
v_min_u32 v22, 2, v21
v_lshlrev_b32 v22, 11, v22
v_add_u32 v20, v20, v22
""")
        for S in range(2, 2 + DW):
            A(f"s_mov_b32 s17, {S*393216}\nbuffer_load_dword v{V_DUM}, v20, s[{S_W}:{S_W+3}], s17 offen")
            kinit += 1
    ne3 = extras() + kinit
    issue(xdma(True)); [A(q) for p in xadv() for q in p.split('|')]
    if not DEFER:
        issue(xdma(True)); [A(q) for p in xadv() for q in p.split('|')]
    A(f"""; warm voffsets
s_and_b32 s16, s{S_HP}, {7 if MAP == 0 else 3}
s_lshl_b32 s16, s16, {5 if MAP == 0 else 6}
v_and_b32 v20, {31 if MAP == 0 else 63}, v0
v_add_u32 v20, s16, v20
v_lshlrev_b32 v20, 11, v20
s_add_u32 s90, s{S_KW}, {3 + DX}
s_mul_i32 s16, s2, 1
s_and_b32 s16, s2, 7
s_lshr_b32 s16, s16, 1
s_mul_i32 s16, s16, {ROT}
s_add_u32 s90, s16, {3 + DX}
s_and_b32 s90, s90, 15
s_lshl_b32 s17, s90, 7
v_add_u32 v{V_PX}, s17, v20
s_and_b32 s17, s{S_MB}, 3
s_lshl_b32 s17, s17, 4
v_and_b32 v20, 15, v0
v_add_u32 v20, s17, v20
v_mul_u32_u24 v20, 6144, v20
v_lshrrev_b32 v21, 4, v0
v_min_u32 v22, 2, v21
v_lshlrev_b32 v22, 11, v22
v_add_u32 v20, v20, v22
s_add_u32 s91, s16, {2 + DW}
s_and_b32 s91, s91, 15
s_mul_i32 s17, s91, 393216
v_add_u32 v{V_PW}, s17, v20
""")
    if TPF:
        A(f"""s_getpc_b64 s[22:23]
.Lpc_tpf:
s_cmp_eq_u32 s{S_BR}, 0
s_cselect_b32 s16, .Ltail_A0-.Lpc_tpf, 0
s_cselect_b32 s17, .Ltail_A3-.Lpc_tpf, 0
s_cselect_b32 s18, 0, .Ltail_B0-.Lpc_tpf
s_cselect_b32 s19, 0, .Ltail_B3-.Lpc_tpf
s_add_u32 s16, s16, s18
s_add_u32 s17, s17, s19
s_sub_u32 s22, s22, 0x20000
s_subb_u32 s23, s23, 0
s_add_u32 s16, s16, 0x20000
s_add_u32 s17, s17, 0x20000
v_and_b32 v59, 31, v0
v_lshlrev_b32 v59, 7, v59
v_mov_b32 v58, s16
v_mov_b32 v57, s17
v_cmp_gt_u32 vcc, 32, v0
s_nop 1
v_cndmask_b32 v58, v57, v58, vcc
v_add_u32 v59, v58, v59
""")
    if not DEFER:
        issue(warm()); [A(q) for p in padv() for q in p.split('|')]
    late_setup()
    A(f"s_waitcnt vmcnt({ne3 + (14 if DEFER else 28 + 2)})")
    A("s_barrier")
    stamp(1)
    if OPT.get("pp"): A(f"s_branch .L{name}_fin2")
    gc0()
    A(f"s_cmp_eq_u32 s{S_BR}, 0\ns_cbranch_scc1 .Lmain_A3")
    A.label(".Lv_B3"); gen_main("B3", [1, 1, 0], True); A("s_branch .Lph2_B")
    A.label(".Lmain_A3"); A.label(".Lv_A3"); gen_main("A3", [1, 0, 0], True)
    A.label(".Lph2_A")
    stamp(2)
    gc1()
    A("s_waitcnt vmcnt(0)\ns_barrier\ns_nop 7")
    phase2_A(A, OPT, stamp)
    A(f"s_branch .Lph3")
    A.label(".Lph2_B")
    stamp(2)
    gc1()
    A("s_waitcnt vmcnt(0)\ns_barrier\ns_nop 7")
    b_tail = phase2_B(A, OPT, stamp) or (lambda A2: None)
    A.label(".Lph3")
    gc2()
    if OPT.get("fused"):
        import k3_gen
        k3_gen.gen_k3(A, OPT, name="p3", stamps=bool(stamps), fused=True)
    A.label(f".L{name}_fin")
    if stamps:
        A("s_waitcnt vmcnt(0)")
        stamp(5)
        A.label(f".L{name}_fin2")
        A("s_waitcnt vmcnt(0)")
        A(f"""s_waitcnt lgkmcnt(0)
s_cmp_lg_u32 s{S_WAVE}, 0
s_cbranch_scc1 .L{name}_done
""")
        for q in range(12): A(f"v_mov_b32 v{20+q}, s{S_T0+q}")
        for q in range(4): A(f"v_mov_b32 v{32+q}, s{4+2*q}")
        A(f"""s_lshl_b32 s16, s2, 5
s_add_u32 s16, s16, {STAMP + 0x8000}
v_mov_b32 v41, s16
s_lshl_b32 s16, s2, 6
s_add_u32 s16, s16, {STAMP}
v_mov_b32 v40, s16
v_cmp_eq_u32 vcc, 0, v0
s_and_saveexec_b64 s[18:19], vcc
s_cbranch_execz .L{name}_done
buffer_store_dwordx4 v[20:23], v40, s[{S_O}:{S_O+3}], 0 offen
buffer_store_dwordx4 v[24:27], v40, s[{S_O}:{S_O+3}], 0 offen offset:16
buffer_store_dwordx4 v[28:31], v40, s[{S_O}:{S_O+3}], 0 offen offset:32
buffer_store_dwordx4 v[32:35], v41, s[{S_O}:{S_O+3}], 0 offen
buffer_store_dwordx2 v[36:37], v41, s[{S_O}:{S_O+3}], 0 offen offset:16
""")
    A.label(f".L{name}_done")
    A("s_endpgm")
    b_tail(A)
    A.label(".Lk1_text_end")
    if OPT.get("fused"): A.label(".Lall_text_end")
    return kdesc(name, 512, 256, 102), LDS1

def code_prefetch(A, tag, start, end, voff, vdst, forward, n=1, sbase=20):
    A(f"s_getpc_b64 s[{sbase}:{sbase+1}]")
    A.label(f".Lpc_{tag}")
    if forward:
        A(f"s_add_u32 s{sbase}, s{sbase}, {start}-.Lpc_{tag}")
        A(f"s_addc_u32 s{sbase+1}, s{sbase+1}, 0")
    else:
        A(f"s_sub_u32 s{sbase}, s{sbase}, .Lpc_{tag}-{start}")
        A(f"s_subb_u32 s{sbase+1}, s{sbase+1}, 0")
    A(f"v_lshlrev_b32 v{voff}, 7, v0")
    for i in range(n):
        A(f"v_min_u32 v{voff+1}, {end}-{start}-4, v{voff}")
        A(f"global_load_dword v{vdst}, v{voff+1}, s[{sbase}:{sbase+1}]")
        if i < n-1: A(f"v_add_u32 v{voff}, 0x2000, v{voff}")

POLL_LIMIT = 200000
def signal2(A, tag, off_sreg, val_sreg, tv, oldreg=30, flagreg=32, sigwave=0):
    A(f"""s_cmp_lg_u32 s{S_WAVE}, {sigwave}
s_cbranch_scc1 .Lsig_{tag}_end
s_add_u32 s{oldreg}, s{oldreg}, 1
v_mov_b32 v{tv}, s{oldreg}
v_mov_b32 v{tv+1}, s{val_sreg}
s_mov_b64 exec, 1
buffer_store_dword v{tv}, off, s[{S_O}:{S_O+3}], s{flagreg} sc1
buffer_atomic_add v{tv+1}, off, s[{S_D}:{S_D+3}], s{off_sreg}
s_mov_b64 exec, -1
.Lsig_{tag}_end:""")

def poll2(A, tag, isA, dbg_off_sreg, dbg_test, tv, seenreg=31, flagreg=33, allwaves=False, pre=None):
    if pre is not None:
        A(f"""s_waitcnt vmcnt(0)
v_readfirstlane_b32 s16, v{pre}
s_nop 0
s_cmp_lg_u32 s16, s{seenreg}
s_cbranch_scc1 .Lpoll_{tag}_end""")
    if not allwaves:
        A(f"""s_cmp_lg_u32 s{S_WAVE}, 0
s_cbranch_scc1 .Lpoll_{tag}_end""")
    A(f"""s_mov_b32 s17, 0
.Lpoll_{tag}:""")
    if isA:
        A(f"""buffer_load_dword v{tv}, v{V_FL+1}, s[{S_O}:{S_O+3}], 0 offen sc1
s_waitcnt vmcnt(0)
v_cmp_ne_u32 vcc, v{tv}, v{V_FL}
s_nop 1
s_and_b32 s16, vcc_lo, 0xff
s_cmp_eq_u32 s16, 0xff
s_cbranch_scc1 .Lpoll_{tag}_end""")
    else:
        A(f"""buffer_load_dword v{tv}, off, s[{S_O}:{S_O+3}], s{flagreg} sc1
s_waitcnt vmcnt(0)
v_readfirstlane_b32 s16, v{tv}
s_nop 0
s_cmp_lg_u32 s16, s{seenreg}
s_cbranch_scc1 .Lpoll_{tag}_end""")
    A(f"""s_add_u32 s17, s17, 1
s_and_b32 s16, s17, 15
s_cmp_lg_u32 s16, 0
s_cbranch_scc1 .Lpoll_{tag}
buffer_load_dword v{tv}, off, s[{S_D}:{S_D+3}], s{dbg_off_sreg} sc1
s_waitcnt vmcnt(0)
v_readfirstlane_b32 s16, v{tv}
s_nop 0
{dbg_test}
s_cbranch_scc1 .Lpoll_{tag}_end
s_cmp_lt_u32 s17, {POLL_LIMIT}
s_cbranch_scc1 .Lpoll_{tag}
.Lpoll_{tag}_end:""")

def phi_ops(regs, tmp):
    ops = []
    for k in range(0, len(regs), 2):
        r = regs[k]; t = tmp[(k//2) % len(tmp)]
        ops.append(f"v_pk_mul_f32 v[{t}:{t+1}], v[{r}:{r+1}], s[18:19]")
        ops.append(f"v_max_f32 v{r}, 0, v{r}")
        ops.append(f"v_exp_f32_e64 v{t}, v{t} clamp")
        ops.append(f"v_exp_f32_e64 v{t+1}, v{t+1} clamp")
        ops.append(f"v_max_f32 v{r+1}, 0, v{r+1}")
        ops.append(f"v_pk_add_f32 v[{r}:{r+1}], v[{r}:{r+1}], v[{t}:{t+1}]")
        ops.append(f"v_pk_add_f32 v[{r}:{r+1}], v[{r}:{r+1}], s[22:23]")
    return ops

def phase2_A(A, OPT, stamp):
    KV = 16
    Z = 32
    ONES = 40
    TMP = [44, 46, 48, 50]
    if OPT.get("wopf", 1):
        A(f"""s_lshl_b32 s16, s{S_MB}, 4
s_add_u32 s16, s16, s{S_HP}
s_lshl_b32 s16, s16, 2
s_add_u32 s16, s16, s{S_WAVE}
s_lshr_b32 s17, s16, 8
s_mul_i32 s17, s17, 24
s_add_u32 s17, s17, 16
s_load_dwordx2 s[20:21], s[0:1], s17
s_and_b32 s16, s16, 255
s_lshl_b32 s16, s16, 13
v_lshlrev_b32 v13, 7, v0
v_add_u32 v13, s16, v13
s_waitcnt lgkmcnt(0)
global_load_dword v12, v13, s[20:21]
""")
    A(f"""s_mov_b32 s18, {LOG2E}
s_mov_b32 s19, {LOG2E}
s_mov_b32 s22, {EPS}
s_mov_b32 s23, {EPS}
""")
    for r in range(4): A(f"v_mov_b32 v{ONES+r}, 0x3f803f80")
    for s in range(4):
        for b in range(2):
            t0 = acc(2*s, 2+b); t1 = acc(2*s+1, 2+b)
            for op in phi_ops([t0, t0+1, t0+2, t0+3, t1, t1+1, t1+2, t1+3], TMP): A(op)
            A(f"v_cvt_pk_bf16_f32 v{t0}, v{t0}, v{t0+1}")
            A(f"v_cvt_pk_bf16_f32 v{t0+1}, v{t0+2}, v{t0+3}")
            A(f"v_cvt_pk_bf16_f32 v{t0+2}, v{t1}, v{t1+1}")
            A(f"v_cvt_pk_bf16_f32 v{t0+3}, v{t1+2}, v{t1+3}")
        for b in range(2):
            t0 = acc(2*s, 4+b); t1 = acc(2*s+1, 4+b)
            A(f"v_cvt_pk_bf16_f32 v{t0}, v{t0}, v{t0+1}")
            A(f"v_cvt_pk_bf16_f32 v{t0+1}, v{t0+2}, v{t0+3}")
            A(f"v_cvt_pk_bf16_f32 v{t0+2}, v{t1}, v{t1+1}")
            A(f"v_cvt_pk_bf16_f32 v{t0+3}, v{t1+2}, v{t1+3}")
        A("s_nop 1")
        for b in range(2):
            pk = vr(acc(2*s, 2+b), 4)
            for bp in range(2):
                d = vr(KV + (b*2+bp)*4, 4)
                A(f"v_mfma_f32_16x16x32_bf16 {d}, {pk}, {vr(acc(2*s, 4+bp), 4)}, {'0' if s == 0 else d}")
            d = vr(Z + 4*b, 4)
            A(f"v_mfma_f32_16x16x32_bf16 {d}, {pk}, {vr(ONES,4)}, {'0' if s == 0 else d}")
    A(f"""v_lshlrev_b32 v44, 4, v0
s_and_b32 s16, s{S_WAVE}, 1
s_mul_i32 s16, s16, 6144
v_add_u32 v44, s16, v44
s_nop 7
s_cmp_lt_u32 s{S_WAVE}, 2
s_cbranch_scc1 .LA_skipw
""")
    for i in range(6): A(f"ds_write_b128 v44, {vr(KV+4*i,4)} offset:{i*1024}")
    A.label(".LA_skipw")
    A("s_waitcnt lgkmcnt(0)\ns_barrier")
    A(f"s_cmp_ge_u32 s{S_WAVE}, 2\ns_cbranch_scc1 .LA_skipr")
    for i in range(6): A(f"ds_read_b128 {ar(4*i,4)}, v44 offset:{i*1024}")
    A("s_waitcnt lgkmcnt(0)")
    for i in range(24):
        A(f"v_accvgpr_read_b32 v{46 + (i%2)}, a{i}")
        A(f"v_add_f32 v{KV+i}, v{KV+i}, v{46 + (i%2)}")
    A(f"""s_lshl_b32 s16, s{S_HP}, 1
s_and_b32 s17, s{S_WAVE}, 1
s_add_u32 s16, s16, s17              ; head
s_lshl_b32 s17, s{S_MB}, 5
s_add_u32 s16, s16, s17
s_lshl_b32 s16, s16, 13
s_add_u32 s16, s16, {PART}
v_lshlrev_b32 v45, 4, v0
""")
    for i in range(4): A(f"buffer_store_dwordx4 {vr(KV+4*i,4)}, v45, s[{S_O}:{S_O+3}], s16 offen offset:{i*1024} sc1")
    A(f"""v_lshrrev_b32 v46, 4, v0
v_lshlrev_b32 v46, 4, v46
v_and_b32 v47, 15, v0
v_cmp_eq_u32 vcc, 0, v47
s_add_u32 s16, s16, 4096
s_and_saveexec_b64 s[20:21], vcc
buffer_store_dwordx4 {vr(Z,4)}, v46, s[{S_O}:{S_O+3}], s16 offen sc1
buffer_store_dwordx4 {vr(Z+4,4)}, v46, s[{S_O}:{S_O+3}], s16 offen offset:64 sc1
s_mov_b64 exec, s[20:21]
""")
    A.label(".LA_skipr")
    for a in range(8):
        t0 = acc(a, 0); t1 = acc(a, 1)
        for op in phi_ops([t0, t0+1, t0+2, t0+3, t1, t1+1, t1+2, t1+3], TMP): A(op)
        A(f"v_cvt_pk_bf16_f32 v{t0}, v{t0}, v{t0+1}")
        A(f"v_cvt_pk_bf16_f32 v{t0+1}, v{t0+2}, v{t0+3}")
        A(f"v_cvt_pk_bf16_f32 v{t0+2}, v{t1}, v{t1+1}")
        A(f"v_cvt_pk_bf16_f32 v{t0+3}, v{t1+2}, v{t1+3}")
    stamp(3)
    if OPT.get("p3pf", 0): code_prefetch(A, "p3a", ".Lph3", ".Lall_text_end", 2, 4, True, n=2, sbase=24)
    A("s_waitcnt vmcnt(0)\ns_barrier")
    stamp(6)
    A(f"s_lshl_b32 s20, s{S_HP}, 2\ns_add_u32 s20, s20, 128\ns_mov_b32 s21, 1")
    signal2(A, "A", 20, 21, 60)
    poll2(A, "A", True, 20, "s_cmp_ge_u32 s16, 8", 60)
    A("s_barrier")
    stamp(7)
    A(f"""s_lshl_b32 s16, s{S_HP}, 1
s_and_b32 s17, s{S_WAVE}, 1
s_add_u32 s16, s16, s17              ; head
s_lshr_b32 s17, s{S_WAVE}, 1
s_lshl_b32 s17, s17, 7               ; 4wm*32
s_add_u32 s16, s16, s17
s_lshl_b32 s16, s16, 13
s_add_u32 s16, s16, {PART}
v_lshlrev_b32 v45, 4, v0
v_lshrrev_b32 v46, 4, v0
v_lshlrev_b32 v46, 4, v46
v_add_u32 v46, 4096, v46
""")
    for i in range(4):
        for q in range(4): A(f"buffer_load_dwordx4 {ar(i*24 + 4*q, 4)}, v45, s[{S_O}:{S_O+3}], s16 offen offset:{q*1024} sc1")
        for b in range(2): A(f"buffer_load_dwordx4 {ar(i*24 + 16 + 4*b, 4)}, v46, s[{S_O}:{S_O+3}], s16 offen offset:{b*64} sc1")
        if i < 3: A(f"s_add_u32 s16, s16, {32*8192}")
    A("s_waitcnt vmcnt(0)")
    stamp(8)
    for r in range(24):
        A(f"v_accvgpr_read_b32 v{KV+r}, a{r}")
        A(f"v_accvgpr_read_b32 v46, a{24+r}")
        A(f"v_accvgpr_read_b32 v47, a{48+r}")
        A(f"v_accvgpr_read_b32 v48, a{72+r}")
        A(f"v_add_f32 v{KV+r}, v{KV+r}, v46")
        A(f"v_add_f32 v47, v47, v48")
        A(f"v_add_f32 v{KV+r}, v{KV+r}, v47")
    A(f"""v_lshlrev_b32 v44, 4, v0
s_mul_i32 s16, s{S_WAVE}, 6144
v_add_u32 v45, s16, v44
s_xor_b32 s17, s{S_WAVE}, 2
s_mul_i32 s16, s17, 6144
v_add_u32 v44, s16, v44
""")
    for i in range(6): A(f"ds_write_b128 v45, {vr(KV+4*i,4)} offset:{16384 + i*1024}")
    A("s_waitcnt lgkmcnt(0)\ns_barrier")
    for i in range(6): A(f"ds_read_b128 {ar(4*i,4)}, v44 offset:{16384 + i*1024}")
    A("s_waitcnt lgkmcnt(0)")
    for i in range(24):
        A(f"v_accvgpr_read_b32 v{46 + (i%2)}, a{i}")
        A(f"v_add_f32 v{KV+i}, v{KV+i}, v{46 + (i%2)}")
    for bp in range(2):
        for b in range(2):
            s = KV + (b*2+bp)*4; d = 48 + 4*bp + 2*b
            A(f"v_cvt_pk_bf16_f32 v{d}, v{s}, v{s+1}")
            A(f"v_cvt_pk_bf16_f32 v{d+1}, v{s+2}, v{s+3}")
    for b in range(2):
        s = Z + 4*b; d = 56 + 2*b
        A(f"v_cvt_pk_bf16_f32 v{d}, v{s}, v{s+1}")
        A(f"v_cvt_pk_bf16_f32 v{d+1}, v{s+2}, v{s+3}")
    A("s_nop 1")
    for a in range(8):
        pq = vr(acc(a, 0), 4)
        A(f"v_mfma_f32_16x16x32_bf16 {vr(acc(a,2),4)}, v[48:51], {pq}, 0")
        A(f"v_mfma_f32_16x16x32_bf16 {vr(acc(a,3),4)}, v[52:55], {pq}, 0")
        A(f"v_mfma_f32_16x16x32_bf16 {vr(acc(a,4),4)}, v[56:59], {pq}, 0")
    A(f"""s_lshl_b32 s16, s{S_MB}, 4
s_lshr_b32 s17, s{S_WAVE}, 1
s_lshl_b32 s17, s17, 3
s_add_u32 s16, s16, s17
s_lshl_b32 s16, s16, 5
s_lshl_b32 s17, s{S_HP}, 1
s_add_u32 s16, s16, s17
s_and_b32 s17, s{S_WAVE}, 1
s_add_u32 s16, s16, s17
s_lshl_b32 s16, s16, 10
s_add_u32 s16, s16, {O_IMG}
v_lshlrev_b32 v45, 4, v0
""")
    for a in range(8):
        n0 = acc(a, 2); n1 = acc(a, 3); de = acc(a, 4); o = acc(a, 5)
        A(f"v_add_f32 v{de+1}, {EPS}, v{de}")
        A(f"v_rcp_f32 v{de+1}, v{de+1}")
        A("s_nop 0")
        for r in range(4): A(f"v_mul_f32 v{n0+r}, v{n0+r}, v{de+1}")
        for r in range(4): A(f"v_mul_f32 v{n1+r}, v{n1+r}, v{de+1}")
        A(f"v_cvt_pk_bf16_f32 v{o}, v{n0}, v{n0+1}")
        A(f"v_cvt_pk_bf16_f32 v{o+1}, v{n0+2}, v{n0+3}")
        A(f"v_cvt_pk_bf16_f32 v{o+2}, v{n1}, v{n1+1}")
        A(f"v_cvt_pk_bf16_f32 v{o+3}, v{n1+2}, v{n1+3}")
        A(f"buffer_store_dwordx4 {vr(o,4)}, v45, s[{S_O}:{S_O+3}], s16 offen sc1")
        if a < 7: A(f"s_add_u32 s16, s16, 32768")
    stamp(4)

def phase2_B(A, OPT, stamp):
    from k1b_gen import gen_B
    return gen_B(A, OPT, stamp)
```

```python
from asmgen import *
O_IMG = 0x2000000

def gen_k3(A, OPT, name="k3_kernel", stamps=False, fused=False):
    NSLOT = 4
    SLOT = 32768
    ACC = 64
    def acc(a, c): return ACC + (a*4 + c)*4
    FX = [0, 32]; FW = [16, 48]
    V_O, V_WA, V_WB, V_RX, V_RW = 2, 3, 4, 5, 6
    S_X = 4; S_W = 8; S_OUT = 12
    S_M0 = 40; S_CNT = 41; S_WAVE = 42; S_BR = 43; S_RT = 44; S_CT = 45
    S_XC = 24
    S_WC = 28
    S_T0 = 48
    if fused:
        S_OUT = 24; S_M0 = 40; S_CNT = 41; S_WAVE = 46; S_BR = 43; S_RT = 36; S_CT = 37; S_XC = 28; S_WC = 32
    OSC = OPT.get("osc", "sc1") if fused else ""
    def dma_list(slot):
        g = []
        for i in range(4):
            pre = [f"s_add_u32 m0, s{S_M0}, {slot*SLOT}"] if i == 0 else []
            so = "0" if i == 0 else f"s{S_XC+i-1}"
            g.append((pre, f"buffer_load_dwordx4 v{V_O}, s[{S_X}:{S_X+3}], {so} offen " + (f"offset:{i*1024} " if i else "") + f"{OSC} lds"))
        for i in range(4):
            pre = [f"s_add_u32 m0, s{S_M0}, {slot*SLOT + 16384}"] if i == 0 else []
            so = "0" if i == 0 else f"s{S_WC+i-1}"
            v = V_WA if i % 2 == 0 else V_WB
            g.append((pre, f"buffer_load_dwordx4 v{v}, s[{S_W}:{S_W+3}], {so} offen " + (f"offset:{i*1024} " if i else "") + "lds"))
        return g
    def advance():
        return [f"s_add_u32 s{S_X}, s{S_X}, 2048", f"s_addc_u32 s{S_X+1}, s{S_X+1}, 0", f"s_sub_u32 s{S_X+2}, s{S_X+2}, 2048",
                f"s_add_u32 s{S_W}, s{S_W}, {64*2048}", f"s_addc_u32 s{S_W+1}, s{S_W+1}, 0", f"s_sub_u32 s{S_W+2}, s{S_W+2}, {64*2048}"]
    def advX(): return advance()[:3]
    def advW(): return advance()[3:]
    def reads(slot, t, fs):
        r = []
        hi = slot >= 2
        so = (slot & 1)*SLOT
        def X(a): return (("X", a, fs), f"ds_read_b128 {ar(FX[fs]+4*a,4)}, v{V_RX + (10 if hi else 0)} offset:{so + a*2048 + t*1024}")
        def W(c, u): return (("W", c, u, fs), f"ds_read_b64_tr_b16 {ar(FW[fs]+4*c+2*u,2)}, v{V_RW + c + (10 if hi else 0)} offset:{so + t*8192 + u*4096}")
        r += [W(0,0), W(0,1), X(0), X(1), X(2), X(3)]
        for c in range(1, 4): r += [W(c,0), W(c,1)]
        return r
    def mfma(a, c, fs):
        d = vr(acc(a,c), 4)
        return f"v_mfma_f32_16x16x32_bf16 {d}, {ar(FW[fs]+4*c,4)}, {ar(FX[fs]+4*a,4)}, {d}"
    carry = []
    clock = [0]
    def stage(trk, s, dma, last, vm):
        slot = s % NSLOT
        for t in range(2):
            fs = t
            fill = [[] for _ in range(16)]
            if t == 0:
                for pos, item in carry: fill[pos].append(item)
                carry.clear()
                for g, x in enumerate(reads(slot, 1, 1)): fill[g].append(("lds",) + x)
            else:
                if not last:
                    for g, x in enumerate(reads((slot+1) % NSLOT, 0, 0)): fill[g+1].append(("lds",) + x)
                if dma:
                    dl = dma_list((s + NSLOT) % NSLOT)
                    P3W = OPT.get("p3warm", 0) if fused else 0
                    GS = OPT.get("k3step", 4)
                    for g, d in enumerate(dl):
                        pos = 1 + GS*g
                        if pos > 15: carry.append((pos - 16, ("dma", d)))
                        else: fill[pos].append(("dma", d))
                    lastpos = 1 + GS*7
                    if P3W:
                        carry.append((15, ("raw", [f"buffer_load_dword v45, v46, s[{S_W}:{S_W+3}], s35 offen"])))
                    adv = advance()
                    groups = [(adv[0:2], 14), (adv[2:3], 15), (adv[3:5], lastpos + 1), (adv[5:6], lastpos + 2)]
                    for g2, pos in groups:
                        if pos > 15: carry.append((min(pos - 16, 15), ("raw", g2)))
                        else: fill[pos].append(("raw", g2))
            n = 0
            for c in range(4):
                for a in range(4):
                    clock[0] += 1
                    need = trk.need([("X", a, fs), ("W", c, 0, fs), ("W", c, 1, fs)], clock[0], OPT.get("slack3", 1000))
                    if t == 1 and n == 0 and not last:
                        A("s_waitcnt lgkmcnt(0)"); trk.all_done()
                    elif need is not None:
                        A(f"s_waitcnt lgkmcnt({need})")
                    A(mfma(a, c, fs))
                    if t == 1 and n == 0 and not last:
                        A(f"s_waitcnt vmcnt({vm})")
                        A("s_barrier")
                    m0w = False; between = 0
                    for f in fill[n]:
                        if f[0] == "dma":
                            for p in f[1][0]:
                                A(p); m0w = True
                    for f in fill[n]:
                        if f[0] == "lds":
                            A(f[2]); between += 1
                            trk.issue(f[1], clock[0])
                    for f in fill[n]:
                        if f[0] == "dma":
                            if m0w and between == 0: A("s_nop 0")
                            A(f[1][1])
                    for f in fill[n]:
                        if f[0] == "raw":
                            for p in f[1]: A(p)
                    n += 1
    if not fused:
        A(f".globl {name}\n.p2align 8\n.type {name},@function\n{name}:")
        if stamps: A(f"s_memrealtime s[{S_T0}:{S_T0+1}]")
        A(f"""s_cmp_ge_u32 s2, 256
s_cbranch_scc1 .L{name}_done
s_and_b32 s16, s2, 7
s_lshr_b32 s17, s2, 3
s_and_b32 s{S_BR}, s16, 1
s_lshr_b32 s16, s16, 1
s_lshl_b32 s16, s16, 2
s_and_b32 s18, s17, 3
s_add_u32 s{S_RT}, s16, s18
s_lshr_b32 s{S_CT}, s17, 2
s_mul_i32 s16, s{S_BR}, 24
s_add_u32 s16, s16, 16
s_load_dwordx2 s[20:21], s[0:1], s16
s_load_dwordx2 s[22:23], s[0:1], 64
s_load_dwordx2 s[{S_OUT}:{S_OUT+1}], s[0:1], 48
v_lshrrev_b32 v1, 6, v0
v_and_b32 v0, 63, v0
v_readfirstlane_b32 s{S_WAVE}, v1
s_mov_b32 s{S_OUT+2}, 0x800000
s_mov_b32 s{S_OUT+3}, 0x20000
""")
        if OPT.get("cpf", 1):
            import k1_gen
            k1_gen.code_prefetch(A, "k3", name, ".Lall_text_end", 30, 32, False, n=2, sbase=16)
    else:
        A(f"""s_mul_i32 s16, s{S_BR}, 24
s_add_u32 s16, s16, 16
s_load_dwordx2 s[20:21], s[0:1], s16
s_load_dwordx2 s[{S_OUT}:{S_OUT+1}], s[0:1], 48
s_mov_b32 s22, s12
s_mov_b32 s23, s13
s_lshl_b32 s{S_RT}, s44, 1
s_lshr_b32 s16, s45, 3
s_add_u32 s{S_RT}, s{S_RT}, s16
s_and_b32 s{S_CT}, s45, 7
s_mov_b32 s{S_OUT+2}, 0x800000
s_mov_b32 s{S_OUT+3}, 0x20000
v_accvgpr_read_b32 v40, a252
v_accvgpr_read_b32 v41, a253
s_waitcnt vmcnt(0)
s_barrier
""")
        if stamps: A("s_memrealtime s[54:55]")
        A(f"""s_cmp_lg_u32 s{S_WAVE}, 0
s_cbranch_scc1 .Lo_nosig
v_readlane_b32 s16, v40, s45
v_readlane_b32 s17, v41, s45
s_lshl_b32 s18, s{S_BR}, 3
s_add_u32 s18, s18, s44
s_lshl_b32 s18, s18, 2
s_add_u32 s18, s18, 192
s_add_u32 s16, s16, 1
v_mov_b32 v42, s16
v_mov_b32 v43, 1
s_mov_b64 exec, 1
buffer_store_dword v42, off, s[12:15], s17 sc1
buffer_atomic_add v43, off, s[60:63], s18
s_mov_b64 exec, -1
.Lo_nosig:
""")
    for i in range(1, 4):
        A(f"s_mov_b32 s{S_XC+i-1}, {(i>>1)*32768 + (i&1)*1024 - i*1024}")
        A(f"s_mov_b32 s{S_WC+i-1}, {i*4*2048 - i*1024}")
    A(f"""s_lshl_b32 s{S_M0}, s{S_WAVE}, 12
v_lshlrev_b32 v20, 4, v0
s_lshl_b32 s16, s{S_WAVE}, 16
v_add_u32 v{V_O}, s16, v20
v_lshrrev_b32 v21, 4, v0            ; g = l>>4
v_and_b32 v22, 15, v0
v_lshlrev_b32 v23, 1, v21
v_xor_b32 v23, v22, v23
v_lshlrev_b32 v23, 4, v23
s_lshl_b32 s16, s{S_WAVE}, 4
v_add_u32 v24, s16, v21
v_lshlrev_b32 v24, 11, v24
v_add_u32 v{V_WA}, v24, v23
v_xor_b32 v{V_WB}, 128, v{V_WA}
s_lshr_b32 s16, s{S_WAVE}, 1
s_lshl_b32 s16, s16, 13
v_add_u32 v{V_RX}, s16, v20
v_add_u32 v{V_RX+10}, 0x10000, v{V_RX}
v_bfe_u32 v22, v0, 2, 2             ; r
v_lshlrev_b32 v23, 2, v21           ; 4g
v_add_u32 v23, v23, v22             ; k (0..15)
v_and_b32 v24, 7, v23               ; k&7
v_lshlrev_b32 v23, 8, v23           ; k*256
v_and_b32 v25, 3, v0
v_lshlrev_b32 v25, 3, v25
v_add_u32 v23, v23, v25
v_add_u32 v23, 0x4000, v23
s_and_b32 s16, s{S_WAVE}, 1
s_lshl_b32 s16, s16, 2              ; 4wn
""")
    for c in range(4):
        A(f"s_add_u32 s17, s16, {c}\nv_xor_b32 v25, s17, v24\nv_lshlrev_b32 v25, 5, v25\nv_add_u32 v{V_RW+c}, v23, v25\nv_add_u32 v{V_RW+c+10}, 0x10000, v{V_RW+c}")
    A(f"""s_waitcnt lgkmcnt(0)
s_lshl_b32 s16, s{S_BR}, 22
s_lshl_b32 s17, s{S_RT}, 18
s_add_u32 s16, s16, s17
s_add_u32 s16, s16, {O_IMG}
s_add_u32 s{S_X}, s22, s16
s_addc_u32 s{S_X+1}, s23, 0
s_mov_b32 s{S_X+2}, 0x40000
s_mov_b32 s{S_X+3}, 0x20000
s_lshl_b32 s16, s{S_CT}, 8
s_add_u32 s{S_W}, s20, s16
s_addc_u32 s{S_W+1}, s21, 0
s_sub_u32 s{S_W+2}, 0x200000, s16
s_mov_b32 s{S_W+3}, 0x20000
""")
    def issue(lst):
        for pre, ins in lst:
            for p in pre: A(p)
            if pre: A("s_nop 0")
            A(ins)
    if not fused:
        for s in range(NSLOT):
            issue(dma_list(s))
            for p in advance(): A(p)
        for r in range(ACC, ACC+64): A(f"v_mov_b32 v{r}, 0")
        A(f"s_waitcnt vmcnt({8*(NSLOT-1)})\ns_barrier")
        if stamps:
            A(f"s_memrealtime s[{S_T0+2}:{S_T0+3}]\ns_memtime s[{S_T0+8}:{S_T0+9}]\ns_waitcnt lgkmcnt(0)")
    else:
        if OPT.get("p3warm", 0):
            D3 = OPT["p3warm"]
            A(f"""s_and_b32 s16, s44, 3
s_lshl_b32 s16, s16, 5
s_lshl_b32 s17, s{S_WAVE}, 3
s_add_u32 s16, s16, s17
v_and_b32 v46, 7, v0
v_add_u32 v46, s16, v46
v_and_b32 v45, 1, v46
v_lshlrev_b32 v45, 7, v45
v_lshrrev_b32 v46, 1, v46
v_lshlrev_b32 v46, 11, v46
v_add_u32 v46, v46, v45
s_mov_b32 s35, {D3*131072}
""")
        P3D = OPT.get("p3defer", 0)
        nW = 2 if P3D else NSLOT
        for s in range(nW):
            issue(dma_list(s)[4:])
            for p in advW(): A(p)
        for r in range(ACC, ACC+64): A(f"v_mov_b32 v{r}, 0")
        A(f"""s_lshl_b32 s18, s{S_BR}, 3
s_add_u32 s18, s18, s44
s_lshl_b32 s18, s18, 2
s_add_u32 s18, s18, 192
s_mov_b32 s17, 0
.Lo_poll:
buffer_load_dword v42, v41, s[12:15], 0 offen sc1
s_waitcnt vmcnt(0)
v_cmp_ne_u32 vcc, v42, v40
s_nop 1
s_and_b32 s16, vcc_lo, 0xffff
s_cmp_eq_u32 s16, 0xffff
s_cbranch_scc1 .Lo_poll_end
s_add_u32 s17, s17, 1
s_and_b32 s16, s17, 15
s_cmp_lg_u32 s16, 0
s_cbranch_scc1 .Lo_poll
buffer_load_dword v42, off, s[60:63], s18 sc1
s_waitcnt vmcnt(0)
v_readfirstlane_b32 s16, v42
s_nop 0
s_cmp_ge_u32 s16, 16
s_cbranch_scc1 .Lo_poll_end
s_cmp_lt_u32 s17, 200000
s_cbranch_scc1 .Lo_poll
.Lo_poll_end:
""")
        if not P3D:
            for s in range(NSLOT):
                issue(dma_list(s)[:4])
                for p in advX(): A(p)
            A("s_waitcnt vmcnt(12)\ns_barrier")
        else:
            for s in range(2):
                issue(dma_list(s)[:4])
                for p in advX(): A(p)
            A("s_waitcnt vmcnt(4)\ns_barrier")
        if stamps: A("s_memrealtime s[56:57]")
    trk = LgkmTracker()
    for tag, ins in reads(0, 0, 0):
        A(ins); trk.issue(tag, clock[0] + 100)
    A(f"s_mov_b32 s{S_CNT}, 0")
    if not fused:
        stage(trk, 0, True, False, 8*(NSLOT-2))
        A(".p2align 6")
        A.label(f".L{name}_loop")
        for s in range(1, NSLOT+1): stage(trk, s, True, False, 8*(NSLOT-2))
        A(f"s_add_u32 s{S_CNT}, s{S_CNT}, 1\ns_cmp_lt_u32 s{S_CNT}, 2\ns_cbranch_scc1 .L{name}_loop")
        stage(trk, 9, True, False, 16)
        stage(trk, 10, True, False, 16)
        stage(trk, 11, True, False, 16)
    else:
        if OPT.get("p3defer", 0):
            pos = 0
            for st in (2, 3):
                dl = dma_list(st)
                for d in dl:
                    carry.append((min(pos, 15), ("dma", d))); pos += 1
                carry.append((min(pos-5, 15), ("raw", advX())))
                carry.append((min(pos-1, 15), ("raw", advW())))
            stage(trk, 0, True, False, 16)
            stage(trk, 1, True, False, 16)
        else:
            W3 = 1 if OPT.get("p3warm", 0) else 0
            stage(trk, 0, True, False, 8)
            stage(trk, 1, True, False, 12 + W3)
        A(".p2align 6")
        A.label(f".L{name}_loop")
        W3 = 1 if OPT.get("p3warm", 0) else 0
        stage(trk, 2, True, False, 16 + 2*W3) if False else None
        for s in range(2, NSLOT+2): stage(trk, s, True, False, 16 + (2*W3 if True else 0))
        A(f"s_add_u32 s{S_CNT}, s{S_CNT}, 1\ns_cmp_lt_u32 s{S_CNT}, 2\ns_cbranch_scc1 .L{name}_loop")
        stage(trk, 10, True, False, 16 + 2*W3)
        stage(trk, 11, True, False, 16 + 2*W3)
    W3b = (1 if OPT.get("p3warm", 0) and fused else 0)
    stage(trk, 12, False, False, 16 + 2*W3b)
    stage(trk, 13, False, False, 8 + W3b)
    stage(trk, 14, False, False, 0)
    stage(trk, 15, False, True, 0)
    if stamps and not fused:
        A(f"s_memrealtime s[{S_T0+4}:{S_T0+5}]\ns_memtime s[{S_T0+10}:{S_T0+11}]")
    A("s_nop 7\ns_nop 7")
    A(f"""v_and_b32 v20, 15, v0
s_lshl_b32 s16, s{S_RT}, 7
s_lshr_b32 s17, s{S_WAVE}, 1
s_lshl_b32 s17, s17, 6
s_add_u32 s16, s16, s17
v_add_u32 v20, s16, v20
v_lshlrev_b32 v20, 12, v20
v_lshrrev_b32 v21, 4, v0
v_and_b32 v22, 1, v21
v_lshlrev_b32 v22, 5, v22            ; 16 cols*2B
v_lshrrev_b32 v21, 1, v21
v_lshlrev_b32 v21, 4, v21            ; 8 cols*2B
v_add_u32 v20, v20, v22
v_add_u32 v20, v20, v21
s_lshl_b32 s16, s{S_BR}, 11
s_lshl_b32 s17, s{S_CT}, 8
s_add_u32 s16, s16, s17
s_and_b32 s17, s{S_WAVE}, 1
s_lshl_b32 s17, s17, 7
s_add_u32 s16, s16, s17
v_add_u32 v20, s16, v20
""")
    if not OPT.get("fullline", 1):
        k = 0
        for a in range(4):
            A(f"s_mov_b32 s17, {a*16*4096}")
            for cp in range(2):
                tmp = 24 + 4*(k % 4); k += 1
                b0 = acc(a, 2*cp); b1 = acc(a, 2*cp+1)
                A(f"v_cvt_pk_bf16_f32 v{tmp}, v{b0}, v{b0+1}")
                A(f"v_cvt_pk_bf16_f32 v{tmp+1}, v{b0+2}, v{b0+3}")
                A(f"v_cvt_pk_bf16_f32 v{tmp+2}, v{b1}, v{b1+1}")
                A(f"v_cvt_pk_bf16_f32 v{tmp+3}, v{b1+2}, v{b1+3}")
                A("s_nop 1")
                A(f"v_permlane16_swap_b32 v{tmp}, v{tmp+2}")
                A(f"v_permlane16_swap_b32 v{tmp+1}, v{tmp+3}")
                A(f"buffer_store_dwordx4 v[{tmp}:{tmp+3}], v20, s[{S_OUT}:{S_OUT+3}], s17 offen offset:{cp*64} {OPT.get('ost', '')}")
    else:
        A("""v_and_b32 v21, 8, v0
v_lshlrev_b32 v22, 12, v21           ; (r&8)*4096
v_sub_u32 v20, v20, v22              ; row -> r&7
v_lshlrev_b32 v21, 3, v21            ; (r&8)*8 = 64 for r>=8
v_add_u32 v20, v20, v21              ; vX
v_add_u32 v21, 0x8000, v20
s_mov_b32 s18, 0x00ff00ff
s_mov_b32 s19, 0x00ff00ff
s_mov_b32 s20, 0xff00ff00
s_mov_b32 s21, 0xff00ff00
""")
        for a in range(4):
            U = [24 + 16*(a % 2), 28 + 16*(a % 2)]; X = 32 + 16*(a % 2); Y = 36 + 16*(a % 2)
            for cp in range(2):
                tmp = U[cp]
                b0 = acc(a, 2*cp); b1 = acc(a, 2*cp+1)
                A(f"v_cvt_pk_bf16_f32 v{tmp}, v{b0}, v{b0+1}")
                A(f"v_cvt_pk_bf16_f32 v{tmp+1}, v{b0+2}, v{b0+3}")
                A(f"v_cvt_pk_bf16_f32 v{tmp+2}, v{b1}, v{b1+1}")
                A(f"v_cvt_pk_bf16_f32 v{tmp+3}, v{b1+2}, v{b1+3}")
            A(f"s_mov_b32 s17, {a*16*4096}")
            A("s_mov_b64 vcc, s[18:19]")
            for cp in range(2):
                tmp = U[cp]
                A(f"v_permlane16_swap_b32 v{tmp}, v{tmp+2}")
                A(f"v_permlane16_swap_b32 v{tmp+1}, v{tmp+3}")
            A("s_nop 1")
            for k in range(4): A(f"v_cndmask_b32_dpp v{X+k}, v{U[1]+k}, v{U[0]+k}, vcc row_ror:8 row_mask:0xf bank_mask:0xf")
            A("s_mov_b64 vcc, s[20:21]")
            A(f"buffer_store_dwordx4 v[{X}:{X+3}], v20, s[{S_OUT}:{S_OUT+3}], s17 offen {OPT.get('ost', '')}")
            for k in range(4): A(f"v_cndmask_b32_dpp v{Y+k}, v{U[0]+k}, v{U[1]+k}, vcc row_ror:8 row_mask:0xf bank_mask:0xf")
            A(f"buffer_store_dwordx4 v[{Y}:{Y+3}], v21, s[{S_OUT}:{S_OUT+3}], s17 offen {OPT.get('ost', '')}")
    if fused: return None
    if stamps:
        A(f"""s_waitcnt vmcnt(0)
s_memrealtime s[{S_T0+6}:{S_T0+7}]
s_waitcnt lgkmcnt(0)
s_cmp_lg_u32 s{S_WAVE}, 0
s_cbranch_scc1 .L{name}_done
""")
        for q in range(12): A(f"v_mov_b32 v{20+q}, s{S_T0+q}")
        A(f"""s_mov_b32 s{S_OUT}, s22
s_mov_b32 s{S_OUT+1}, s23
s_mov_b32 s{S_OUT+2}, 0x10000000
s_lshl_b32 s16, s2, 6
s_add_u32 s16, s16, 0x8010000
v_mov_b32 v40, s16
v_cmp_eq_u32 vcc, 0, v0
s_and_saveexec_b64 s[18:19], vcc
s_cbranch_execz .L{name}_done
buffer_store_dwordx4 v[20:23], v40, s[{S_OUT}:{S_OUT+3}], 0 offen
buffer_store_dwordx4 v[24:27], v40, s[{S_OUT}:{S_OUT+3}], 0 offen offset:16
buffer_store_dwordx4 v[28:31], v40, s[{S_OUT}:{S_OUT+3}], 0 offen offset:32
""")
    A.label(f".L{name}_done")
    A("s_endpgm")
    A.label(".Lall_text_end")
    return kdesc(name, 192, 128, 64), NSLOT*SLOT

if __name__ == "__main__":
    import sys
    A = Asm()
    B = Asm()
    kd, lds = gen_k3(B, {}, stamps=True)
    A(f"; @launch kernel=k3_kernel grid=(256,1,1) block=(256,1,1) lds={lds}")
    A('.amdgcn_target "amdgcn-amd-amdhsa--gfx950"\n.text')
    A(B.text())
    A('.section .rodata,"a"')
    A(kd)
    open("k3.s", "w").write(A.text())
```

```python
from asmgen import *
O_IMG = 0x2000000
HALO  = 0x1000000
PART  = 0x1800000
STAMP = 0x8000000
FLG = 0x1C00000
V_FL = 62
LOG2E = 0x3fb8aa3b
QSCALE = 0x3e8293ee
EPS = 0x358637bd
NEGBIG = 0xf149f2ca

XSLOT = 32768
WB = 98304
WSL = [WB, WB+24576]
LDS1 = 163840
ACC = 64
def acc(a, c): return ACC + (a*6 + c)*4
FX = [0, 64]; FW = [32, 96]
V_XA, V_XB, V_WA, V_WB = 2, 3, 4, 5
V_RX = [6, 7]; V_RW = 8
V_PX = 10; V_PW = 11; V_DUM = 12
S_X = 4; S_W = 8; S_O = 12
S_XC = 64; S_WC = 80
S_M0X = 40; S_M0W = 41; S_CNT = 42; S_BR = 43; S_MB = 44; S_HP = 45; S_WAVE = 46
S_T0 = 48
S_D = 60
S_MASK = 64
S_FB = 96
S_KX = 37; S_KW = 38; S_XR = 39


def gen_k1(A, OPT, name="k1_kernel"):
    stamps = OPT.get("stamps", 0)
    ROT = 0 if OPT.get("fast", 1) else OPT.get("rot", 4); GSTEP = OPT.get("gstep", 4); GAP0 = OPT.get("gap0", 2)
    DX = OPT.get("dx", 2); DW = OPT.get("dw", 2)
    def xdma(w3):
        g = []
        n = 14 if w3 else 6
        for m in range(n):
            pre = [f"s_add_u32 m0, s{S_M0X}, {(m//4)*4096}"] if m % 4 == 0 else []
            so = "0" if m == 0 else f"s{S_XC + m - 1}"
            v = V_XA if m % 2 == 0 else V_XB
            off = (m % 4)*1024
            g.append((pre, f"buffer_load_dwordx4 v{v}, s[{S_X}:{S_X+3}], {so} offen " + (f"offset:{off} " if off else "") + "lds"))
        return g
    def wdma(slot):
        g = []
        for u in range(8):
            pre = [f"s_add_u32 m0, s{S_M0W}, {WSL[slot] + (u//4)*4096}"] if u % 4 == 0 else []
            so = "0" if u == 0 else f"s{S_WC + u - 1}"
            v = V_WA if u % 2 == 0 else V_WB
            off = (u % 4)*1024
            g.append((pre, f"buffer_load_dwordx4 v{v}, s[{S_W}:{S_W+3}], {so} offen " + (f"offset:{off} " if off else "") + "lds"))
        return g
    TPF = OPT.get("tpf", 0)
    def warm():
        w = [([], f"buffer_load_dword v{V_DUM}, v{V_PX}, s[{S_X}:{S_X+3}], 0 offen"),
             ([], f"buffer_load_dword v{V_DUM}, v{V_PW}, s[{S_W}:{S_W+3}], 0 offen")]
        if TPF: w.append(([], f"global_load_dword v{V_DUM}, v59, s[22:23]"))
        WM = OPT.get("warm", 3)
        if WM == 0: w = []
        elif WM == 1: w = w[:1]
        elif WM == 2: w = w[1:2]
        return w
    def padv():
        return ["s_add_u32 s90, s90, 1", "s_cmp_eq_u32 s90, 16", "s_cselect_b32 s16, s100, s101", "s_and_b32 s90, s90, 15", f"v_add_u32 v{V_PX}, s16, v{V_PX}",
                "s_add_u32 s91, s91, 1", "s_cmp_eq_u32 s91, 16", "s_cselect_b32 s16, s98, s99", "s_and_b32 s91, s91, 15", f"v_add_u32 v{V_PW}, s16, v{V_PW}"]
    def xadv():
        return [f"s_add_u32 s{S_KX}, s{S_KX}, 1", f"s_cmp_eq_u32 s{S_KX}, 16", f"s_cselect_b32 s16, s100, s101", f"s_and_b32 s{S_KX}, s{S_KX}, 15",
                f"v_add_u32 v{V_XA}, s16, v{V_XA}", f"v_add_u32 v{V_XB}, s16, v{V_XB}",
                f"s_add_u32 s{S_M0X}, s{S_M0X}, {XSLOT}", f"s_cmp_ge_u32 s{S_M0X}, {3*XSLOT}", f"s_cselect_b32 s16, {3*XSLOT}, 0", f"s_sub_u32 s{S_M0X}, s{S_M0X}, s16"]
    def wadv():
        return [f"s_add_u32 s{S_KW}, s{S_KW}, 1", f"s_cmp_eq_u32 s{S_KW}, 16", f"s_cselect_b32 s16, s98, s99", f"s_and_b32 s{S_KW}, s{S_KW}, 15",
                f"v_add_u32 v{V_WA}, s16, v{V_WA}", f"v_add_u32 v{V_WB}, s16, v{V_WB}"]
    FAST = OPT.get("fast", 1)
    if FAST:
        def xadv():
            return [f"v_add_u32 v{V_XA}, 0x80, v{V_XA}", f"v_add_u32 v{V_XB}, 0x80, v{V_XB}",
                    "s_mov_b32 s16, s87", "s_mov_b32 s87, s88", "s_mov_b32 s88, s89", "s_mov_b32 s89, s16", f"s_mov_b32 s{S_M0X}, s87"]
        def wadv():
            return [f"s_add_u32 s{S_W}, s{S_W}, {64*6144}|s_addc_u32 s{S_W+1}, s{S_W+1}, 0", f"s_sub_u32 s{S_W+2}, s{S_W+2}, {64*6144}"]
        def padv():
            return [f"v_add_u32 v{V_PX}, 0x80, v{V_PX}", f"v_add_u32 v{V_PW}, s99, v{V_PW}"]
    def xradv_fast():
        return [f"v_add_u32 v{V_RX[1]}, s92, v{V_RX[1]}", f"v_add_u32 v{V_RX[0]}, s92, v{V_RX[0]}",
                "s_mov_b32 s17, s92", "s_mov_b32 s92, s93", "s_mov_b32 s93, s94", "s_mov_b32 s94, s17"]
    def xradv(t):
        c = S_XR if t == 0 else 47
        return [f"s_add_u32 s{c}, s{c}, 1", f"s_cmp_eq_u32 s{c}, 3", f"s_cselect_b32 s17, s97, s96", f"s_cselect_b32 s{c}, 0, s{c}",
                f"v_add_u32 v{V_RX[t]}, s17, v{V_RX[t]}"]
    def reads(wslot, t, fs):
        r = []
        def X(a): return (("X", a, fs), f"ds_read_b128 {ar(FX[fs]+4*a,4)}, v{V_RX[t]} offset:{a*2048}")
        def W(c, u):
            j, b = c//2, c % 2
            return (("W", c, u, fs), f"ds_read_b64_tr_b16 {ar(FW[fs]+4*c+2*u,2)}, v{V_RW + b} offset:{WSL[wslot]-WB + j*8192 + t*4096 + u*512}")
        r.append(X(0))
        for c in range(6): r += [W(c,0), W(c,1)]
        for a in range(1, 8): r.append(X(a))
        return r
    def mfma(a, c, fs, swap, zero=False):
        x = ar(FX[fs]+4*a, 4); w = ar(FW[fs]+4*c, 4); d = vr(acc(a,c), 4)
        if swap[c//2]: x, w = w, x
        return f"v_mfma_f32_16x16x32_bf16 {d}, {x}, {w}, {'0' if zero else d}"
    carry = []
    clock = [0]
    def stage(trk, par, swap, do_x, do_w, do_warm, vm_bar, last, w3, extra=None, first=False, valu=None, ovl=None):
        for t in range(2):
            fs = t
            fill = [[] for _ in range(48)]
            if t == 0:
                for pos, item in carry: fill[pos].append(item)
                carry.clear()
                for g, x in enumerate(reads(par, 1, 1)): fill[2*g].append(("lds",) + x)
                if FAST:
                    for q, ins in enumerate(xradv_fast()): fill[40 + q].append(("raw", [ins]))
                else:
                    fill[41].append(("raw", xradv(1)))
                    if not last: fill[43].append(("raw", xradv(0)))
            else:
                if not last:
                    for g, x in enumerate(reads(par ^ 1, 0, 0)): fill[2*g+2].append(("lds",) + x)
                vm = []
                if do_w and not w3:
                    vm += [(d, None) for d in wdma(par)]; vm[-1] = (vm[-1][0], wadv())
                if do_x:
                    vm += [(d, None) for d in xdma(w3)]; vm[-1] = (vm[-1][0], xadv())
                if w3 and do_warm and warm():
                    vm += [(d, None) for d in warm()]; vm[-1] = (vm[-1][0], padv())
                def put(pos, item):
                    if pos > 47: carry.append((pos - 48, item))
                    else: fill[pos].append(item)
                for g, (d, adv) in enumerate(vm):
                    pos = GAP0 + GSTEP*g
                    put(pos, ("dma", d))
                    if adv:
                        if FAST:
                            p = pos + 1
                            for ins in adv:
                                while (p % 2 == 0 and p % 48 <= 40) or ((p - GAP0) % GSTEP == 0): p += 1
                                put(p, ("raw", ins.split("|"))); p += 1
                        else:
                            put(pos, ("raw", adv))
            if t == 1 and extra: fill[3].append(("call", extra))
            if ovl is not None and t == 1: assert not valu, len(valu)
            if valu is not None:
                for gp in range(1, 48):
                    k = (2 if OPT.get('ovl', 0) else 1) if (gp % 2 == 1) else (1 if gp >= 40 else 0)
                    for _ in range(k):
                        if valu: fill[gp].append(("raw", valu.pop(0).split("|")))
            n = 0
            OV = (ovl is not None and t == 1)
            ovi = 0
            for a in (range(7, -1, -1) if OV else range(8)):
                for c in range(6):
                    clock[0] += 1
                    need = trk.need([("X", a, fs), ("W", c, 0, fs), ("W", c, 1, fs)], clock[0], OPT.get("slack", 7))
                    if t == 1 and n == 0 and (not last or OV):
                        A("s_waitcnt lgkmcnt(0)"); trk.all_done()
                    elif need is not None:
                        A(f"s_waitcnt lgkmcnt({need})")
                    A(mfma(a, c, fs, swap, first and t == 0))
                    if OV and n == 0: A("s_barrier")
                    if OV:
                        R = OPT.get("ovlr", 7)
                        k = 0
                        while k < 2 and ovi < len(ovl) and (ovl[ovi][0] is None or n >= 6*(7 - ovl[ovi][0]) + 5 + R):
                            if ovl[ovi][0] is None: break
                            A(ovl[ovi][1]); ovi += 1; k += 1
                        from k1b_gen import B1STATE
                        B1STATE["done"] = ovi
                    if t == 1 and n == 0 and not last:
                        A(f"s_waitcnt vmcnt({vm_bar})")
                        A("s_barrier")
                        if OPT.get("sprof") and swap == [1, 0, 0]:
                            A("v_cmp_eq_u32 vcc, s29, v0\nv_mov_b32 v56, s18\ns_add_u32 s29, s29, 1\ns_nop 0\nv_cndmask_b32 v57, v57, v56, vcc\ns_memrealtime s[18:19]")
                    m0w = False; between = 0
                    for f in fill[n]:
                        if f[0] == "dma":
                            for p in f[1][0]:
                                A(p); m0w = True
                    for f in fill[n]:
                        if f[0] == "lds":
                            A(f[2]); between += 1
                            trk.issue(f[1], clock[0])
                    for f in fill[n]:
                        if f[0] == "dma":
                            if m0w and between == 0: A("s_nop 0")
                            A(f[1][1])
                    for f in fill[n]:
                        if f[0] == "raw":
                            for p in f[1]: A(p)
                        if f[0] == "call": f[1]()
                    n += 1
    def gen_main(tag, swap, w3):
        trk = LgkmTracker()
        for tg, ins in reads(0, 0, 0):
            A(ins); trk.issue(tg, clock[0] + 100)
        A(f"s_mov_b32 s{S_CNT}, 0")
        if OPT.get("sprof") and swap == [1, 0, 0]: A("s_mov_b32 s29, 0\nv_mov_b32 v57, 0\ns_memrealtime s[18:19]")
        nx_ = 14 if w3 else 6; nwarm = len(warm()) if w3 else 0
        vm = nx_ if not w3 else (nwarm + nx_ + nwarm)
        xtra0 = 0
        if OPT.get("defer", 1):
            items = []
            if w3 and OPT.get("winit", 0) == 2:
                for S in range(2, 2 + DW):
                    items.append((([f"v_subrev_u32 v13, s{95 if False else 99}, v{V_PW}"] if False else [], f"buffer_load_dword v{V_DUM}, v{14 if S == 2 else 15}, s[{S_W}:{S_W+3}], 0 offen"), None))
                xtra0 = DW
            xi = [(d, None) for d in xdma(w3)]; xi[-1] = (xi[-1][0], xadv())
            items += xi
            if w3 and warm():
                items += [(d, None) for d in warm()]; items[-1] = (items[-1][0], padv())
            step = 2 if w3 else 4
            used = set()
            for g, (d, adv) in enumerate(items):
                pos = 1 + step*g
                carry.append((pos, ("dma", d))); used.add(pos)
            for g, (d, adv) in enumerate(items):
                if adv:
                    p = 1 + step*g + 1
                    for ins in adv:
                        while p in used: p += 1
                        carry.append((min(p, 47), ("raw", ins.split("|")))); used.add(p); p += 1
        stage(trk, 0, swap, True, True, True, nx_ + nwarm + xtra0, False, w3, extra=flag_extract, first=True)
        A(".p2align 6"); A.label(f".L{tag}_loop")
        stage(trk, 1, swap, True, True, True, vm, False, w3)
        stage(trk, 0, swap, True, True, True, vm, False, w3)
        A(f"s_add_u32 s{S_CNT}, s{S_CNT}, 1\ns_cmp_lt_u32 s{S_CNT}, 6\ns_cbranch_scc1 .L{tag}_loop")
        A.label(f".Ltail_{tag}")
        ex = None
        if w3:
            def ex():
                if OPT.get("cpf", 1): code_prefetch(A, "late" + tag, ".Lph2_A", ".Lall_text_end", 10, V_DUM, True, n=5, sbase=20)
                if OPT.get("tlbw", 0): tlb_warm()
        vl = None
        if tag.startswith("B"):
            from k1b_gen import early_setup_B
            T = Asm(); early_setup_B(T)
            vl = [l.split(';')[0].strip() for l in T.lines if l.split(';')[0].strip()]
            if OPT.get("ovl", 0):
                from k1b_gen import b1_parts
                vl += b1_parts()[0]
        stage(trk, 1, swap, False, True, False, vm, False, w3, ex, valu=vl)
        stage(trk, 0, swap, False, False, False, 0, False, w3, valu=vl)
        ov = None
        if tag.startswith("B") and OPT.get("ovl", 0):
            from k1b_gen import b1_parts
            ov = b1_parts()[1]
        stage(trk, 1, swap, False, False, False, 0, True, w3, valu=vl, ovl=ov)
        if ov is not None: assert not vl, len(vl)
        if vl:
            for l in vl:
                for p in l.split("|"): A(p)
    def stamp(i):
        if not stamps: return
        if OPT.get("fused") and i >= 3 and i != 5: return
        if i < 6: A(f"s_memrealtime s[{S_T0+2*i}:{S_T0+2*i+1}]")
        else: A(f"s_memrealtime s[{4+2*(i-6)}:{5+2*(i-6)}]")

    MAP = OPT.get("map", 0)
    if MAP == 0:
        MAPCODE = f"""s_and_b32 s{S_BR}, s24, 1
s_bfe_u32 s27, s24, 0x10001          ; rh
s_lshr_b32 s28, s24, 2               ; ch
s_lshl_b32 s27, s27, 2
s_and_b32 s29, s25, 3
s_add_u32 s{S_MB}, s27, s29
s_lshl_b32 s28, s28, 3
s_lshr_b32 s29, s25, 2
s_add_u32 s{S_HP}, s28, s29"""
    else:
        brx = f"s_lshr_b32 s{S_BR}, s25, 4\ns_and_b32 s25, s25, 15" if MAP == 1 else f"s_and_b32 s{S_BR}, s25, 1\ns_lshr_b32 s25, s25, 1"
        MAPCODE = f"""{brx}
s_and_b32 s27, s24, 1
s_lshl_b32 s27, s27, 2
s_and_b32 s29, s25, 3
s_add_u32 s{S_MB}, s27, s29
s_lshr_b32 s28, s24, 1
s_lshl_b32 s28, s28, 2
s_lshr_b32 s29, s25, 2
s_add_u32 s{S_HP}, s28, s29"""
    A(f".globl {name}\n.p2align 8\n.type {name},@function\n{name}:")
    stamp(0)
    A(f"""s_load_dwordx4 s[16:19], s[0:1], 0
s_load_dwordx4 s[20:23], s[0:1], 24
s_load_dwordx4 s[{S_D}:{S_D+3}], s[0:1], 56
s_cmp_ge_u32 s2, 256
s_cbranch_scc1 .L{name}_done
v_lshrrev_b32 v1, 6, v0
v_and_b32 v0, 63, v0
s_and_b32 s24, s2, 7
v_readfirstlane_b32 s{S_WAVE}, v1
s_lshr_b32 s25, s2, 3
{MAPCODE}
v_lshrrev_b32 v20, 3, v0            ; l>>3
v_lshrrev_b32 v21, 4, v0            ; g
v_and_b32 v22, 7, v0
v_xor_b32 v23, v22, v21
v_lshlrev_b32 v23, 4, v23
v_lshl_add_u32 v24, v20, 11, v23
s_lshl_b32 s25, s{S_WAVE}, 17       ; 8w pieces * 16384
v_add_u32 v13, s25, v24
v_xor_b32 v14, 64, v13
s_lshl_b32 s26, s{S_WAVE}, 13
s_movk_i32 s{S_XC}, 15360
s_add_u32 s{S_XC+1}, s{S_XC}, s{S_XC}
s_add_u32 s{S_XC+2}, s{S_XC+1}, s{S_XC}
s_lshl_b32 s{S_XC+3}, 1, 16
s_add_u32 s{S_XC+4}, s{S_XC+3}, s{S_XC}
s_add_u32 s{S_XC+5}, s{S_XC+3}, s{S_XC+1}
s_add_u32 s{S_XC+6}, s{S_XC+3}, s{S_XC+2}
""")
    W0F = OPT.get("w0first", 0)
    if W0F:
        A(f"""v_and_b32 v16, 1, v21
v_lshlrev_b32 v16, 1, v16
v_xor_b32 v16, v22, v16
v_lshlrev_b32 v16, 4, v16
s_lshl_b32 s34, s{S_WAVE}, 4
v_add_u32 v17, s34, v20
v_mul_u32_u24 v17, 6144, v17
v_add_u32 v16, v17, v16
v_xor_b32 v17, 64, v16
s_mov_b32 s34, 48128
s_movk_i32 s35, 2048
s_add_u32 s36, s35, s34
s_movk_i32 s37, 4096
s_add_u32 s38, s37, s34
s_lshl_b32 s39, s{S_WAVE}, 11
""")
    if OPT.get("cpf", 1):
        A(f"""s_getpc_b64 s[28:29]
.Lpc_early:
v_lshlrev_b32 v15, 7, v0
global_load_dword v{V_DUM}, v15, s[28:29]
s_cmp_eq_u32 s{S_BR}, 0
s_cselect_b32 s30, .Lv_A0-.Lpc_early, 0
s_cselect_b32 s31, .Lv_A3-.Lpc_early, 0
s_cselect_b32 s32, 0, .Lv_B0-.Lpc_early
s_cselect_b32 s33, 0, .Lv_B3-.Lpc_early
s_add_u32 s30, s30, s32
s_add_u32 s31, s31, s33
s_cmp_eq_u32 s{S_WAVE}, 3
s_cselect_b32 s30, s31, s30
s_add_u32 s28, s28, s30
s_addc_u32 s29, s29, 0
global_load_dword v{V_DUM}, v15, s[28:29]
v_add_u32 v15, 0x2000, v15
v_min_u32 v15, 0x2400, v15
global_load_dword v{V_DUM}, v15, s[28:29]
""")
    A(f"""s_cmp_eq_u32 s{S_BR}, 0
s_waitcnt lgkmcnt(0)
s_cselect_b32 s16, s16, s20
s_cselect_b32 s17, s17, s21
s_cselect_b32 s18, s18, s22
""")
    if OPT.get("pp"): A("s_memrealtime s[52:53]")
    A(f"s_cselect_b32 s19, s19, s23")
    if W0F:
        A(f"""s_lshl_b32 s24, s{S_HP}, 7
s_add_u32 s{S_W}, s18, s24
s_addc_u32 s{S_W+1}, s19, 0
s_sub_u32 s{S_W+2}, 0x600000, s24
s_mov_b32 s{S_W+3}, 0x20000
""")
        for j in range(3):
            A(f"s_add_u32 m0, s39, {WSL[0] + j*8192}\ns_nop 0")
            A(f"buffer_load_dwordx4 v16, s[{S_W}:{S_W+3}], {('0', 's35', 's37')[j]} offen lds")
            A(f"buffer_load_dwordx4 v17, s[{S_W}:{S_W+3}], {('s34', 's36', 's38')[j]} offen offset:1024 lds")
    A(f"""s_lshl_b32 s27, s{S_MB}, 19
s_add_u32 s{S_X}, s16, s27
s_addc_u32 s{S_X+1}, s17, 0
s_sub_u32 s{S_X+2}, 0x400000, s27
s_mov_b32 s{S_X+3}, 0x20000
s_mov_b32 m0, s26
""")
    for m in range(8):
        if m == 4: A("s_add_u32 m0, s26, 4096\ns_nop 0")
        so = "0" if m == 0 else f"s{S_XC + m - 1}"
        v = 13 if m % 2 == 0 else 14
        off = (m % 4)*1024
        if m == 0: A("s_nop 0")
        A(f"buffer_load_dwordx4 v{v}, s[{S_X}:{S_X+3}], {so} offen " + (f"offset:{off} " if off else "") + "lds")
    if OPT.get("pp"): A("s_memrealtime s[54:55]")
    A(f"""s_mul_i32 s24, s{S_WAVE}, 6
s_lshl_b32 s{S_M0X}, s24, 10
s_lshl_b32 s25, s24, 14
s_add_u32 s25, s25, 128
v_add_u32 v{V_XA}, s25, v24
v_xor_b32 v{V_XB}, 64, v{V_XA}
v_and_b32 v23, 1, v21
v_lshlrev_b32 v23, 1, v23
v_xor_b32 v23, v22, v23
v_lshlrev_b32 v23, 4, v23
v_mul_u32_u24 v24, 6144, v20
s_lshl_b32 s{S_M0W}, s{S_WAVE}, 13
s_lshl_b32 s25, s{S_WAVE}, 11
v_add3_u32 v{V_WA}, v24, v23, s25
v_xor_b32 v{V_WB}, 64, v{V_WA}
s_lshl_b32 s24, s{S_HP}, 7
s_add_u32 s{S_W}, s18, s24
s_addc_u32 s{S_W+1}, s19, 0
s_sub_u32 s{S_W+2}, 0x600000, s24
s_mov_b32 s{S_W+3}, 0x20000
s_mov_b32 s{S_WC}, 48128
s_add_u32 s{S_WC+1}, s{S_WC}, s{S_WC}
s_add_u32 s{S_WC+2}, s{S_WC+1}, s{S_WC}
s_lshl_b32 s{S_WC+3}, 3, 16
s_add_u32 s{S_WC+4}, s{S_WC+3}, s{S_WC}
s_add_u32 s{S_WC+5}, s{S_WC+3}, s{S_WC+1}
s_add_u32 s{S_WC+6}, s{S_WC+3}, s{S_WC+2}
s_add_u32 s88, s{S_M0X}, {2*XSLOT}
s_mov_b32 s89, s{S_M0X}
s_add_u32 s{S_M0X}, s{S_M0X}, {XSLOT}
s_mov_b32 s87, s{S_M0X}
""")
    def extras():
        for m in range(8, 14): A(f"s_mov_b32 s{S_XC+m-1}, {m*16384 - (m%4)*1024}")
        A(f"""s_mov_b32 s92, {XSLOT}
s_mov_b32 s93, {XSLOT}
s_mov_b32 s94, {-2*XSLOT}
s_mov_b32 s99, 393216
""")
        nload = 0
        A(f"""s_mov_b32 s{S_O}, s{S_D+2}
s_mov_b32 s{S_O+1}, s{S_D+3}
s_mov_b32 s{S_O+2}, 0x10000000
s_mov_b32 s{S_O+3}, 0x20000
v_and_b32 v13, 7, v0
v_and_b32 v14, 1, v0
s_sub_u32 s24, s{S_MB}, 1
s_max_i32 s24, s24, 0
v_mov_b32 v15, s24
v_mov_b32 v16, s{S_MB}
v_cmp_eq_u32 vcc, 0, v14
s_cmp_eq_u32 s{S_BR}, 0
s_cselect_b32 s25, 0x4000, 0
v_cndmask_b32 v15, v15, v16, vcc
s_cselect_b64 vcc, -1, 0
s_lshl_b32 s26, s{S_HP}, 7
s_add_u32 s25, s25, s26
s_add_u32 s25, s25, {FLG}
v_cndmask_b32 v15, v15, v13, vcc
v_lshlrev_b32 v15, 11, v15
v_bfe_u32 v14, v0, 1, 1
v_lshlrev_b32 v14, 15, v14
v_cndmask_b32 v14, v14, 0, vcc
v_add3_u32 v{V_FL+1}, s25, v15, v14
buffer_load_dword v{V_FL}, v{V_FL+1}, s[{S_O}:{S_O+3}], 0 offen sc1
""")
        nload += 1
        if OPT.get("fused"):
            A(f"""s_lshl_b32 s24, s{S_BR}, 3
s_add_u32 s24, s24, s{S_MB}
s_lshl_b32 s24, s24, 11
s_add_u32 s24, s24, {FLG + 0xC000}
v_and_b32 v61, 15, v0
v_lshlrev_b32 v61, 7, v61
v_add_u32 v61, s24, v61
buffer_load_dword v60, v61, s[{S_O}:{S_O+3}], 0 offen sc1
""")
            nload += 1
        return nload
    extras.n = 0
    def issue(lst):
        for pre, ins in lst:
            for p in pre: A(p)
            if pre: A("s_nop 0")
            A(ins)
    def gc0():
        if OPT.get("gcyc"): A("s_memtime s[20:21]\ns_waitcnt lgkmcnt(0)\nv_accvgpr_write_b32 a254, v0\nv_mov_b32 v1, s20\nv_accvgpr_write_b32 a254, v1")
    def gc1():
        if OPT.get("gcyc"):
            A(f"""s_memtime s[20:21]
s_waitcnt lgkmcnt(0)
v_accvgpr_read_b32 v1, a254
v_sub_u32 v1, s20, v1
s_lshl_b32 s20, s2, 2
s_add_u32 s20, s20, {STAMP + 0x60000}
v_cmp_eq_u32 vcc, 0, v0
s_and_saveexec_b64 s[22:23], vcc
buffer_store_dword v1, off, s[{S_O}:{S_O+3}], s20
s_mov_b64 exec, s[22:23]
v_mov_b32 v1, s[20:21]
""".replace("v_mov_b32 v1, s[20:21]\n", ""))
            A("s_memtime s[20:21]\ns_waitcnt lgkmcnt(0)\nv_mov_b32 v1, s20\nv_accvgpr_write_b32 a254, v1")
    def gc2():
        if OPT.get("gcyc"):
            A(f"""s_memtime s[20:21]
s_waitcnt lgkmcnt(0)
v_accvgpr_read_b32 v1, a254
v_sub_u32 v1, s20, v1
s_lshl_b32 s20, s2, 2
s_add_u32 s20, s20, {STAMP + 0x61000}
v_cmp_eq_u32 vcc, 0, v0
s_and_saveexec_b64 s[22:23], vcc
buffer_store_dword v1, off, s[{S_O}:{S_O+3}], s20
s_mov_b64 exec, s[22:23]
""")
    def tlb_warm():
        T = OPT.get("tlbw", 0)
        A(f"""s_mul_i32 s16, s{S_BR}, 24
s_add_u32 s16, s16, 16
s_load_dwordx2 s[20:21], s[0:1], s16
s_load_dwordx2 s[18:19], s[0:1], 48
s_lshl_b32 s16, s{S_MB}, 1
s_lshr_b32 s17, s{S_HP}, 3
s_add_u32 s16, s16, s17              ; RT
""")
        if T & 2:
            A(f"""s_lshl_b32 s17, s16, 18
s_lshl_b32 s22, s{S_BR}, 22
s_add_u32 s17, s17, s22
s_add_u32 s17, s17, {O_IMG}
v_lshlrev_b32 v10, 12, v0
buffer_load_dword v{V_DUM}, v10, s[{S_O}:{S_O+3}], s17 offen
s_lshl_b32 s17, s{S_MB}, 19
s_add_u32 s17, s17, s22
s_add_u32 s17, s17, {O_IMG}
v_lshlrev_b32 v10, 13, v0
buffer_load_dword v{V_DUM}, v10, s[{S_O}:{S_O+3}], s17 offen
""")
        if T & 4:
            A(f"""s_lshl_b32 s17, s{S_MB}, 4
s_add_u32 s17, s17, s{S_HP}
s_lshl_b32 s17, s17, 16
s_add_u32 s17, s17, {HALO}
v_and_b32 v10, 31, v0
v_lshlrev_b32 v10, 11, v10
v_lshrrev_b32 v11, 5, v0
v_lshlrev_b32 v11, 20, v11
v_sub_u32 v10, v10, v11
v_add_u32 v10, 0x100000, v10
s_sub_u32 s17, s17, 0x100000
buffer_load_dword v{V_DUM}, v10, s[{S_O}:{S_O+3}], s17 offen
""")
        A("s_waitcnt lgkmcnt(0)")
        if T & 1:
            A(f"""s_and_b32 s17, s{S_HP}, 7
s_lshl_b32 s17, s17, 8
v_lshlrev_b32 v10, 15, v0
v_add_u32 v10, s17, v10
global_load_dword v{V_DUM}, v10, s[20:21]
""")
        if T & 8:
            A(f"""s_lshl_b32 s16, s16, 19
s_lshl_b32 s17, s{S_BR}, 11
s_add_u32 s16, s16, s17
s_and_b32 s17, s{S_HP}, 7
s_lshl_b32 s17, s17, 8
s_add_u32 s16, s16, s17
v_lshlrev_b32 v10, 13, v0
v_add_u32 v10, s16, v10
global_load_dword v{V_DUM}, v10, s[18:19]
""")
    def flag_extract():
        A(f"""s_cmp_eq_u32 s{S_BR}, 0
s_cselect_b32 s24, s{S_MB}, 0
s_cselect_b32 s25, 0x4000, 0
v_readlane_b32 s30, v{V_FL}, s24
v_readlane_b32 s31, v{V_FL}, 1
v_readlane_b32 s33, v{V_FL+1}, 1
v_readlane_b32 s3, v{V_FL}, 2
v_readlane_b32 s34, v{V_FL}, 3
s_lshl_b32 s24, s{S_MB}, 4
s_add_u32 s24, s24, s{S_HP}
s_lshl_b32 s24, s24, 7
s_add_u32 s32, s24, s25
s_add_u32 s32, s32, {FLG}
""")
        if OPT.get("fused"): A("v_accvgpr_write_b32 a252, v60\nv_accvgpr_write_b32 a253, v61")
    def late_setup():
        A(f"""s_mov_b32 s{S_D+2}, 256
s_mov_b32 s{S_D+3}, 0x20000
s_mov_b32 s97, {-2*XSLOT}
s_mov_b32 s96, {XSLOT}
s_mov_b32 s{S_XR}, 0
s_mov_b32 s47, 0
v_lshrrev_b32 v21, 4, v0
v_and_b32 v20, 15, v0
v_bfe_u32 v22, v0, 1, 3
v_xor_b32 v22, v22, v21
s_lshr_b32 s16, s{S_WAVE}, 1
s_lshl_b32 s16, s16, 7
v_add_u32 v23, s16, v20
v_lshlrev_b32 v23, 7, v23
""")
        for t in range(2):
            A(f"v_xor_b32 v24, {4*t}, v22\nv_lshlrev_b32 v24, 4, v24\nv_add_u32 v{V_RX[t]}, v23, v24")
        A(f"""v_bfe_u32 v20, v0, 2, 2
v_lshlrev_b32 v22, 3, v21
v_add_u32 v22, v22, v20
v_lshlrev_b32 v22, 7, v22
v_bfe_u32 v23, v0, 3, 1
v_and_b32 v24, 1, v21
v_lshlrev_b32 v24, 1, v24
v_or_b32 v23, v23, v24
s_and_b32 s16, s{S_WAVE}, 1
s_lshl_b32 s16, s16, 1
v_xor_b32 v23, s16, v23
v_lshlrev_b32 v23, 5, v23
v_add_u32 v22, v22, v23
v_and_b32 v23, 3, v0
v_lshlrev_b32 v23, 3, v23
v_add_u32 v22, v22, v23
v_add_u32 v{V_RW}, {WB}, v22
v_xor_b32 v{V_RW+1}, 32, v{V_RW}
""")
    A(f"s_cmp_eq_u32 s{S_WAVE}, 3\ns_cbranch_scc1 .Lp3")
    if not W0F: issue(wdma(0))
    [A(q) for p in wadv() for q in p.split('|')]
    ne = extras()
    issue(wdma(1)); [A(q) for p in wadv() for q in p.split('|')]
    issue(xdma(False)); [A(q) for p in xadv() for q in p.split('|')]
    DEFER = OPT.get("defer", 1)
    if not DEFER:
        issue(xdma(False)); [A(q) for p in xadv() for q in p.split('|')]
    if OPT.get("pp"): A("s_memrealtime s[56:57]")
    late_setup()
    if OPT.get("pp"): A("s_memrealtime s[58:59]")
    A(f"s_waitcnt vmcnt({ne + 8+6+(0 if DEFER else 6)})")
    A("s_barrier")
    stamp(1)
    if OPT.get("pp"): A(f"s_branch .L{name}_fin2")
    gc0()
    A(f"s_cmp_eq_u32 s{S_BR}, 0\ns_cbranch_scc1 .Lmain_A0")
    A.label(".Lv_B0"); gen_main("B0", [1, 1, 0], False); A("s_branch .Lph2_B")
    A.label(".Lmain_A0"); A.label(".Lv_A0"); gen_main("A0", [1, 0, 0], False); A("s_branch .Lph2_A")
    A.label(".Lp3")
    kinit = 0
    if OPT.get("winit", 0) == 1:
        A(f"""s_and_b32 s17, s{S_MB}, 3
s_lshl_b32 s17, s17, 4
v_and_b32 v20, 15, v0
v_add_u32 v20, s17, v20
v_mul_u32_u24 v20, 6144, v20
v_min_u32 v22, 2, v21
v_lshlrev_b32 v22, 11, v22
v_add_u32 v20, v20, v22
""")
        for S in range(2, 2 + DW):
            A(f"s_mov_b32 s17, {S*393216}\nbuffer_load_dword v{V_DUM}, v20, s[{S_W}:{S_W+3}], s17 offen")
            kinit += 1
    ne3 = extras() + kinit
    issue(xdma(True)); [A(q) for p in xadv() for q in p.split('|')]
    if not DEFER:
        issue(xdma(True)); [A(q) for p in xadv() for q in p.split('|')]
    A(f"""; warm voffsets
s_and_b32 s16, s{S_HP}, {7 if MAP == 0 else 3}
s_lshl_b32 s16, s16, {5 if MAP == 0 else 6}
v_and_b32 v20, {31 if MAP == 0 else 63}, v0
v_add_u32 v20, s16, v20
v_lshlrev_b32 v20, 11, v20
s_add_u32 s90, s{S_KW}, {3 + DX}
s_mul_i32 s16, s2, 1
s_and_b32 s16, s2, 7
s_lshr_b32 s16, s16, 1
s_mul_i32 s16, s16, {ROT}
s_add_u32 s90, s16, {3 + DX}
s_and_b32 s90, s90, 15
s_lshl_b32 s17, s90, 7
v_add_u32 v{V_PX}, s17, v20
s_and_b32 s17, s{S_MB}, 3
s_lshl_b32 s17, s17, 4
v_and_b32 v20, 15, v0
v_add_u32 v20, s17, v20
v_mul_u32_u24 v20, 6144, v20
v_lshrrev_b32 v21, 4, v0
v_min_u32 v22, 2, v21
v_lshlrev_b32 v22, 11, v22
v_add_u32 v20, v20, v22
s_add_u32 s91, s16, {2 + DW}
s_and_b32 s91, s91, 15
s_mul_i32 s17, s91, 393216
v_add_u32 v{V_PW}, s17, v20
""")
    if OPT.get("winit", 0) == 2:
        assert DW == 2
        A(f"v_subrev_u32 v14, {2*393216}, v{V_PW}\nv_subrev_u32 v15, {393216}, v{V_PW}")
    if TPF:
        A(f"""s_getpc_b64 s[22:23]
.Lpc_tpf:
s_cmp_eq_u32 s{S_BR}, 0
s_cselect_b32 s16, .Ltail_A0-.Lpc_tpf, 0
s_cselect_b32 s17, .Ltail_A3-.Lpc_tpf, 0
s_cselect_b32 s18, 0, .Ltail_B0-.Lpc_tpf
s_cselect_b32 s19, 0, .Ltail_B3-.Lpc_tpf
s_add_u32 s16, s16, s18
s_add_u32 s17, s17, s19
s_sub_u32 s22, s22, 0x20000
s_subb_u32 s23, s23, 0
s_add_u32 s16, s16, 0x20000
s_add_u32 s17, s17, 0x20000
v_and_b32 v59, 31, v0
v_lshlrev_b32 v59, 7, v59
v_mov_b32 v58, s16
v_mov_b32 v57, s17
v_cmp_gt_u32 vcc, 32, v0
s_nop 1
v_cndmask_b32 v58, v57, v58, vcc
v_add_u32 v59, v58, v59
""")
    if not DEFER:
        issue(warm()); [A(q) for p in padv() for q in p.split('|')]
    late_setup()
    A(f"s_waitcnt vmcnt({ne3 + (14 if DEFER else 28 + 2)})")
    A("s_barrier")
    stamp(1)
    if OPT.get("pp"): A(f"s_branch .L{name}_fin2")
    gc0()
    A(f"s_cmp_eq_u32 s{S_BR}, 0\ns_cbranch_scc1 .Lmain_A3")
    A.label(".Lv_B3"); gen_main("B3", [1, 1, 0], True); A("s_branch .Lph2_B")
    A.label(".Lmain_A3"); A.label(".Lv_A3"); gen_main("A3", [1, 0, 0], True)
    A.label(".Lph2_A")
    if OPT.get("sprof"):
        A(f"""s_waitcnt lgkmcnt(0)
v_cmp_eq_u32 vcc, s29, v0
v_mov_b32 v56, s18
s_nop 1
v_cndmask_b32 v57, v57, v56, vcc
s_lshl_b32 s16, s2, 8
s_add_u32 s16, s16, {STAMP + 0x50000}
v_lshlrev_b32 v56, 2, v0
buffer_store_dword v57, v56, s[{S_O}:{S_O+3}], s16 offen
""")
    stamp(2)
    gc1()
    A("s_waitcnt vmcnt(0)\ns_barrier\ns_nop 7")
    phase2_A(A, OPT, stamp)
    A(f"s_branch .Lph3")
    A.label(".Lph2_B")
    stamp(2)
    gc1()
    if OPT.get("ovl", 0): A("s_nop 7")
    else: A("s_waitcnt vmcnt(0)\ns_barrier\ns_nop 7")
    b_tail = phase2_B(A, OPT, stamp) or (lambda A2: None)
    A.label(".Lph3")
    gc2()
    if OPT.get("fused"):
        import k3_gen
        k3_gen.gen_k3(A, OPT, name="p3", stamps=bool(stamps), fused=True)
    A.label(f".L{name}_fin")
    if stamps:
        A("s_waitcnt vmcnt(0)")
        stamp(5)
        A.label(f".L{name}_fin2")
        A("s_waitcnt vmcnt(0)")
        A(f"""s_waitcnt lgkmcnt(0)
s_cmp_lg_u32 s{S_WAVE}, 0
s_cbranch_scc1 .L{name}_done
""")
        for q in range(12): A(f"v_mov_b32 v{20+q}, s{S_T0+q}")
        for q in range(4): A(f"v_mov_b32 v{32+q}, s{4+2*q}")
        A(f"""s_lshl_b32 s16, s2, 5
s_add_u32 s16, s16, {STAMP + 0x8000}
v_mov_b32 v41, s16
s_lshl_b32 s16, s2, 6
s_add_u32 s16, s16, {STAMP}
v_mov_b32 v40, s16
v_cmp_eq_u32 vcc, 0, v0
s_and_saveexec_b64 s[18:19], vcc
s_cbranch_execz .L{name}_done
buffer_store_dwordx4 v[20:23], v40, s[{S_O}:{S_O+3}], 0 offen
buffer_store_dwordx4 v[24:27], v40, s[{S_O}:{S_O+3}], 0 offen offset:16
buffer_store_dwordx4 v[28:31], v40, s[{S_O}:{S_O+3}], 0 offen offset:32
buffer_store_dwordx4 v[32:35], v41, s[{S_O}:{S_O+3}], 0 offen
buffer_store_dwordx2 v[36:37], v41, s[{S_O}:{S_O+3}], 0 offen offset:16
""")
    A.label(f".L{name}_done")
    A("s_endpgm")
    b_tail(A)
    A.label(".Lk1_text_end")
    if OPT.get("fused"): A.label(".Lall_text_end")
    return kdesc(name, 512, 256, 102), LDS1

def code_prefetch(A, tag, start, end, voff, vdst, forward, n=1, sbase=20):
    A(f"s_getpc_b64 s[{sbase}:{sbase+1}]")
    A.label(f".Lpc_{tag}")
    if forward:
        A(f"s_add_u32 s{sbase}, s{sbase}, {start}-.Lpc_{tag}")
        A(f"s_addc_u32 s{sbase+1}, s{sbase+1}, 0")
    else:
        A(f"s_sub_u32 s{sbase}, s{sbase}, .Lpc_{tag}-{start}")
        A(f"s_subb_u32 s{sbase+1}, s{sbase+1}, 0")
    A(f"v_lshlrev_b32 v{voff}, 7, v0")
    for i in range(n):
        A(f"v_min_u32 v{voff+1}, {end}-{start}-4, v{voff}")
        A(f"global_load_dword v{vdst}, v{voff+1}, s[{sbase}:{sbase+1}]")
        if i < n-1: A(f"v_add_u32 v{voff}, 0x2000, v{voff}")

POLL_LIMIT = 200000
def signal2(A, tag, off_sreg, val_sreg, tv, oldreg=30, flagreg=32, sigwave=0):
    A(f"""s_cmp_lg_u32 s{S_WAVE}, {sigwave}
s_cbranch_scc1 .Lsig_{tag}_end
s_add_u32 s{oldreg}, s{oldreg}, 1
v_mov_b32 v{tv}, s{oldreg}
v_mov_b32 v{tv+1}, s{val_sreg}
s_mov_b64 exec, 1
buffer_store_dword v{tv}, off, s[{S_O}:{S_O+3}], s{flagreg} sc1
buffer_atomic_add v{tv+1}, off, s[{S_D}:{S_D+3}], s{off_sreg}
s_mov_b64 exec, -1
.Lsig_{tag}_end:""")

def poll2(A, tag, isA, dbg_off_sreg, dbg_test, tv, seenreg=31, flagreg=33, allwaves=False, pre=None):
    if pre is not None:
        A(f"""s_waitcnt vmcnt(0)
v_readfirstlane_b32 s16, v{pre}
s_nop 0
s_cmp_lg_u32 s16, s{seenreg}
s_cbranch_scc1 .Lpoll_{tag}_end""")
    if not allwaves:
        A(f"""s_cmp_lg_u32 s{S_WAVE}, 0
s_cbranch_scc1 .Lpoll_{tag}_end""")
    A(f"""s_mov_b32 s17, 0
.Lpoll_{tag}:""")
    if isA:
        A(f"""buffer_load_dword v{tv}, v{V_FL+1}, s[{S_O}:{S_O+3}], 0 offen sc1
s_waitcnt vmcnt(0)
v_cmp_ne_u32 vcc, v{tv}, v{V_FL}
s_nop 1
s_and_b32 s16, vcc_lo, 0xff
s_cmp_eq_u32 s16, 0xff
s_cbranch_scc1 .Lpoll_{tag}_end""")
    else:
        A(f"""buffer_load_dword v{tv}, off, s[{S_O}:{S_O+3}], s{flagreg} sc1
s_waitcnt vmcnt(0)
v_readfirstlane_b32 s16, v{tv}
s_nop 0
s_cmp_lg_u32 s16, s{seenreg}
s_cbranch_scc1 .Lpoll_{tag}_end""")
    A(f"""s_add_u32 s17, s17, 1
s_and_b32 s16, s17, 15
s_cmp_lg_u32 s16, 0
s_cbranch_scc1 .Lpoll_{tag}
buffer_load_dword v{tv}, off, s[{S_D}:{S_D+3}], s{dbg_off_sreg} sc1
s_waitcnt vmcnt(0)
v_readfirstlane_b32 s16, v{tv}
s_nop 0
{dbg_test}
s_cbranch_scc1 .Lpoll_{tag}_end
s_cmp_lt_u32 s17, {POLL_LIMIT}
s_cbranch_scc1 .Lpoll_{tag}
.Lpoll_{tag}_end:""")

def phi_ops(regs, tmp):
    ops = []
    for k in range(0, len(regs), 2):
        r = regs[k]; t = tmp[(k//2) % len(tmp)]
        ops.append(f"v_pk_mul_f32 v[{t}:{t+1}], v[{r}:{r+1}], s[18:19]")
        ops.append(f"v_max_f32 v{r}, 0, v{r}")
        ops.append(f"v_exp_f32_e64 v{t}, v{t} clamp")
        ops.append(f"v_exp_f32_e64 v{t+1}, v{t+1} clamp")
        ops.append(f"v_max_f32 v{r+1}, 0, v{r+1}")
        ops.append(f"v_pk_add_f32 v[{r}:{r+1}], v[{r}:{r+1}], v[{t}:{t+1}]")
        ops.append(f"v_pk_add_f32 v[{r}:{r+1}], v[{r}:{r+1}], s[22:23]")
    return ops

def phase2_A(A, OPT, stamp):
    KV = 16
    Z = 32
    ONES = 40
    TMP = [44, 46, 48, 50]
    if OPT.get("wopf", 1):
        A(f"""s_lshl_b32 s16, s{S_MB}, 4
s_add_u32 s16, s16, s{S_HP}
s_lshl_b32 s16, s16, 2
s_add_u32 s16, s16, s{S_WAVE}
s_lshr_b32 s17, s16, 8
s_mul_i32 s17, s17, 24
s_add_u32 s17, s17, 16
s_load_dwordx2 s[20:21], s[0:1], s17
s_and_b32 s16, s16, 255
s_lshl_b32 s16, s16, 13
v_lshlrev_b32 v13, 7, v0
v_add_u32 v13, s16, v13
s_waitcnt lgkmcnt(0)
global_load_dword v12, v13, s[20:21]
""")
    A(f"""s_mov_b32 s18, {LOG2E}
s_mov_b32 s19, {LOG2E}
s_mov_b32 s22, {EPS}
s_mov_b32 s23, {EPS}
""")
    for r in range(4): A(f"v_mov_b32 v{ONES+r}, 0x3f803f80")
    for s in range(4):
        for b in range(2):
            t0 = acc(2*s, 2+b); t1 = acc(2*s+1, 2+b)
            for op in phi_ops([t0, t0+1, t0+2, t0+3, t1, t1+1, t1+2, t1+3], TMP): A(op)
            A(f"v_cvt_pk_bf16_f32 v{t0}, v{t0}, v{t0+1}")
            A(f"v_cvt_pk_bf16_f32 v{t0+1}, v{t0+2}, v{t0+3}")
            A(f"v_cvt_pk_bf16_f32 v{t0+2}, v{t1}, v{t1+1}")
            A(f"v_cvt_pk_bf16_f32 v{t0+3}, v{t1+2}, v{t1+3}")
        for b in range(2):
            t0 = acc(2*s, 4+b); t1 = acc(2*s+1, 4+b)
            A(f"v_cvt_pk_bf16_f32 v{t0}, v{t0}, v{t0+1}")
            A(f"v_cvt_pk_bf16_f32 v{t0+1}, v{t0+2}, v{t0+3}")
            A(f"v_cvt_pk_bf16_f32 v{t0+2}, v{t1}, v{t1+1}")
            A(f"v_cvt_pk_bf16_f32 v{t0+3}, v{t1+2}, v{t1+3}")
        A("s_nop 1")
        for b in range(2):
            pk = vr(acc(2*s, 2+b), 4)
            for bp in range(2):
                d = vr(KV + (b*2+bp)*4, 4)
                A(f"v_mfma_f32_16x16x32_bf16 {d}, {pk}, {vr(acc(2*s, 4+bp), 4)}, {'0' if s == 0 else d}")
            d = vr(Z + 4*b, 4)
            A(f"v_mfma_f32_16x16x32_bf16 {d}, {pk}, {vr(ONES,4)}, {'0' if s == 0 else d}")
    A(f"""v_lshlrev_b32 v44, 4, v0
s_and_b32 s16, s{S_WAVE}, 1
s_mul_i32 s16, s16, 6144
v_add_u32 v44, s16, v44
s_nop 7
s_cmp_lt_u32 s{S_WAVE}, 2
s_cbranch_scc1 .LA_skipw
""")
    for i in range(6): A(f"ds_write_b128 v44, {vr(KV+4*i,4)} offset:{i*1024}")
    A.label(".LA_skipw")
    A("s_waitcnt lgkmcnt(0)\ns_barrier")
    A(f"s_cmp_ge_u32 s{S_WAVE}, 2\ns_cbranch_scc1 .LA_skipr")
    for i in range(6): A(f"ds_read_b128 {ar(4*i,4)}, v44 offset:{i*1024}")
    A("s_waitcnt lgkmcnt(0)")
    for i in range(24):
        A(f"v_accvgpr_read_b32 v{46 + (i%2)}, a{i}")
        A(f"v_add_f32 v{KV+i}, v{KV+i}, v{46 + (i%2)}")
    A(f"""s_lshl_b32 s16, s{S_HP}, 1
s_and_b32 s17, s{S_WAVE}, 1
s_add_u32 s16, s16, s17              ; head
s_lshl_b32 s17, s{S_MB}, 5
s_add_u32 s16, s16, s17
s_lshl_b32 s16, s16, 13
s_add_u32 s16, s16, {PART}
v_lshlrev_b32 v45, 4, v0
""")
    for i in range(4): A(f"buffer_store_dwordx4 {vr(KV+4*i,4)}, v45, s[{S_O}:{S_O+3}], s16 offen offset:{i*1024} sc1")
    A(f"""v_lshrrev_b32 v46, 4, v0
v_lshlrev_b32 v46, 4, v46
v_and_b32 v47, 15, v0
v_cmp_eq_u32 vcc, 0, v47
s_add_u32 s16, s16, 4096
s_and_saveexec_b64 s[20:21], vcc
buffer_store_dwordx4 {vr(Z,4)}, v46, s[{S_O}:{S_O+3}], s16 offen sc1
buffer_store_dwordx4 {vr(Z+4,4)}, v46, s[{S_O}:{S_O+3}], s16 offen offset:64 sc1
s_mov_b64 exec, s[20:21]
""")
    A.label(".LA_skipr")
    for a in range(8):
        t0 = acc(a, 0); t1 = acc(a, 1)
        for op in phi_ops([t0, t0+1, t0+2, t0+3, t1, t1+1, t1+2, t1+3], TMP): A(op)
        A(f"v_cvt_pk_bf16_f32 v{t0}, v{t0}, v{t0+1}")
        A(f"v_cvt_pk_bf16_f32 v{t0+1}, v{t0+2}, v{t0+3}")
        A(f"v_cvt_pk_bf16_f32 v{t0+2}, v{t1}, v{t1+1}")
        A(f"v_cvt_pk_bf16_f32 v{t0+3}, v{t1+2}, v{t1+3}")
    stamp(3)
    if OPT.get("p3pf", 0): code_prefetch(A, "p3a", ".Lph3", ".Lall_text_end", 2, 4, True, n=2, sbase=24)
    A("s_waitcnt vmcnt(0)\ns_barrier")
    stamp(6)
    A(f"s_lshl_b32 s20, s{S_HP}, 2\ns_add_u32 s20, s20, 128\ns_mov_b32 s21, 1")
    signal2(A, "A", 20, 21, 60)
    poll2(A, "A", True, 20, "s_cmp_ge_u32 s16, 8", 60)
    A("s_barrier")
    stamp(7)
    A(f"""s_lshl_b32 s16, s{S_HP}, 1
s_and_b32 s17, s{S_WAVE}, 1
s_add_u32 s16, s16, s17              ; head
s_lshr_b32 s17, s{S_WAVE}, 1
s_lshl_b32 s17, s17, 7               ; 4wm*32
s_add_u32 s16, s16, s17
s_lshl_b32 s16, s16, 13
s_add_u32 s16, s16, {PART}
v_lshlrev_b32 v45, 4, v0
v_lshrrev_b32 v46, 4, v0
v_lshlrev_b32 v46, 4, v46
v_add_u32 v46, 4096, v46
""")
    for i in range(4):
        for q in range(4): A(f"buffer_load_dwordx4 {ar(i*24 + 4*q, 4)}, v45, s[{S_O}:{S_O+3}], s16 offen offset:{q*1024} sc1")
        for b in range(2): A(f"buffer_load_dwordx4 {ar(i*24 + 16 + 4*b, 4)}, v46, s[{S_O}:{S_O+3}], s16 offen offset:{b*64} sc1")
        if i < 3: A(f"s_add_u32 s16, s16, {32*8192}")
    A("s_waitcnt vmcnt(0)")
    stamp(8)
    for r in range(24):
        A(f"v_accvgpr_read_b32 v{KV+r}, a{r}")
        A(f"v_accvgpr_read_b32 v46, a{24+r}")
        A(f"v_accvgpr_read_b32 v47, a{48+r}")
        A(f"v_accvgpr_read_b32 v48, a{72+r}")
        A(f"v_add_f32 v{KV+r}, v{KV+r}, v46")
        A(f"v_add_f32 v47, v47, v48")
        A(f"v_add_f32 v{KV+r}, v{KV+r}, v47")
    A(f"""v_lshlrev_b32 v44, 4, v0
s_mul_i32 s16, s{S_WAVE}, 6144
v_add_u32 v45, s16, v44
s_xor_b32 s17, s{S_WAVE}, 2
s_mul_i32 s16, s17, 6144
v_add_u32 v44, s16, v44
""")
    for i in range(6): A(f"ds_write_b128 v45, {vr(KV+4*i,4)} offset:{16384 + i*1024}")
    A("s_waitcnt lgkmcnt(0)\ns_barrier")
    for i in range(6): A(f"ds_read_b128 {ar(4*i,4)}, v44 offset:{16384 + i*1024}")
    A("s_waitcnt lgkmcnt(0)")
    for i in range(24):
        A(f"v_accvgpr_read_b32 v{46 + (i%2)}, a{i}")
        A(f"v_add_f32 v{KV+i}, v{KV+i}, v{46 + (i%2)}")
    for bp in range(2):
        for b in range(2):
            s = KV + (b*2+bp)*4; d = 48 + 4*bp + 2*b
            A(f"v_cvt_pk_bf16_f32 v{d}, v{s}, v{s+1}")
            A(f"v_cvt_pk_bf16_f32 v{d+1}, v{s+2}, v{s+3}")
    for b in range(2):
        s = Z + 4*b; d = 56 + 2*b
        A(f"v_cvt_pk_bf16_f32 v{d}, v{s}, v{s+1}")
        A(f"v_cvt_pk_bf16_f32 v{d+1}, v{s+2}, v{s+3}")
    A("s_nop 1")
    for a in range(8):
        pq = vr(acc(a, 0), 4)
        A(f"v_mfma_f32_16x16x32_bf16 {vr(acc(a,2),4)}, v[48:51], {pq}, 0")
        A(f"v_mfma_f32_16x16x32_bf16 {vr(acc(a,3),4)}, v[52:55], {pq}, 0")
        A(f"v_mfma_f32_16x16x32_bf16 {vr(acc(a,4),4)}, v[56:59], {pq}, 0")
    A(f"""s_lshl_b32 s16, s{S_MB}, 4
s_lshr_b32 s17, s{S_WAVE}, 1
s_lshl_b32 s17, s17, 3
s_add_u32 s16, s16, s17
s_lshl_b32 s16, s16, 5
s_lshl_b32 s17, s{S_HP}, 1
s_add_u32 s16, s16, s17
s_and_b32 s17, s{S_WAVE}, 1
s_add_u32 s16, s16, s17
s_lshl_b32 s16, s16, 10
s_add_u32 s16, s16, {O_IMG}
v_lshlrev_b32 v45, 4, v0
""")
    for a in range(8):
        n0 = acc(a, 2); n1 = acc(a, 3); de = acc(a, 4); o = acc(a, 5)
        A(f"v_add_f32 v{de+1}, {EPS}, v{de}")
        A(f"v_rcp_f32 v{de+1}, v{de+1}")
        A("s_nop 0")
        for r in range(4): A(f"v_mul_f32 v{n0+r}, v{n0+r}, v{de+1}")
        for r in range(4): A(f"v_mul_f32 v{n1+r}, v{n1+r}, v{de+1}")
        A(f"v_cvt_pk_bf16_f32 v{o}, v{n0}, v{n0+1}")
        A(f"v_cvt_pk_bf16_f32 v{o+1}, v{n0+2}, v{n0+3}")
        A(f"v_cvt_pk_bf16_f32 v{o+2}, v{n1}, v{n1+1}")
        A(f"v_cvt_pk_bf16_f32 v{o+3}, v{n1+2}, v{n1+3}")
        A(f"buffer_store_dwordx4 {vr(o,4)}, v45, s[{S_O}:{S_O+3}], s16 offen sc1")
        if a < 7: A(f"s_add_u32 s16, s16, 32768")
    stamp(4)

def phase2_B(A, OPT, stamp):
    from k1b_gen import gen_B
    return gen_B(A, OPT, stamp)
```

```python
from asmgen import *
import k1_gen as K
from k1_gen import *

KBASE, VBASE, QBASE = 0, 65536, 131072
V_KW, V_VW, V_QW, V_HL, V_KR, V_VR, V_OS, V_QR = 24, 25, 26, 27, 28, 29, 30, 31
V_T = 15
V_GK, V_GV = 2, 3
V_HS = 14
PM = 16
CMA, CMB = 32, 48
SA = [64, 80]; SB = 96
PB = [112, 120]
O_ = lambda i: 128 + 16*i
L_ = lambda i: 64 + 16*i
FT = 200
QF = lambda i, t: 128 + 8*i + 4*t
KF = [160, 168]; KF2 = 176
VF = [184, 192]; VF2 = 200
ONES = 208
HS = 0

B1STATE = {"done": 0}
def b1_parts():
    def kq_o(a): return (a >> 1)*2048 + (a & 1)*256
    def v_o(a): return (a >> 1)*2048 + (a & 1)*1024
    pre = f"""s_lshl_b32 s36, s{S_MB}, 4
s_add_u32 s36, s36, s{S_HP}
s_lshl_b32 s36, s36, 16
s_add_u32 s36, s36, {HALO}
v_accvgpr_read_b32 v{V_GK}, a250
v_accvgpr_read_b32 v{V_GV}, a251
s_mov_b32 s22, {QSCALE}
s_mov_b32 s23, {QSCALE}
s_mov_b32 s24, s{S_O}
s_mov_b32 s25, s{S_O+1}
s_mov_b32 s27, 0x20000
s_cmp_ge_u32 s{S_WAVE}, 2|s_cselect_b32 s26, 0x10000000, 0
s_add_u32 s4, s36, 0
s_add_u32 s5, s36, 2048
s_add_u32 s6, s36, 4096
s_add_u32 s7, s36, 6144""".split("\n")
    pre = [q for q in pre]
    free = []; UNIT = {}; units = []
    def kv_unit(a):
        for (nm, cc, vw, off, vg, swp) in (("K", 2, V_KW, kq_o(a), V_GK, "v_permlane16_swap_b32"), ("V", 4, V_VW, v_o(a), V_GV, "v_permlane32_swap_b32")):
            t0 = acc(a, cc); t1 = acc(a, cc+1)
            d = t0 if a >= 5 else free.pop(0)
            UNIT[(nm, a)] = d
            cv = [f"v_cvt_pk_bf16_f32 v{d}, v{t0}, v{t0+1}", f"v_cvt_pk_bf16_f32 v{d+1}, v{t0+2}, v{t0+3}",
                  f"v_cvt_pk_bf16_f32 v{d+2}, v{t1}, v{t1+1}", f"v_cvt_pk_bf16_f32 v{d+3}, v{t1+2}, v{t1+3}"]
            post = [f"{swp} v{d}, v{d+2}", f"{swp} v{d+1}, v{d+3}",
                    f"buffer_store_dwordx4 {vr(d,4)}, v{vg}, s[24:27], s{4 + off//2048} offen offset:{off % 2048} sc1",
                    f"ds_write_b128 v{vw}, {vr(d,4)} offset:{off}"]
            units.append((a, cv, post))
    def q_unit(a):
        t0 = acc(a, 0); t1 = acc(a, 1)
        cv = [f"v_pk_mul_f32 v[{t}:{t+1}], v[{t}:{t+1}], s[22:23]" for t in (t0, t0+2, t1, t1+2)]
        cv += [f"v_cvt_pk_bf16_f32 v{t0}, v{t0}, v{t0+1}", f"v_cvt_pk_bf16_f32 v{t0+1}, v{t0+2}, v{t0+3}",
               f"v_cvt_pk_bf16_f32 v{t0+2}, v{t1}, v{t1+1}", f"v_cvt_pk_bf16_f32 v{t0+3}, v{t1+2}, v{t1+3}"]
        post = [f"v_permlane16_swap_b32 v{t0}, v{t0+2}", f"v_permlane16_swap_b32 v{t0+1}, v{t0+3}", f"ds_write_b128 v{V_QW}, {vr(t0,4)} offset:{kq_o(a)}"]
        units.append((a, cv, post))
    for a in (7, 6, 5):
        kv_unit(a); free += [c for c in (acc(a, 3), acc(a, 5)) if c >= 192]
    for a in (4, 3, 2): kv_unit(a)
    q_unit(7); q_unit(6)
    free += [acc(7, 0), acc(7, 1), acc(6, 0), acc(6, 1)]
    for a in (1, 0): kv_unit(a)
    for a in (5, 4, 3, 2, 1, 0): q_unit(a)
    stream = [(units[0][0], l) for l in units[0][1]]
    for u in range(len(units)):
        if u + 1 < len(units): stream += [(units[u+1][0], l) for l in units[u+1][1]]
        else: stream.append((None, "s_nop 1"))
        stream += [(units[u][0], l) for l in units[u][2]]
    assert all(v >= 192 for v in UNIT.values()), UNIT
    return pre, stream, UNIT

def gen_B(A, OPT, stamp):
    PR = [4, 6, 8, 10, 48, 50, 52, 54, 56, 58]
    def P(i):
        if OPT.get("prof2"): A(f"s_memtime s[{PR[i]}:{PR[i]+1}]")
    P(0)
    PXr = 216
    PYr = 192
    def kq_off(a, b): return (a >> 1)*2048 + b*1024 + (a & 1)*256
    def v_off(a, b): return (a >> 1)*2048 + (a & 1)*1024 + b*256
    def kq_o(a): return (a >> 1)*2048 + (a & 1)*256
    def v_o(a): return (a >> 1)*2048 + (a & 1)*1024
    pre, stream, UNIT = b1_parts()
    if not OPT.get("ovl", 0):
        for l in pre:
            for q in l.split('|'): A(q)
        done = 0
    else:
        done = B1STATE["done"]
    rest = stream[done:]
    if done: A("s_nop 1")
    for _, l in rest: A(l)
    if not OPT.get("cyc"): stamp(6)
    P(1)
    for rho in range(16):
        key = 8*(rho//4) + rho % 4
        A(f"v_cmp_le_i32 s[{S_MASK+2*rho}:{S_MASK+2*rho+1}], {key}, v{V_T}")
    A("v_mov_b32 v10, 0x3f803f80")
    for r in range(4): A(f"v_accvgpr_write_b32 a{ONES+r}, v10")

    A(f"""s_lshl_b32 s16, s{S_MB}, 3
s_lshr_b32 s17, s{S_WAVE}, 1
s_add_u32 s16, s16, s17
s_lshl_b32 s16, s16, 16
s_lshl_b32 s17, s{S_HP}, 1
s_and_b32 s18, s{S_WAVE}, 1
s_add_u32 s17, s17, s18
s_lshl_b32 s17, s17, 10
s_add_u32 s16, s16, s17
s_add_u32 s97, s16, {O_IMG + 0x400000}
s_mov_b32 s{S_FB}, 0
s_mov_b32 s98, 0x33800000
s_mov_b32 s99, 0x53800000
s_waitcnt lgkmcnt(0)
s_barrier
""")
    if not OPT.get("cyc"): stamp(7)
    P(2)
    A(f"""s_sub_u32 s20, s{S_MB}, 1
s_max_i32 s20, s20, 0
s_lshl_b32 s20, s20, 4
s_add_u32 s20, s20, s{S_HP}
s_lshl_b32 s20, s20, 16
s_add_u32 s20, s20, {HALO}
s_and_b32 s17, s{S_WAVE}, 1          ; wn
s_lshl_b32 s16, s17, 14
s_add_u32 s35, s20, s16
s_add_u32 s37, s35, 32768            ; V quarter
s_lshl_b32 s29, s17, 15
s_add_u32 s38, s29, 65536
s_lshl_b32 s16, s{S_WAVE}, 14
s_add_u32 s39, s20, s16
s_lshr_b32 s16, s{S_WAVE}, 1
s_lshl_b32 s16, s16, 16
s_add_u32 s47, s16, s29
s_cmp_eq_u32 s{S_MB}, 0
s_cselect_b32 s26, 0, 0x10000000
""")
    for i in range(4):
        for t in range(2): A(f"ds_read_b128 {ar(QF(i,t),4)}, v{V_QR} offset:{i*4096 + t*1024}")
    A("s_waitcnt lgkmcnt(0)")
    stamp(3)

    def full(i, d): return dict(slot=i, kind="full", bk=8+2*i-d, cm=(None if d <= 2*i else (CMA if d == 2*i+1 else CMB)))
    def merged(i): return dict(slot=i, kind="merged", bk=8+2*i, bk2=2*i, cm=None)
    P1 = [full(3,1), full(3,2), full(2,1), full(3,3), full(2,2), full(3,4), full(1,1), full(2,3), full(3,5), full(1,2), full(2,4), full(3,6)]
    HJ = [full(0,1), full(1,3), full(2,5), full(3,7), full(0,2), full(1,4), full(2,6), merged(3), full(0,3), full(1,5), full(2,7), full(0,4), full(1,6), merged(2)]
    LJ = [full(0,5), full(1,7), full(0,6), merged(1), full(0,7), merged(0)]
    JOBS = P1 + HJ + LJ
    kb = -1; prev = None
    for j in JOBS:
        if j["bk"] != prev: kb += 1; j["new"] = True
        else: j["new"] = False
        j["buf"] = kb % 2; j["tagid"] = kb; prev = j["bk"]
    touched = set()
    def run_pipeline(jobs, hooks, final, xl={}, xv={}):
        trk = LgkmTracker()
        N = len(jobs)
        def loadK(n):
            j = jobs[n]; r = []
            if j["new"]:
                for t in range(2): r.append((("K", j["tagid"], t), f"ds_read_b128 {ar(KF[j['buf']]+4*t,4)}, v{V_KR} offset:{j['bk']*2048 + t*1024}"))
            if j["kind"] == "merged":
                for t in range(2): r.append((("K2", n, t), f"ds_read_b128 {ar(KF2+4*t,4)}, v{V_KR} offset:{j['bk2']*2048 + t*1024}"))
            return r
        def loadV(n):
            j = jobs[n]; r = []
            if j["new"]:
                for t in range(2): r.append((("V", j["tagid"], t), f"ds_read_b128 {ar(VF[j['buf']]+4*t,4)}, v{V_VR} offset:{j['bk']*2048 + t*1024}"))
            if j["kind"] == "merged":
                for t in range(2): r.append((("V2", n, t), f"ds_read_b128 {ar(VF2+4*t,4)}, v{V_VR} offset:{j['bk2']*2048 + t*1024}"))
            return r
        def partA(n):
            j = jobs[n]; i = j["slot"]; S = SA[n % 2]; m = []
            c0 = "0" if j["cm"] is None else vr(j["cm"], 16)
            kf = KF[j["buf"]]; tg = j["tagid"]
            m.append(([("K", tg, 0)], f"v_mfma_f32_32x32x16_bf16 {vr(S,16)}, {ar(kf,4)}, {ar(QF(i,0),4)}, {c0}"))
            m.append(([("K", tg, 1)], f"v_mfma_f32_32x32x16_bf16 {vr(S,16)}, {ar(kf+4,4)}, {ar(QF(i,1),4)}, {vr(S,16)}"))
            if j["kind"] == "merged":
                m.append(([("K2", n, 0)], f"v_mfma_f32_32x32x16_bf16 {vr(SB,16)}, {ar(KF2,4)}, {ar(QF(i,0),4)}, {vr(CMB,16)}"))
                m.append(([("K2", n, 1)], f"v_mfma_f32_32x32x16_bf16 {vr(SB,16)}, {ar(KF2+4,4)}, {ar(QF(i,1),4)}, {vr(SB,16)}"))
            return m
        def partV(n):
            j = jobs[n]; S = SA[n % 2]; P = PB[n % 2]; v = []
            if j["kind"] == "merged":
                v.append((8, "s_nop 1"))
                for r in range(16): v.append((4, f"v_cndmask_b32 v{S+r}, v{SB+r}, v{S+r}, s[{S_MASK+2*r}:{S_MASK+2*r+1}]"))
            seq = []
            for r in range(16):
                v.append((8, f"v_exp_f32 v{S+r}, v{S+r}"))
                if r >= 2 and r % 2 == 0 and r < 14: v.append((4, f"v_cvt_pk_bf16_f32 v{P+(r-2)//2}, v{S+r-2}, v{S+r-1}"))
            v.append((4, f"v_cvt_pk_bf16_f32 v{P+6}, v{S+12}, v{S+13}"))
            v.append((4, f"v_cvt_pk_bf16_f32 v{P+7}, v{S+14}, v{S+15}"))
            if j["kind"] == "merged":
                for k in range(8):
                    v.append((4, f"v_and_b32 v{PXr+k}, v{PM+k}, v{P+k}"))
                    v.append((4, f"v_bfi_b32 v{PYr+k}, v{PM+k}, 0, v{P+k}"))
            return v
        def partB(n):
            j = jobs[n]; i = j["slot"]; P = PB[n % 2]; m = []
            first = i not in touched
            touched.add(i)
            O = vr(O_(i), 16); L = ar(L_(i), 16)
            vf = VF[j["buf"]]; tg = j["tagid"]
            if j["kind"] == "full":
                m.append(([("V", tg, 0)], f"v_mfma_f32_32x32x16_bf16 {O}, {ar(vf,4)}, {vr(P,4)}, {'0' if first else O}"))
                m.append(([], f"v_mfma_f32_32x32x16_bf16 {L}, {ar(ONES,4)}, {vr(P,4)}, {'0' if first else L}"))
                m.append(([("V", tg, 1)], f"v_mfma_f32_32x32x16_bf16 {O}, {ar(vf+4,4)}, {vr(P+4,4)}, {O}"))
                m.append(([], f"v_mfma_f32_32x32x16_bf16 {L}, {ar(ONES,4)}, {vr(P+4,4)}, {L}"))
            else:
                m.append(([("V", tg, 0)], f"v_mfma_f32_32x32x16_bf16 {O}, {ar(vf,4)}, {vr(PXr,4)}, {'0' if first else O}"))
                m.append(([], f"v_mfma_f32_32x32x16_bf16 {L}, {ar(ONES,4)}, {vr(P,4)}, {'0' if first else L}"))
                m.append(([("V", tg, 1)], f"v_mfma_f32_32x32x16_bf16 {O}, {ar(vf+4,4)}, {vr(PXr+4,4)}, {O}"))
                m.append(([], f"v_mfma_f32_32x32x16_bf16 {L}, {ar(ONES,4)}, {vr(P+4,4)}, {L}"))
                m.append(([("V2", n, 0)], f"v_mfma_f32_32x32x16_bf16 {O}, {ar(VF2,4)}, {vr(PYr,4)}, {O}"))
                m.append(([("V2", n, 1)], f"v_mfma_f32_32x32x16_bf16 {O}, {ar(VF2+4,4)}, {vr(PYr+4,4)}, {O}"))
            return m
        def emit_iter(mf, va, lds):
            total = sum(it[0] for it in va)
            m = len(mf)
            vi = 0; cum = 0
            ldsq = list(lds)
            if m == 0:
                for tag, ins in ldsq:
                    A(ins); trk.issue(tag)
                if va: A("s_nop 7\ns_nop 3")
                for it in va:
                    if len(it) > 2:
                        nd = trk.need(it[2])
                        if nd is not None: A(f"s_waitcnt lgkmcnt({nd})")
                    A(it[1])
                return
            for k, (tags, ins) in enumerate(mf):
                need = trk.need(tags) if tags else None
                if need is not None: A(f"s_waitcnt lgkmcnt({need})")
                A(ins)
                nl = (len(ldsq) + (m - k) - 1)//(m - k) if ldsq else 0
                for _ in range(min(nl, len(ldsq))):
                    tag, li = ldsq.pop(0); A(li); trk.issue(tag)
                target = total*(k+1)/m
                while vi < len(va) and (cum < target - 2 or k == m-1):
                    if len(va[vi]) > 2:
                        nd = trk.need(va[vi][2])
                        if nd is not None: A(f"s_waitcnt lgkmcnt({nd})")
                    A(va[vi][1]); cum += va[vi][0]; vi += 1
        pendfin = []
        for n in range(-2, N+2):
            mfA = partA(n+1) if 0 <= n+1 < N else []
            mfB = partB(n-1) if 0 <= n-1 < N else []
            mf = []
            ia = ib = 0
            while ia < len(mfA) or ib < len(mfB):
                if ia < len(mfA): mf.append(mfA[ia]); ia += 1
                if ib < len(mfB): mf.append(mfB[ib]); ib += 1
                if ib < len(mfB) and ia >= len(mfA):
                    pass
            va = partV(n) if 0 <= n < N else []
            if pendfin and pendfin[0][0] <= n:
                va = va + pendfin.pop(0)[1]
            if n in xv:
                L0 = len(va); ex = xv[n]; nv = []
                posl = [(q+1)*L0//(len(ex)+1) for q in range(len(ex))]
                qi = 0
                for p in range(L0+1):
                    while qi < len(ex) and posl[qi] == p:
                        nv.append(ex[qi]); qi += 1
                    if p < L0: nv.append(va[p])
                va = nv
            lds = []
            if n in xl: lds += xl[n]
            if 0 <= n+2 < N: lds += loadK(n+2)
            if 0 <= n < N: lds += loadV(n)
            if n == 0 or (n == -1): pass
            if va and n == 0: A("s_nop 7\ns_nop 3")
            emit_iter(mf, va, lds)
            if 0 <= n-1 < N and final and jobs[n-1]["kind"] == "merged":
                pendfin.append((n+1, fin_ops(jobs[n-1]["slot"])))
            if OPT.get("itprof"):
                A("s_memtime s[4:5]\ns_waitcnt lgkmcnt(0)")
                A(f"v_cmp_eq_u32 vcc, {2*(n+2)}, v0\nv_mov_b32 v2, s4\ns_nop 0\nv_cndmask_b32 v1, v1, v2, vcc")
            for h in hooks.get(n, []): h()
            if OPT.get("itprof") and 2*(n+2)+1 < 64:
                A("s_memtime s[4:5]\ns_waitcnt lgkmcnt(0)")
                A(f"v_cmp_eq_u32 vcc, {2*(n+2)+1}, v0\nv_mov_b32 v2, s4\ns_nop 0\nv_cndmask_b32 v1, v1, v2, vcc")
        while pendfin:
            A("s_nop 7\ns_nop 3")
            for it in pendfin.pop(0)[1]: A(it[1])
    def fin_ops(i):
        O = O_(i); L = FT; v = []
        v.append((4, f"v_accvgpr_read_b32 v{L}, a{L_(i)}"))
        v.append((4, f"v_mov_b32 v{L+3}, 0x7f7fffff"))
        v.append((4, f"v_cmp_nle_f32 vcc, s98, v{L}"))
        v.append((8, f"v_rcp_f32 v{L+1}, v{L}"))
        v.append((4, f"v_cmp_nge_f32 s[20:21], s99, v{L}"))
        v.append((4, f"s_or_b64 s[100:101], s[20:21], vcc"))
        for r in range(16): v.append((4, f"v_mul_f32 v{O+r}, v{O+r}, v{L+1}"))
        v.append((4, f"v_max3_f32 v{L+2}, abs(v{O}), abs(v{O+1}), abs(v{O+2})"))
        for r in range(3, 15, 2): v.append((4, f"v_max3_f32 v{L+2}, v{L+2}, abs(v{O+r}), abs(v{O+r+1})"))
        v.append((4, f"v_max_f32 v{L+2}, v{L+2}, abs(v{O+15})"))
        for p in range(2):
            for q, a in enumerate((p, p+2)):
                v.append((4, f"v_cvt_pk_bf16_f32 v{L+4+4*p+2*q}, v{O+4*a}, v{O+4*a+1}"))
                v.append((4, f"v_cvt_pk_bf16_f32 v{L+4+4*p+2*q+1}, v{O+4*a+2}, v{O+4*a+3}"))
        v.append((4, f"v_cmp_nle_f32 vcc, v{L+2}, v{L+3}"))
        v.append((4, f"s_add_u32 s21, s97, {i*131072}"))
        v.append((4, f"s_or_b64 s[100:101], s[100:101], vcc"))
        v.append((4, f"buffer_store_dwordx4 {vr(L+4,4)}, v{V_OS}, s[{S_O}:{S_O+3}], s21 offen sc1"))
        v.append((4, f"buffer_store_dwordx4 {vr(L+8,4)}, v{V_OS}, s[{S_O}:{S_O+3}], s21 offen offset:512 sc1"))
        v.append((8, f"s_cmp_lg_u64 s[100:101], 0\ns_cselect_b32 s{S_FB}, 1, s{S_FB}"))
        return v

    def sig(tag, bitoff, flagoff, oldreg):
        A("s_waitcnt vmcnt(0)\ns_barrier")
        A(f"s_cmp_eq_u32 s{S_MB}, 7\ns_cbranch_scc1 .LB_nosig{tag}")
        A(f"s_lshl_b32 s20, s{S_HP}, 2\ns_add_u32 s22, s{S_MB}, {bitoff}\ns_lshl_b32 s21, 1, s22\ns_add_u32 s23, s32, {flagoff}")
        signal2(A, "B" + tag, 20, 21, 10, oldreg, 23)
        A.label(f".LB_nosig{tag}")
    def pol(tag, bitoff, flagoff, seenreg):
        A(f"s_cmp_eq_u32 s{S_MB}, 0\ns_cbranch_scc1 .LB_nopoll{tag}")
        A(f"s_lshl_b32 s20, s{S_HP}, 2\ns_add_u32 s22, s{S_MB}, {bitoff - 1}\ns_add_u32 s23, s33, {flagoff}")
        poll2(A, "B" + tag, False, 20, "s_bitcmp1_b32 s16, s22", 10, seenreg, 23, allwaves=True, pre=8)
        A.label(f".LB_nopoll{tag}")
    uid = [0]
    def cond(wave_test, body):
        uid[0] += 1
        lab = f".LBc{uid[0]}"
        return (4, "\n".join([wave_test, f"s_cbranch_scc1 {lab}"] + body + [f"{lab}:"]))
    def dma(gofs, lofs, k):
        return f"buffer_load_dwordx4 v{V_HL}, s[24:27], s19 offen offset:{(k%4)*1024} sc1 lds"
    def dma_group(gbase, lbase, k0):
        return [f"s_add_u32 s19, {gbase}, {(k0//4)*4096}", f"s_add_u32 m0, {lbase}, {(k0//4)*4096}", "s_nop 0"] + [dma(0, 0, k) for k in range(k0, k0+4)]
    def hookPollH():
        A(f"s_cmp_lt_u32 s{S_WAVE}, 2\ns_cbranch_scc1 .LB_skipH")
        pol("H", 0, 0, 31)
        A.label(".LB_skipH")
        stamp(9)
        P(3)
    def hookPollL():
        pol("L", 8, 0x8000, 34)
        P(6)
    def wr(tag):
        def f():
            if tag == "H": P(4)
            else: P(7)
            A("s_waitcnt vmcnt(0)\ns_barrier")
            if tag == "L": P(8)
            if tag == "H": P(5)
            if tag == "H":
                stamp(4)
                if OPT.get("cyc"): A("s_memtime s[4:5]")
        return f
    def hookSigL():
        A(f"s_cmp_ge_u32 s{S_WAVE}, 2\ns_cbranch_scc1 .LB_sl1\ns_waitcnt vmcnt(0)\n.LB_sl1:\ns_barrier")
        A(f"s_cmp_eq_u32 s{S_MB}, 7\ns_cbranch_scc1 .LB_nosigL")
        A(f"s_lshl_b32 s20, s{S_HP}, 2\ns_add_u32 s22, s{S_MB}, 8\ns_lshl_b32 s21, 1, s22\ns_add_u32 s23, s32, 0x8000")
        signal2(A, "BL", 20, 21, 10, 3, 23, 3)
        A.label(".LB_nosigL")
    def hookSigH():
        A(f"s_cmp_lt_u32 s{S_WAVE}, 2\ns_cbranch_scc1 .LB_sh1\ns_waitcnt vmcnt(0)\n.LB_sh1:\ns_barrier")
        A(f"s_cmp_eq_u32 s{S_MB}, 7\ns_cbranch_scc1 .LB_nosigH")
        A(f"s_lshl_b32 s20, s{S_HP}, 2\ns_lshl_b32 s21, 1, s{S_MB}\ns_mov_b32 s23, s32")
        signal2(A, "BH", 20, 21, 10, 30, 23, 2)
        A.label(".LB_nosigH")
    xv = {}
    def add(n, it): xv.setdefault(n, []).append(it)
    STLN = OPT.get("stln", 6); PH = OPT.get("pollh", 4); PL = OPT.get("polll", 12); SL = OPT.get("sigl", 7); PRE = OPT.get("pre", 2)
    ul = [x for a in range(7, -1, -1) for x in (("K", a), ("V", a))]
    grp = {}
    for q, (nm, a) in enumerate(ul):
        n = q*STLN//16
        off = kq_o(a) if nm == "K" else v_o(a)
        grp.setdefault(n, []).extend([f"s_add_u32 s19, s36, {(off//2048)*2048}",
            f"buffer_store_dwordx4 {vr(UNIT[(nm,a)],4)}, v{V_GK if nm == 'K' else V_GV}, s[{S_O}:{S_O+3}], s19 offen offset:{off % 2048} sc1"])
    for n, body in grp.items():
        if OPT.get("nostl"): continue
        add(n, cond(f"s_cmp_ge_u32 s{S_WAVE}, 2", body))
    for q, (gb, lb) in enumerate((("s35", "s29"), ("s37", "s38"))):
        add(PH + 1 + q, cond(f"s_cmp_lt_u32 s{S_WAVE}, 2", dma_group(gb, lb, 8) + dma_group(gb, lb, 12)))
    for w in range(4):
        add(PL + 1 + w, cond(f"s_cmp_lg_u32 s{S_WAVE}, {w}", dma_group("s39", "s47", 0) + dma_group("s39", "s47", 4)))
    add(PH - PRE + 1, cond(f"s_cmp_lt_u32 s{S_WAVE}, 2", ["s_add_u32 s18, s33, 0", f"buffer_load_dword v8, off, s[{S_O}:{S_O+3}], s18 sc1"]))
    add(PL - PRE + 1, (4, "s_add_u32 s18, s33, 0x8000"))
    add(PL - PRE + 1, (4, f"buffer_load_dword v8, off, s[{S_O}:{S_O+3}], s18 sc1"))
    if OPT.get("p3pf", 0):
        T = Asm(); code_prefetch(T, "p3b", ".Lph3", ".Lall_text_end", 2, 4, True, n=2, sbase=16)
        add(18, (40, T.text().rstrip("\n")))
    WL = OPT.get("wrl", 23)
    SH = OPT.get("sigh", 0)
    hooks = {SH: [hookSigH], PH: [hookPollH], SL: [hookSigL], 9: [wr("H")], PL: [hookPollL], WL: [wr("L")]}
    run_pipeline(JOBS, hooks, True, {}, xv)
    P(9)
    if OPT.get("prof2"):
        A("s_waitcnt lgkmcnt(0)")
        for i in range(10): A(f"v_mov_b32 v{64+i}, s{PR[i]}")
        A(f"""s_lshl_b32 s16, s2, 8
s_lshl_b32 s17, s{S_WAVE}, 6
s_add_u32 s16, s16, s17
s_add_u32 s16, s16, {STAMP + 0x70000}
s_mov_b64 exec, 1
buffer_store_dwordx4 v[64:67], off, s[{S_O}:{S_O+3}], s16
buffer_store_dwordx4 v[68:71], off, s[{S_O}:{S_O+3}], s16 offset:16
buffer_store_dwordx2 v[72:73], off, s[{S_O}:{S_O+3}], s16 offset:32
s_mov_b64 exec, -1""")
    stamp(8)
    if OPT.get("cyc"): A("s_memtime s[6:7]")
    if OPT.get("itprof"):
        A(f"""s_lshl_b32 s16, s2, 10
s_lshl_b32 s17, s{S_WAVE}, 8
s_add_u32 s16, s16, s17
s_add_u32 s16, s16, {STAMP + 0x40000}
v_lshlrev_b32 v2, 2, v0
buffer_store_dword v1, v2, s[{S_O}:{S_O+3}], s16 offen
""")
    A(f"s_cmp_eq_u32 s{S_FB}, 0\ns_cbranch_scc1 .LB_end")
    gen_fallback(A)
    A.label(".LB_end")

def gen_fallback(A):
    S = 64; O = 128; L = 208; P = 112
    A(f"""s_waitcnt vmcnt(0)
s_mov_b32 s16, 0                     ; slot
v_and_b32 v2, 31, v0                ; q
v_lshrrev_b32 v3, 5, v0
v_lshlrev_b32 v3, 2, v3            ; 4h
.LFB_slot:
s_lshr_b32 s17, s{S_WAVE}, 1
s_lshl_b32 s18, s16, 1
s_add_u32 s17, s17, s18              ; qt
s_lshl_b32 s18, s16, 12
v_add_u32 v4, s18, v{V_QR}
ds_read_b128 a[128:131], v4
ds_read_b128 a[132:135], v4 offset:1024
s_lshl_b32 s18, s17, 5
s_add_u32 s18, s18, 256
v_add_u32 v5, s18, v2              ; qp
v_mov_b32 v6, {NEGBIG}
s_mov_b32 s19, 0                     ; pass
.LFB_pass:
s_mov_b32 s18, 0                     ; delta 0..8
.LFB_blk:
s_add_u32 s20, s17, 8
s_sub_u32 s20, s20, s18
s_cmp_lg_u32 s{S_MB}, 0
s_cbranch_scc1 .LFB_ok
s_cmp_lt_u32 s20, 8
s_cbranch_scc1 .LFB_next
.LFB_ok:
s_lshr_b32 s21, s{S_WAVE}, 1
s_sub_u32 s21, s20, s21
s_lshl_b32 s21, s21, 11
v_add_u32 v7, s21, v{V_KR}
v_add_u32 v8, s21, v{V_VR}
ds_read_b128 a[160:163], v7
ds_read_b128 a[164:167], v7 offset:1024
ds_read_b128 a[184:187], v8
ds_read_b128 a[188:191], v8 offset:1024
s_waitcnt lgkmcnt(0)
v_mfma_f32_32x32x16_bf16 {vr(S,16)}, a[160:163], a[128:131], 0
v_mfma_f32_32x32x16_bf16 {vr(S,16)}, a[164:167], a[132:135], {vr(S,16)}
s_lshl_b32 s21, s20, 5
v_add_u32 v9, s21, v3
v_sub_u32 v9, v5, v9
s_nop 7
s_nop 3
""")
    for r in range(16):
        key = 8*(r//4) + r % 4
        A(f"v_subrev_u32 v10, {key}, v9")
        A(f"v_cmp_gt_u32 vcc, 0x100, v10")
        A(f"v_mov_b32 v11, {NEGBIG}")
        A("s_nop 0")
        A(f"v_cndmask_b32 v{S+r}, v11, v{S+r}, vcc")
    A("s_cmp_eq_u32 s19, 1\ns_cbranch_scc1 .LFB_p2")
    for r in range(16): A(f"v_max_f32 v6, v6, v{S+r}")
    A("s_branch .LFB_next")
    A.label(".LFB_p2")
    for r in range(16):
        A(f"v_sub_f32 v{S+r}, v{S+r}, v6")
    for r in range(16): A(f"v_exp_f32 v{S+r}, v{S+r}")
    A("s_nop 0")
    for k in range(8): A(f"v_cvt_pk_bf16_f32 v{P+k}, v{S+2*k}, v{S+2*k+1}")
    A("s_nop 1")
    A(f"v_mfma_f32_32x32x16_bf16 {vr(O,16)}, a[184:187], {vr(P,4)}, {vr(O,16)}")
    A(f"v_mfma_f32_32x32x16_bf16 {vr(L,16)}, {ar(ONES,4)}, {vr(P,4)}, {vr(L,16)}")
    A(f"v_mfma_f32_32x32x16_bf16 {vr(O,16)}, a[188:191], {vr(P+4,4)}, {vr(O,16)}")
    A(f"v_mfma_f32_32x32x16_bf16 {vr(L,16)}, {ar(ONES,4)}, {vr(P+4,4)}, {vr(L,16)}")
    A("s_nop 7\ns_nop 7")
    A.label(".LFB_next")
    A("s_add_u32 s18, s18, 1\ns_cmp_le_u32 s18, 8\ns_cbranch_scc1 .LFB_blk")
    A("s_cmp_eq_u32 s19, 1\ns_cbranch_scc1 .LFB_fin")
    A("v_mov_b32 v7, v6\ns_nop 1\nv_permlane32_swap_b32 v6, v7\ns_nop 1\nv_max_f32 v6, v6, v7")
    for r in range(16): A(f"v_mov_b32 v{O+r}, 0\nv_mov_b32 v{L+r}, 0")
    A("s_mov_b32 s19, 1\ns_branch .LFB_pass")
    A.label(".LFB_fin")
    A(f"v_rcp_f32 v{L+1}, v{L}\ns_nop 0")
    for r in range(16): A(f"v_mul_f32 v{O+r}, v{O+r}, v{L+1}")
    for p in range(2):
        for q, a in enumerate((p, p+2)):
            A(f"v_cvt_pk_bf16_f32 v{L+4+4*p+2*q}, v{O+4*a}, v{O+4*a+1}")
            A(f"v_cvt_pk_bf16_f32 v{L+4+4*p+2*q+1}, v{O+4*a+2}, v{O+4*a+3}")
    A(f"""s_lshl_b32 s21, s16, 17
s_add_u32 s21, s21, s97
buffer_store_dwordx4 {vr(L+4,4)}, v{V_OS}, s[{S_O}:{S_O+3}], s21 offen sc1
buffer_store_dwordx4 {vr(L+8,4)}, v{V_OS}, s[{S_O}:{S_O+3}], s21 offen offset:512 sc1
s_add_u32 s16, s16, 1
s_cmp_lt_u32 s16, 4
s_cbranch_scc1 .LFB_slot
""")


def early_setup_B(A):
    A(f"""; ---- B phase2 constants
v_and_b32 v13, 15, v0               ; r / c16
v_lshrrev_b32 v14, 4, v0            ; g
s_and_b32 s24, s{S_WAVE}, 1         ; wn
s_lshr_b32 s25, s{S_WAVE}, 1
s_lshl_b32 s26, s24, 15
s_lshl_b32 s27, s25, 13
s_add_u32 s26, s26, s27
s_add_u32 s26, s26, 16384
v_lshrrev_b32 v16, 1, v14
v_lshlrev_b32 v16, 9, v16
v_lshlrev_b32 v17, 4, v13
v_add_u32 v16, v16, v17
v_and_b32 v18, 1, v14
v_lshlrev_b32 v18, 10, v18
v_add_u32 v16, v16, v18
v_add_u32 v{V_KW}, s26, v16
s_lshl_b32 s28, s24, 14
s_add_u32 s28, s28, s27
v_add_u32 v19, s28, v16
s_add_u32 s28, s28, {QBASE}
v_add_u32 v{V_QW}, s28, v16
v_and_b32 v16, 1, v14
v_lshlrev_b32 v16, 9, v16
v_add_u32 v16, v16, v17
v_lshrrev_b32 v18, 1, v14
v_lshlrev_b32 v18, 8, v18
v_add_u32 v16, v16, v18
s_add_u32 s26, s26, {VBASE}
v_add_u32 v{V_VW}, s26, v16
s_sub_u32 s28, s28, {QBASE - 32768}
v_add_u32 v1, s28, v16
v_accvgpr_write_b32 a250, v19
v_accvgpr_write_b32 a251, v1
v_lshlrev_b32 v{V_HL}, 4, v0
s_lshl_b32 s26, s24, 15
s_lshl_b32 s27, s25, 11
s_add_u32 s26, s26, s27
v_add_u32 v{V_KR}, s26, v{V_HL}
v_add_u32 v{V_VR}, {VBASE}, v{V_KR}
s_lshl_b32 s26, s24, 14
s_add_u32 s26, s26, s27
s_add_u32 s26, s26, {QBASE}
v_add_u32 v{V_QR}, s26, v{V_HL}
v_bfe_u32 v16, v0, 4, 1
v_lshlrev_b32 v16, 15, v16
v_lshrrev_b32 v17, 5, v0
v_lshlrev_b32 v18, 8, v17
v_add_u32 v16, v16, v18
v_and_b32 v18, 15, v0
v_lshlrev_b32 v18, 4, v18
v_add_u32 v{V_OS}, v16, v18
; t = q - 4h
v_and_b32 v16, 31, v0
v_lshlrev_b32 v17, 2, v17
v_sub_u32 v{V_T}, v16, v17
v_mov_b32 v13, 0xffff
v_mov_b32 v14, 0xffff0000
""")
    for k in range(8):
        k0 = 8*((2*k)//4) + (2*k) % 4; k1 = 8*((2*k+1)//4) + (2*k+1) % 4
        A(f"v_cmp_le_i32 vcc, {k0}, v{V_T}")
        A(f"v_cmp_le_i32 s[28:29], {k1}, v{V_T}")
        A("s_nop 0")
        A(f"v_cndmask_b32 v1, 0, v13, vcc")
        A(f"v_cndmask_b32 v{PM+k}, 0, v14, s[28:29]")
        A(f"v_or_b32 v{PM+k}, v{PM+k}, v1")
    A(f"""s_cmp_eq_u32 s{S_MB}, 0|s_cselect_b32 s24, {NEGBIG}, 0
s_cmp_lt_u32 s{S_WAVE}, 2|s_cselect_b32 s25, s24, 0
""")
    for r in range(16):
        A(f"v_mov_b32 v{CMA+r}, s25")
        A(f"v_mov_b32 v{CMB+r}, s24")
```
